```python
import torch

def _softmax(x, axis=-1):
    return torch.softmax(x, dim=axis)

def _gelu(x):
    return torch.nn.functional.gelu(x, approximate='tanh')

def _silu(x):
    return torch.nn.functional.silu(x)

def _sigmoid(x):
    return torch.sigmoid(x)

def _layernorm(x, axis=-1, eps=1e-05):
    m = x.mean(dim=axis, keepdim=True)
    v = x.var(dim=axis, keepdim=True, unbiased=False)
    return (x - m) / torch.sqrt(v + eps)

def _scatter_add(tgt, idx, src, axis=0):
    return tgt.clone().index_add_(axis, idx, src)

def _segment_sum(src, seg, n):
    out = torch.zeros((n,) + src.shape[1:], dtype=src.dtype)
    return out.index_add_(0, seg, src)

def _pad(x, pw):
    flat = tuple((v for pair in reversed(pw) for v in pair))
    return torch.nn.functional.pad(x, flat)
kernel_name = 'sequential_preLN__memory_aug_recurrent_mem_tr__mixer_s_mlp__prompt'

def setup_inputs():

    _w = lambda a: (lambda t: t.to(torch.bfloat16) if t.is_floating_point() else t)(torch.as_tensor(a))

    def _A_setup():
        B, S, Dm = (1, 2048, 640)
        H, Dh = (32, 192)
        M, seg = (8, 32)
        seg = min(seg, S)
        S = S // seg * seg
        return {'x': _w((lambda *s: torch.randn(*s, dtype=torch.bfloat16) * 0.05)(B, S, Dm)), 'mem0': _w((lambda *s: torch.randn(*s, dtype=torch.bfloat16) * 0.2)(B, M, Dm)), 'Wq': _w((lambda *s: torch.randn(*s, dtype=torch.bfloat16) * 1.6)(Dm, H, Dh) * Dm ** (-0.5)), 'Wk': _w((lambda *s: torch.randn(*s, dtype=torch.bfloat16) * 1.6)(Dm, H, Dh) * Dm ** (-0.5)), 'Wv': _w((lambda *s: torch.randn(*s, dtype=torch.bfloat16) * 0.2)(Dm, H, Dh) * Dm ** (-0.5)), 'Wo': _w((lambda *s: torch.randn(*s, dtype=torch.bfloat16) * 0.2)(H, Dh, Dm) * (H * Dh) ** (-0.5)), 'seg_len': seg}
    _A_in = _A_setup()

    def _B_setup():
        B, S, D, F = (1, 2048, 640, 1536)
        return {'x': _w((lambda *s: torch.randn(*s, dtype=torch.bfloat16) * 0.05)(B, S, D)), 'w1': _w((lambda *s: torch.randn(*s, dtype=torch.bfloat16) * 0.8)(D, D) * D ** (-0.5)), 'w2': _w((lambda *s: torch.randn(*s, dtype=torch.bfloat16) * 0.8)(D, D) * D ** (-0.5)), 'w3': _w((lambda *s: torch.randn(*s, dtype=torch.bfloat16) * 0.8)(D, F) * D ** (-0.5)), 'w4': _w((lambda *s: torch.randn(*s, dtype=torch.bfloat16) * 0.8)(F, D) * F ** (-0.5))}
    _B_in = _B_setup()
    return {'A_x': _A_in['x'], 'A_mem0': _A_in['mem0'], 'A_Wq': _A_in['Wq'], 'A_Wk': _A_in['Wk'], 'A_Wv': _A_in['Wv'], 'A_Wo': _A_in['Wo'], 'A_seg_len': _A_in['seg_len'], 'B_x': _B_in['x'], 'B_w1': _B_in['w1'], 'B_w2': _B_in['w2'], 'B_w3': _B_in['w3'], 'B_w4': _B_in['w4']}

def reference(A_x, A_mem0, A_Wq, A_Wk, A_Wv, A_Wo, A_seg_len, B_x, B_w1, B_w2, B_w3, B_w4):

    def _A_ref(x, mem0, Wq, Wk, Wv, Wo, seg_len):
        B, S, Dm = x.shape
        H, Dh = (Wq.shape[1], Wq.shape[2])
        M = mem0.shape[1]
        scale = Dh ** (-0.5)
        n_seg = S // seg_len
        L = M + seg_len
        idx = torch.arange(L)
        mask = (idx[:, None] < M) | (idx[:, None] >= idx[None, :])
        mem = mem0
        outs = []
        for s in range(n_seg):
            xs = x[:, s * seg_len:(s + 1) * seg_len, :].clone()
            h = torch.concatenate([mem, xs], axis=1)
            q = torch.einsum('btd,dhe->bhte', h, Wq)
            k = torch.einsum('btd,dhe->bhte', h, Wk)
            v = torch.einsum('btd,dhe->bhte', h, Wv)
            scores = torch.einsum('bhqe,bhke->bhqk', q, k) * scale
            scores = torch.where(mask[None, None], scores, -1000000000.0)
            p = _softmax(scores, axis=-1)
            o = torch.einsum('bhqk,bhke->bhqe', p, v)
            o = torch.einsum('bhte,hed->btd', o, Wo)
            mem = o[:, :M, :].clone()
            outs.append(o[:, M:, :])
        return torch.concatenate(outs, axis=1)

    def _B_ref(x, w1, w2, w3, w4):
        B, S, D = x.shape
        h = _gelu(_layernorm(x, axis=-1) @ w1)
        c = D // 4
        g0 = _pad(h[:, :, 0 * c:1 * c], ((0, 0), (1, 0), (0, 0)))[:, :S, :]
        g1 = _pad(h[:, :, 1 * c:2 * c], ((0, 0), (0, 1), (0, 0)))[:, 1:, :]
        g2 = _pad(h[:, :, 2 * c:3 * c], ((0, 0), (2, 0), (0, 0)))[:, :S, :]
        g3 = _pad(h[:, :, 3 * c:], ((0, 0), (0, 2), (0, 0)))[:, 2:, :]
        hs = torch.concatenate([g0, g1, g2, g3], axis=-1) @ w2
        x1 = x + hs
        h2 = _gelu(_layernorm(x1, axis=-1) @ w3) @ w4
        return x1 + h2
    x = A_x
    h = x + _A_ref(_layernorm(x, axis=-1), A_mem0, A_Wq, A_Wk, A_Wv, A_Wo, A_seg_len)
    h2 = h + _B_ref(_layernorm(h, axis=-1), B_w1, B_w2, B_w3, B_w4)
    return h2
```

```python
import re

_REG = re.compile(r'\b([vas])(\d+)\b|\b([vas])\[(\d+):(\d+)\]|\b(vcc|exec|m0|scc)\b')

def regs_of(tok):
    out = []
    for m in _REG.finditer(tok):
        if m.group(1):
            out.append((m.group(1), int(m.group(2))))
        elif m.group(3):
            out += [(m.group(3), i) for i in range(int(m.group(4)), int(m.group(5)) + 1)]
        else:
            out.append((m.group(6), 0))
    return out

TRANS = ('v_exp_f32', 'v_log_f32', 'v_rcp_f32', 'v_rsq_f32', 'v_sqrt_f32', 'v_sin_f32', 'v_cos_f32')

def split_ops(s):
    ops, depth, cur = [], 0, ''
    for ch in s:
        if ch == '[': depth += 1
        if ch == ']': depth -= 1
        if ch == ',' and depth == 0:
            ops.append(cur.strip()); cur = ''
        else:
            cur += ch
    if cur.strip(): ops.append(cur.strip())
    return ops

class Ins:
    __slots__ = ('op', 'kind', 'dst', 'src', 'srcc', 'passes', 'dpp', 'states', 'wide_data', 'text')

def parse(text):
    t = text.split(';')[0].strip()
    parts = t.split(None, 1)
    op = parts[0]
    rest = parts[1] if len(parts) > 1 else ''
    ops = split_ops(rest)
    I = Ins(); I.op = op; I.text = text; I.dst = []; I.src = []; I.srcc = []; I.passes = 0
    I.dpp = False; I.states = 1; I.wide_data = []
    if op == 's_nop':
        I.kind = 'nop'; I.states = int(ops[0], 0) + 1; return I
    if op.startswith('v_mfma'):
        I.kind = 'mfma'
        I.passes = 8 if '32x32' in op else 4
        I.dst = regs_of(ops[0]); I.src = regs_of(ops[1]) + regs_of(ops[2]); I.srcc = regs_of(ops[3])
        return I
    if op.startswith('v_'):
        I.kind = 'valu'
        I.dpp = ('row_' in rest or 'quad_perm' in rest or 'wave_' in rest or '_dpp' in op)
        last = ops[-1].split(' ')[0] if ops else ''
        ops2 = ops[:-1] + [last]
        if op.startswith('v_cmp'):
            I.dst = regs_of(ops2[0]); I.src = sum((regs_of(o) for o in ops2[1:]), [])
            if op.startswith('v_cmpx'): I.dst.append(('exec', 0))
        elif op.startswith('v_permlane') and 'swap' in op:
            I.dst = regs_of(ops2[0]) + regs_of(ops2[1]); I.src = list(I.dst)
        elif op in ('v_add_co_u32', 'v_sub_co_u32', 'v_addc_co_u32', 'v_subb_co_u32', 'v_mad_u64_u32'):
            I.dst = regs_of(ops2[0]) + regs_of(ops2[1]); I.src = sum((regs_of(o) for o in ops2[2:]), [])
        else:
            I.dst = regs_of(ops2[0]); I.src = sum((regs_of(o) for o in ops2[1:]), [])
            if op.startswith('v_fmac') or op.startswith('v_dot2c') or op.startswith('v_pk_fmac') or I.dpp or op.startswith('v_writelane'):
                I.src += I.dst
        return I
    if op.startswith('ds_'):
        I.kind = 'ds'
        o = [x.split(' ')[0] for x in ops]
        if 'read' in op or 'permute' in op or 'swizzle' in op:
            I.dst = regs_of(o[0]); I.src = sum((regs_of(x) for x in o[1:]), [])
        else:
            I.src = sum((regs_of(x) for x in o), [])
        return I
    if op.startswith('global_') or op.startswith('buffer_'):
        I.kind = 'vmem'
        o = [x.split(' ')[0] for x in ops]
        lds = ('_lds_' in op) or re.search(r'\blds\b', rest) is not None
        if lds:
            I.src = sum((regs_of(x) for x in o), []) + [('m0', 0)]
            I.kind = 'vmem_lds'
        elif 'load' in op:
            I.dst = regs_of(o[0]); I.src = sum((regs_of(x) for x in o[1:]), [])
        elif 'atomic' in op and re.search(r'\bsc0\b', rest) and op.startswith('global_'):
            I.dst = regs_of(o[0]); I.src = sum((regs_of(x) for x in o[1:]), [])
        else:
            I.src = sum((regs_of(x) for x in o), [])
            if 'x4' in op or 'x3' in op:
                I.wide_data = regs_of(o[1] if op.startswith('global_') else o[0])
        return I
    if op.startswith('s_'):
        I.kind = 'salu'
        if op.startswith('s_cmp') or op in ('s_waitcnt', 's_barrier', 's_branch', 's_endpgm', 's_setprio', 's_sleep') or op.startswith('s_cbranch'):
            I.src = sum((regs_of(x) for x in ops), []) if op.startswith('s_cmp') else []
        else:
            I.dst = regs_of(ops[0]) if ops else []
            I.src = sum((regs_of(x) for x in ops[1:]), [])
            if 'saveexec' in op: I.dst.append(('exec', 0))
        return I
    raise ValueError('unknown instr: ' + text)

def need(P, C):
    n = 0
    pd = set(P.dst)
    cs = set(C.src); cc = set(C.srcc); cd = set(C.dst)
    vec = lambda s: {r for r in s if r[0] in 'va'}
    sca = lambda s: {r for r in s if r[0] == 's' or r[0] == 'vcc'}
    if P.kind == 'valu':
        pv = vec(pd)
        if C.kind == 'mfma' and pv & (cs | cc): n = max(n, 2)
        if C.kind == 'valu':
            if P.op in TRANS and pv & cs and C.op not in TRANS: n = max(n, 1)
            if P.op in TRANS and pv & cs: n = max(n, 1)
            if C.op.startswith('v_permlane') and pv & cs: n = max(n, 2)
            if C.dpp and pv & cs: n = max(n, 2)
            if C.op.startswith('v_read') and pv & cs: n = max(n, 1)
            ps = sca(pd)
            if ps & cs:
                n = max(n, 4 if C.op.startswith(('v_readlane', 'v_writelane')) else 2)
            if C.op.startswith('v_cndmask') and ('vcc', 0) in pd: n = max(n, 2)
        if C.kind in ('vmem', 'vmem_lds') and sca(pd) & cs: n = max(n, 5)
        if ('exec', 0) in pd:
            n = max(n, 5)
    if P.kind == 'mfma':
        big = 12 if P.passes == 8 else 8
        if C.kind == 'mfma':
            if pd & cs: n = max(n, big)
            if pd & cc:
                if not (P.dst == C.srcc and P.passes == C.passes): n = max(n, big - 2)
            elif pd & cd: n = max(n, big)
        elif C.kind in ('valu', 'ds', 'vmem', 'vmem_lds'):
            if pd & (cs | cd): n = max(n, big)
        if C.kind == 'valu' and set(P.srcc) & cd: n = max(n, 7 if P.passes == 8 else 3)
    if P.kind == 'vmem' and P.wide_data:
        if set(P.wide_data) & cd: n = max(n, 2)
    if P.kind == 'salu' and ('m0', 0) in pd and C.kind == 'vmem_lds': n = max(n, 1)
    return n

class Asm:
    def __init__(self):
        self.lines = []
        self.hist = []
        self.nuniq = 0
    def raw(self, s):
        self.lines.append(s)
    def comment(self, s):
        self.lines.append('    ; ' + s)
    def label(self, name):
        self.flush()
        self.lines.append(name + ':')
        self.hist = []
    def uniq(self, base):
        self.nuniq += 1
        return '%s_%d' % (base, self.nuniq)
    def flush(self):
        worst = 0; dist = 0
        for P in reversed(self.hist):
            if P.kind == 'mfma': req = 12 if P.passes == 8 else 8
            elif P.kind == 'valu': req = 5 if any(r[0] in ('s', 'vcc', 'exec') for r in P.dst) else 2
            elif P.kind == 'vmem' and P.wide_data: req = 2
            elif P.kind == 'salu' and ('m0', 0) in P.dst: req = 1
            else: req = 0
            worst = max(worst, req - dist)
            dist += P.states
            if dist > 16: break
        if worst > 0:
            self._nop(worst)
    def _nop(self, n):
        while n > 0:
            k = min(n, 16)
            I = parse('s_nop %d' % (k - 1))
            self.lines.append('    s_nop %d' % (k - 1)); self.hist.append(I)
            n -= k
    def __call__(self, text):
        for t in text.strip().split('\n'):
            t = t.strip()
            if not t or t.startswith(';'):
                if t: self.lines.append('    ' + t)
                continue
            C = parse(t)
            if C.op.startswith('s_cbranch') or C.op == 's_branch':
                self.flush_keep_vcc()
            worst = 0; dist = 0
            for P in reversed(self.hist):
                worst = max(worst, need(P, C) - dist)
                dist += P.states
                if dist > 16: break
            if worst > 0: self._nop(worst)
            self.lines.append('    ' + t)
            self.hist.append(C)
            if len(self.hist) > 40: self.hist = self.hist[-40:]
    def flush_keep_vcc(self):
        worst = 0; dist = 1
        for P in reversed(self.hist):
            if P.kind == 'mfma': req = 12 if P.passes == 8 else 8
            elif P.kind == 'valu': req = 5 if any(r[0] in ('s', 'exec') for r in P.dst) else 2
            elif P.kind == 'vmem' and P.wide_data: req = 2
            elif P.kind == 'salu' and ('m0', 0) in P.dst: req = 1
            else: req = 0
            worst = max(worst, req - dist)
            dist += P.states
            if dist > 16: break
        if worst > 0: self._nop(worst)
    def text(self):
        return '\n'.join(self.lines) + '\n'

def kernel_header(name):
    return ('.globl %s\n.p2align 8\n.type %s,@function\n%s:' % (name, name, name))

def kernel_desc(name, vgpr, sgpr, accum):
    return ('.p2align 6\n.amdhsa_kernel %s\n  .amdhsa_next_free_vgpr %d\n  .amdhsa_next_free_sgpr %d\n'
            '  .amdhsa_accum_offset %d\n  .amdhsa_group_segment_fixed_size 0\n  .amdhsa_kernarg_size 120\n'
            '  .amdhsa_user_sgpr_count 2\n  .amdhsa_user_sgpr_kernarg_segment_ptr 1\n'
            '  .amdhsa_system_sgpr_workgroup_id_x 1\n.end_amdhsa_kernel\n' % (name, vgpr, sgpr, accum))
```

```python
from dsl import *
from layout import *
from gen_prep import srd, f32bits, build, gen_prep, rnd_bf16
from gen_roles import *
import math

def xlane(A, op, v, tmp):
    for sw in ('v_permlane16_swap_b32', 'v_permlane32_swap_b32'):
        A('v_mov_b32 v%d, v%d' % (tmp, v))
        A('%s v%d, v%d' % (sw, v, tmp))
        A('%s v%d, v%d, v%d' % (op, v, v, tmp))

def gen_qrole(A, ldf='', stf=''):
    load_w_proj(A, 8)
    A('s_barrier')
    vL16, vKX, vKM, vPM = 1, 2, 4, 5
    XB = [8, 12, 16, 20]
    ACC = 24
    QP = 48
    KX = 60
    KM = 72
    SP = 80
    RD = 104
    BX = 152
    T1, T2 = 6, 7
    SPL = 122880
    A('v_lshlrev_b32 v%d, 4, v0' % vL16)
    A('v_and_b32 v40, 15, v0'); A('v_lshrrev_b32 v41, 4, v0')
    A('s_mul_i32 s20, s26, 12'); A('s_mul_i32 s21, s14, 3'); A('s_add_u32 s20, s20, s21'); A('s_lshl_b32 s20, s20, 9')
    A('v_lshlrev_b32 v%d, 3, v0' % vKX); A('v_add_u32 v%d, s20, v%d' % (vKX, vKX))
    A('s_lshl_b32 s20, s26, 2'); A('s_add_u32 s20, s20, s14'); A('s_lshl_b32 s20, s20, 12'); A('s_add_u32 s20, s20, 3072')
    A('v_and_b32 v42, 7, v40'); A('v_lshlrev_b32 v%d, 3, v42' % vKM); A('v_lshl_add_u32 v%d, v41, 6, v%d' % (vKM, vKM)); A('v_add_u32 v%d, s20, v%d' % (vKM, vKM))
    A('s_lshr_b32 s20, s26, 2'); A('s_lshl_b32 s20, s20, 1'); A('s_add_u32 s20, s20, s14'); A('s_lshl_b32 s20, s20, 10')
    A('s_and_b32 s21, s26, 3'); A('s_lshl_b32 s21, s21, 8'); A('s_add_u32 s20, s20, s21')
    A('v_lshlrev_b32 v%d, 4, v40' % vPM); A('v_lshl_add_u32 v%d, v41, 3, v%d' % (vPM, vPM)); A('v_add_u32 v%d, s20, v%d' % (vPM, vPM))
    A('v_mov_b32 v43, 0xf149f2ca')
    A('s_cmp_eq_u32 s14, 0'); A('s_cselect_b64 s[40:41], -1, 0')
    for r in range(4):
        A('v_lshl_add_u32 v42, v41, 2, %d' % r)
        A('v_cmp_gt_u32 vcc, v42, v40')
        A('v_cndmask_b32 v44, 0, v43, vcc')
        A('v_cndmask_b32 v%d, 0, v44, s[40:41]' % (BX + r))
        A('v_cndmask_b32 v%d, v44, v43, s[40:41]' % (BX + 4 + r))
    A('v_cmp_lt_u32 vcc, 1, v41'); A('v_cndmask_b32 v%d, 0, v43, vcc' % (BX + 8))
    A('s_mul_i32 s22, s14, 10240')
    A('s_mul_i32 s42, s14, 6144'); A('s_add_u32 s42, s42, %d' % SPL)
    A('s_mul_i32 s43, s14, 3072'); A('s_add_u32 s43, s43, %d' % SPL)
    A('s_lshl_b32 s44, s26, 1'); A('s_add_u32 s44, s44, s14'); A('s_lshl_b32 s44, s44, 10'); A('s_add_u32 s44, s44, 0x%x' % PFR)
    A('s_mov_b32 s45, 0x%08x' % f32bits(192 ** -0.5)); A('s_mov_b32 s46, 0x%08x' % f32bits(math.log2(math.e)))
    A('s_mov_b32 s48, -1'); A('s_mov_b32 s49, 0')
    def dma(sseg, slot_sgpr):
        A('s_mul_i32 s23, %s, 40960' % sseg); A('s_add_u32 s23, s23, s22')
        A('s_add_u32 s24, %s, s22' % slot_sgpr)
        for k in range(10):
            A('s_add_u32 m0, s24, %d' % (1024 * k))
            A('buffer_load_dwordx4 v%d, s[4:7], s23 offen lds' % vL16)
            if k < 9: A('s_add_u32 s23, s23, 1024')
    A('s_mov_b32 s34, 0'); A('s_mov_b32 s35, 40960'); A('s_mov_b32 s36, 81920')
    dma('s17', 's34')
    A('s_add_u32 s25, s17, 1'); dma('s25', 's35')
    A('s_waitcnt vmcnt(10)')
    LOOP, SKIP = A.uniq('Lq_loop'), A.uniq('Lq_skip')
    A.label(LOOP)
    A('s_barrier')
    A('s_mul_i32 s37, s17, %d' % SEG_KF); A('s_add_u32 s37, s37, 0x%x' % KF); A('s_add_u32 s38, s37, %d' % (SEG_KF // 2))
    A('s_lshl_b32 s39, s17, 19'); A('s_add_u32 s39, s39, 0x%x' % EXP)
    for a in range(2):
        for t in range(3):
            r = KX + (a * 3 + t) * 2
            A('buffer_load_dwordx2 v[%d:%d], v%d, s[4:7], s%d offen offset:%d %s' % (r, r + 1, vKX, 37 + a, 512 * t, ldf))
    for t in range(3):
        A('buffer_load_dwordx2 v[%d:%d], v%d, s[4:7], s39 offen offset:%d %s' % (KM + 2 * t, KM + 2 * t + 1, vKM, 256 * t, ldf))
    A('s_add_u32 s25, s17, 2'); dma('s25', 's36')
    A('v_add_u32 v3, s34, v%d' % vL16)
    seq = [(ks, mt) for ks in range(20) for mt in range(2)]
    for i in range(3):
        ks, mt = seq[i]
        A('ds_read_b128 v[%d:%d], v3 offset:%d' % (XB[i % 4], XB[i % 4] + 3, (mt * 20 + ks) * 1024))
    for i, (ks, mt) in enumerate(seq):
        if i + 3 < 40:
            k2, m2 = seq[i + 3]; b = XB[(i + 3) % 4]
            A('ds_read_b128 v[%d:%d], v3 offset:%d' % (b, b + 3, (m2 * 20 + k2) * 1024))
            A('s_waitcnt lgkmcnt(3)')
        else:
            A('s_waitcnt lgkmcnt(%d)' % (39 - i))
        b = XB[i % 4]
        for t in range(3):
            d = ACC + (mt * 3 + t) * 4; w = (t * 20 + ks) * 4
            A('v_mfma_f32_16x16x32_bf16 v[%d:%d], a[%d:%d], v[%d:%d], %s' % (d, d + 3, w, w + 3, b, b + 3, '0' if ks == 0 else 'v[%d:%d]' % (d, d + 3)))
    for j in range(6):
        A('v_cvt_pk_bf16_f32 v%d, v%d, v%d' % (QP + 2 * j, ACC + 4 * j, ACC + 4 * j + 1))
        A('v_cvt_pk_bf16_f32 v%d, v%d, v%d' % (QP + 2 * j + 1, ACC + 4 * j + 2, ACC + 4 * j + 3))
    A('s_waitcnt vmcnt(10)')
    for t in range(3):
        for mt in range(2):
            for kt in range(3):
                d = SP + (mt * 3 + kt) * 4
                a = (KX + (kt * 3 + t) * 2) if kt < 2 else (KM + 2 * t)
                q = QP + (mt * 3 + t) * 2
                A('v_mfma_f32_16x16x16_bf16 v[%d:%d], v[%d:%d], v[%d:%d], %s' % (d, d + 3, a, a + 1, q, q + 1, '0' if t == 0 else 'v[%d:%d]' % (d, d + 3)))
    A('v_add_u32 v3, s42, v%d' % vL16)
    for j in range(6):
        A('ds_write_b128 v3, v[%d:%d] offset:%d' % (SP + 4 * j, SP + 4 * j + 3, 1024 * j))
    A('s_waitcnt lgkmcnt(0)')
    A('s_barrier')
    A('s_cmp_ge_u32 s14, 2'); A('s_cbranch_scc1 %s' % SKIP)
    A('v_add_u32 v3, s43, v%d' % vL16)
    for kt in range(3):
        for ws in range(4):
            r = RD + (kt * 4 + ws) * 4
            A('ds_read_b128 v[%d:%d], v3 offset:%d' % (r, r + 3, ws * 6144 + kt * 1024))
    S = SP
    for kt in range(3):
        A('s_waitcnt lgkmcnt(%d)' % (8 - 4 * kt))
        a = RD + kt * 16
        for h2 in range(2):
            A('v_pk_add_f32 v[%d:%d], v[%d:%d], v[%d:%d]' % (a + 2 * h2, a + 2 * h2 + 1, a + 2 * h2, a + 2 * h2 + 1, a + 4 + 2 * h2, a + 5 + 2 * h2))
            A('v_pk_add_f32 v[%d:%d], v[%d:%d], v[%d:%d]' % (a + 8 + 2 * h2, a + 9 + 2 * h2, a + 8 + 2 * h2, a + 9 + 2 * h2, a + 12 + 2 * h2, a + 13 + 2 * h2))
        for h2 in range(2):
            A('v_pk_add_f32 v[%d:%d], v[%d:%d], v[%d:%d]' % (a + 2 * h2, a + 2 * h2 + 1, a + 2 * h2, a + 2 * h2 + 1, a + 8 + 2 * h2, a + 9 + 2 * h2))
        for h2 in range(2):
            A('v_cvt_pk_bf16_f32 v%d, v%d, v%d' % (T1, a + 2 * h2, a + 2 * h2 + 1))
            A('v_lshlrev_b32 v%d, 16, v%d' % (T2, T1)); A('v_and_b32 v%d, 0xffff0000, v%d' % (T1, T1))
            A('v_mul_f32 v%d, s45, v%d' % (T2, T2)); A('v_mul_f32 v%d, s45, v%d' % (T1, T1))
            A('v_cvt_pk_bf16_f32 v%d, v%d, v%d' % (T1, T2, T1))
            A('v_lshlrev_b32 v%d, 16, v%d' % (T2, T1)); A('v_and_b32 v%d, 0xffff0000, v%d' % (T1, T1))
            b0 = (BX + 4 * kt + 2 * h2) if kt < 2 else BX + 8
            b1 = (BX + 4 * kt + 2 * h2 + 1) if kt < 2 else BX + 8
            A('v_add_f32 v%d, v%d, v%d' % (S + 4 * kt + 2 * h2, T2, b0))
            A('v_add_f32 v%d, v%d, v%d' % (S + 4 * kt + 2 * h2 + 1, T1, b1))
    A('v_max3_f32 v%d, v%d, v%d, v%d' % (T1, S, S + 1, S + 2))
    for k in range(3, 11, 2): A('v_max3_f32 v%d, v%d, v%d, v%d' % (T1, T1, S + k, S + k + 1))
    A('v_max_f32 v%d, v%d, v%d' % (T1, T1, S + 11))
    xlane(A, 'v_max_f32', T1, T2)
    for k in range(12):
        A('v_sub_f32 v%d, v%d, v%d' % (S + k, S + k, T1))
        A('v_mul_f32 v%d, s46, v%d' % (S + k, S + k))
        A('v_exp_f32 v%d, v%d' % (S + k, S + k))
    A('v_add_f32 v%d, v%d, v%d' % (T1, S, S + 1))
    for k in range(2, 12): A('v_add_f32 v%d, v%d, v%d' % (T1, T1, S + k))
    xlane(A, 'v_add_f32', T1, T2)
    A('v_rcp_f32 v%d, v%d' % (T1, T1))
    for k in range(12): A('v_mul_f32 v%d, v%d, v%d' % (S + k, S + k, T1))
    for k in range(6): A('v_cvt_pk_bf16_f32 v%d, v%d, v%d' % (RD + k, S + 2 * k, S + 2 * k + 1))
    A('s_lshl_b32 s37, s17, 16'); A('s_add_u32 s37, s37, s44')
    A('s_lshl_b32 s38, s17, 14'); A('s_add_u32 s38, s38, 0x%x' % PMF)
    A('buffer_store_dwordx4 v[%d:%d], v%d, s[4:7], s37 offen %s' % (RD, RD + 3, vL16, stf))
    A('s_mov_b64 exec, s[48:49]')
    A('buffer_store_dwordx2 v[%d:%d], v%d, s[4:7], s38 offen %s' % (RD + 4, RD + 5, vPM, stf))
    A('s_mov_b64 exec, -1')
    A.label(SKIP)
    A('s_mov_b32 s25, s34'); A('s_mov_b32 s34, s35'); A('s_mov_b32 s35, s36'); A('s_mov_b32 s36, s25')
    A('s_add_u32 s17, s17, 1')
    A('s_cmp_lt_u32 s17, s18'); A('s_cbranch_scc1 %s' % LOOP)
    A('s_waitcnt vmcnt(0)')

def gen_q_kernel():
    A = Asm()
    common_entry(A, 'q_kernel', 256)
    A('s_load_dwordx2 s[8:9], s[0:1], 16')
    A('s_waitcnt lgkmcnt(0)')
    srd(A, 4, 12, 13, WS_BYTES)
    A('s_lshr_b32 s26, s2, 3')
    A('s_and_b32 s17, s2, 7'); A('s_lshl_b32 s17, s17, 3'); A('s_add_u32 s18, s17, 8')
    gen_qrole(A)
    A.label('Lq_kernel_end')
    A('s_endpgm')
    return A, ('q_kernel', (256, 1, 1), 256, 147456, 512, 64, 256)

def stats_out(A, vals, vaddr, soff, t1, t2, tmp, stf=''):
    A('v_add_f32 v%d, v%d, v%d' % (t1, vals[0], vals[1]))
    A('v_mul_f32 v%d, v%d, v%d' % (t2, vals[0], vals[0]))
    A('v_fmac_f32 v%d, v%d, v%d' % (t2, vals[1], vals[1]))
    for v in vals[2:]:
        A('v_add_f32 v%d, v%d, v%d' % (t1, t1, v))
        A('v_fmac_f32 v%d, v%d, v%d' % (t2, v, v))
    xlane(A, 'v_add_f32', t1, tmp); xlane(A, 'v_add_f32', t2, tmp)
    A('s_mov_b64 exec, 0xffff')
    A('buffer_store_dwordx2 v[%d:%d], v%d, s[4:7], %s offen %s' % (t1, t2, vaddr, soff, stf))
    A('s_mov_b64 exec, -1')

def gen_c2_task(A, ldf='', stf=''):
    vL16 = 1
    ZA = 2
    ACC = 12
    BUF = [76, 116, 156]
    A('v_lshlrev_b32 v%d, 4, v0' % vL16)
    A('v_and_b32 v10, 15, v0'); A('v_lshrrev_b32 v11, 4, v0')
    A('s_lshl_b32 s20, s17, 5'); A('s_lshl_b32 s21, s14, 3'); A('s_add_u32 s20, s20, s21')
    A('s_mul_i32 s22, s20, 40'); A('s_lshl_b32 s23, s18, 3'); A('s_add_u32 s22, s22, s23'); A('s_lshl_b32 s22, s22, 10'); A('s_add_u32 s22, s22, 0x%x' % UF)
    A('s_lshl_b32 s24, s20, 11'); A('s_add_u32 s24, s24, 0x%x' % PFR)
    A('s_lshl_b32 s25, s20, 9'); A('s_add_u32 s25, s25, 0x%x' % PMF)
    A('s_lshl_b32 s27, s17, 19'); A('s_lshl_b32 s28, s14, 17'); A('s_add_u32 s27, s27, s28'); A('s_add_u32 s27, s27, 0x%x' % EXP)
    def ld(k):
        b = BUF[k % 3]; out = []
        if k < 8:
            out.append('s_add_u32 s29, s22, 4096')
            for ct in range(8):
                out.append('buffer_load_dwordx4 v[%d:%d], v%d, s[4:7], s%d offen offset:%d %s' % (b + 4 * ct, b + 4 * ct + 3, vL16, 22 if ct < 4 else 29, 1024 * (ct % 4), ldf))
            for mt in range(2):
                out.append('buffer_load_dwordx4 v[%d:%d], v%d, s[4:7], s24 offen offset:%d %s' % (b + 32 + 4 * mt, b + 35 + 4 * mt, vL16, 1024 * mt, ldf))
            out.append('s_add_u32 s22, s22, 40960'); out.append('s_add_u32 s24, s24, 2048')
        else:
            for ct in range(8):
                out.append('buffer_load_dwordx4 v[%d:%d], v%d, s[4:7], s27 offen offset:%d %s' % (b + 4 * ct, b + 4 * ct + 3, ZA + ct, 1536 * (k - 8), ldf))
            for mt in range(2):
                out.append('buffer_load_dwordx4 v[%d:%d], v%d, s[4:7], s25 offen offset:%d %s' % (b + 32 + 4 * mt, b + 35 + 4 * mt, vL16, 2048 * (k - 8) + 1024 * mt, ldf))
        return out
    for k in range(2):
        for x in ld(k): A(x)
    t0, t1, t2, t3 = 196, 197, 198, 199
    for ct in range(8):
        A('s_lshl_b32 s29, s18, 4'); A('s_add_u32 s29, s29, %d' % ((ct >> 1) * 4))
        A('v_lshrrev_b32 v%d, 2, v10' % t0); A('v_add_u32 v%d, s29, v%d' % (t0, t0))
        A('v_mul_u32_u24 v%d, 0x3334, v%d' % (t1, t0)); A('v_lshrrev_b32 v%d, 16, v%d' % (t1, t1))
        A('v_mul_u32_u24 v%d, 5, v%d' % (t2, t1)); A('v_sub_u32 v%d, v%d, v%d' % (t2, t0, t2))
        A('v_cmp_lt_u32 vcc, 2, v%d' % t2)
        A('v_cndmask_b32 v%d, 0, 1, vcc' % t3)
        A('v_lshl_add_u32 v%d, v%d, 1, v%d' % (t1, t1, t3))
        A('v_mul_u32_u24 v%d, 3, v%d' % (t3, t3)); A('v_sub_u32 v%d, v%d, v%d' % (t2, t2, t3))
        A('v_lshlrev_b32 v%d, 12, v%d' % (ZA + ct, t1))
        A('v_lshl_add_u32 v%d, v%d, 7, v%d' % (ZA + ct, t2, ZA + ct))
        A('v_and_b32 v%d, 3, v10' % t3); A('v_lshl_add_u32 v%d, v%d, 4, v%d' % (ZA + ct, t3, ZA + ct))
        A('v_mul_u32_u24 v%d, 384, v11' % t3); A('v_add_u32 v%d, v%d, v%d' % (ZA + ct, ZA + ct, t3))
        if ct & 1: A('v_add_u32 v%d, 64, v%d' % (ZA + ct, ZA + ct))
    for k in range(10):
        if k + 2 < 10:
            for x in ld(k + 2): A(x)
            A('s_waitcnt vmcnt(20)')
        else:
            A('s_waitcnt vmcnt(%d)' % (10 * (9 - k)))
        b = BUF[k % 3]
        for ct in range(8):
            for mt in range(2):
                d = ACC + (ct * 2 + mt) * 4
                A('v_mfma_f32_16x16x32_bf16 v[%d:%d], v[%d:%d], v[%d:%d], %s' % (d, d + 3, b + 4 * ct, b + 4 * ct + 3, b + 32 + 4 * mt, b + 35 + 4 * mt, '0' if k == 0 else 'v[%d:%d]' % (d, d + 3)))
    XR = 200
    A('s_lshl_b32 s29, s18, 2'); A('s_add_u32 s29, s29, s14')
    A('v_mul_u32_u24 v%d, 1280, v10' % t0); A('v_lshl_add_u32 v%d, v11, 3, v%d' % (t0, t0))
    A('s_mul_i32 s30, s17, %d' % (32 * 1280)); A('s_lshl_b32 s31, s29, 6'); A('s_add_u32 s30, s30, s31'); A('s_add_u32 s31, s30, %d' % (16 * 1280))
    for mt in range(2):
        for a in range(2):
            A('buffer_load_dwordx2 v[%d:%d], v%d, s[8:11], s%d offen offset:%d' % (XR + 4 * mt + 2 * a, XR + 4 * mt + 2 * a + 1, t0, 30 + mt, 32 * a))
    A('s_lshl_b32 s32, s14, 14')
    A('v_add_u32 v%d, s32, v%d' % (t1, vL16))
    for j in range(16):
        A('ds_write_b128 v%d, v[%d:%d] offset:%d' % (t1, ACC + 4 * j, ACC + 4 * j + 3, 1024 * j))
    A('s_waitcnt lgkmcnt(0)')
    A('s_barrier')
    A('s_lshl_b32 s32, s14, 12')
    A('v_add_u32 v%d, s32, v%d' % (t1, vL16))
    RD = 76
    for j in range(4):
        for ws in range(4):
            r = RD + (j * 4 + ws) * 4
            A('ds_read_b128 v[%d:%d], v%d offset:%d' % (r, r + 3, t1, ws * 16384 + j * 1024))
    for j in range(4):
        A('s_waitcnt lgkmcnt(%d)' % (12 - 4 * j))
        a = RD + j * 16
        for h2 in range(2):
            A('v_pk_add_f32 v[%d:%d], v[%d:%d], v[%d:%d]' % (a + 2 * h2, a + 2 * h2 + 1, a + 2 * h2, a + 2 * h2 + 1, a + 4 + 2 * h2, a + 5 + 2 * h2))
            A('v_pk_add_f32 v[%d:%d], v[%d:%d], v[%d:%d]' % (a + 8 + 2 * h2, a + 9 + 2 * h2, a + 8 + 2 * h2, a + 9 + 2 * h2, a + 12 + 2 * h2, a + 13 + 2 * h2))
        for h2 in range(2):
            A('v_pk_add_f32 v[%d:%d], v[%d:%d], v[%d:%d]' % (a + 2 * h2, a + 2 * h2 + 1, a + 2 * h2, a + 2 * h2 + 1, a + 8 + 2 * h2, a + 9 + 2 * h2))
    A('s_waitcnt vmcnt(0)')
    A('v_mul_u32_u24 v%d, 160, v10' % t2)
    HP = 12
    for mt in range(2):
        for a in range(2):
            for h2 in range(2):
                src = RD + (a * 2 + mt) * 16 + 2 * h2; xr = XR + 4 * mt + 2 * a + h2; f = 20 + 4 * a + 2 * h2
                A('v_cvt_pk_bf16_f32 v28, v%d, v%d' % (src, src + 1))
                A('v_lshlrev_b32 v29, 16, v28'); A('v_and_b32 v28, 0xffff0000, v28')
                A('v_lshlrev_b32 v30, 16, v%d' % xr); A('v_and_b32 v31, 0xffff0000, v%d' % xr)
                A('v_add_f32 v29, v29, v30'); A('v_add_f32 v28, v28, v31')
                pk = HP + 4 * mt + 2 * a + h2
                A('v_cvt_pk_bf16_f32 v%d, v29, v28' % pk)
                A('v_lshlrev_b32 v%d, 16, v%d' % (f, pk)); A('v_and_b32 v%d, 0xffff0000, v%d' % (f + 1, pk))
        A('s_lshl_b32 s30, s17, 1'); A('s_add_u32 s30, s30, %d' % mt)
        A('s_mul_i32 s31, s30, 20'); A('s_add_u32 s31, s31, s29'); A('s_lshl_b32 s31, s31, 10'); A('s_add_u32 s31, s31, 0x%x' % HF)
        A('buffer_store_dwordx4 v[%d:%d], v%d, s[4:7], s31 offen %s' % (HP + 4 * mt, HP + 4 * mt + 3, vL16, stf))
        A('s_mul_i32 s30, s30, 2560'); A('s_lshl_b32 s31, s29, 3'); A('s_add_u32 s30, s30, s31'); A('s_add_u32 s30, s30, 0x%x' % ST1)
        stats_out(A, list(range(20, 28)), t2, 's30', 32 + 2 * mt, 33 + 2 * mt, 28, stf)

def gen_c2_kernel():
    A = Asm()
    common_entry(A, 'c2_kernel', 320)
    A('s_load_dwordx2 s[40:41], s[0:1], 0')
    A('s_waitcnt lgkmcnt(0)')
    srd(A, 4, 12, 13, WS_BYTES); srd(A, 8, 40, 41, 2048 * 1280)
    A('s_mul_i32 s17, s2, 0x3334'); A('s_lshr_b32 s17, s17, 16'); A('s_mul_i32 s18, s17, 5'); A('s_sub_u32 s18, s2, s18')
    gen_c2_task(A)
    A.label('Lc2_kernel_end')
    A('s_endpgm')
    return A, ('c2_kernel', (320, 1, 1), 256, 65536, 208, 64, 208)
```

```python
from dsl import *
from layout import *
from gen_prep import srd, f32bits, build, gen_prep, rnd_bf16
from gen_roles import *
from gen_attn import *
import math

def gelu_pair(A, a, b, t1, t2):
    for v, t in ((a, t1), (b, t2)):
        A('v_mul_f32 v%d, v%d, v%d' % (t, v, v))
        A('v_fma_f32 v%d, v%d, s51, v%d' % (t, t, 7))
        A('v_mul_f32 v%d, v%d, v%d' % (t, t, v))
        A('v_exp_f32 v%d, v%d' % (t, t))
    for v, t in ((a, t1), (b, t2)):
        A('v_add_f32 v%d, 1.0, v%d' % (t, t))
        A('v_rcp_f32 v%d, v%d' % (t, t))
    for v, t in ((a, t1), (b, t2)):
        A('v_mul_f32 v%d, v%d, v%d' % (v, v, t))

def gen_dtask(A, kind, ldf='', stf=''):
    KS = 48 if kind == 4 else 20
    NRT = 2 if kind == 4 else 4
    Asrc = {1: HF, 2: TF, 3: X1F, 4: U2F}[kind]
    Wsrc = {1: W1F, 2: W2F, 3: W3F, 4: W4F}[kind]
    ln = kind in (1, 3)
    vL16 = 1
    ACC = 8
    CS = 40
    ONE = 48
    XB = [52, 56, 60, 64, 68, 72, 76, 80]
    WD = 6
    WB = 84
    STR = 132
    MU, RHO = 172, 176
    EX = 188
    A('v_lshlrev_b32 v%d, 4, v0' % vL16)
    A('v_and_b32 v2, 15, v0'); A('v_lshrrev_b32 v3, 4, v0')
    A('s_mul_i32 s19, s17, %d' % NRT)
    A('s_lshl_b32 s29, s18, 2'); A('s_add_u32 s29, s29, s14')
    nfr = NRT * KS
    if kind != 2:
        A('s_mul_i32 s20, s19, %d' % (KS * 1024)); A('s_add_u32 s20, s20, 0x%x' % Asrc)
        A('s_mul_i32 s21, s14, %d' % (nfr // 4 * 1024)); A('s_add_u32 s20, s20, s21')
        for k in range(nfr // 4):
            A('s_add_u32 m0, s21, %d' % (1024 * k))
            A('buffer_load_dwordx4 v%d, s[4:7], s20 offen lds %s' % (vL16, ldf))
            if k < nfr // 4 - 1: A('s_add_u32 s20, s20, 1024')
    else:
        A('s_add_u32 s20, s19, s14'); A('s_lshl_b32 s20, s20, 4')
        A('s_mul_i32 s21, s14, 20480')
        for gi, dl in enumerate((-1, 1, -2, 2)):
            A('v_add_u32 v4, s20, v2'); A('v_add_u32 v4, %d, v4' % dl)
            A('v_ashrrev_i32 v5, 4, v4'); A('v_mul_i32_i24 v5, 20480, v5')
            A('v_and_b32 v4, 15, v4'); A('v_lshl_add_u32 v4, v3, 4, v4'); A('v_lshl_add_u32 v5, v4, 4, v5')
            for k5 in range(5):
                ks = gi * 5 + k5
                A('s_add_u32 m0, s21, %d' % (1024 * ks))
                A('s_movk_i32 s22, %d' % (1024 * ks))
                A('buffer_load_dwordx4 v5, s[8:11], s22 offen lds %s' % ldf)
    ndma = nfr // 4
    A('s_mul_i32 s23, s29, %d' % (2 * KS * 1024)); A('s_add_u32 s23, s23, 0x%x' % Wsrc); A('s_add_u32 s24, s23, %d' % (KS * 1024))
    def wld(ks):
        b = WB + (ks % WD) * 8
        out = ['buffer_load_dwordx4 v[%d:%d], v%d, s[4:7], s23 offen offset:%d' % (b, b + 3, vL16, 1024 * (ks % 4)),
               'buffer_load_dwordx4 v[%d:%d], v%d, s[4:7], s24 offen offset:%d' % (b + 4, b + 7, vL16, 1024 * (ks % 4))]
        if ks % 4 == 3: out += ['s_add_u32 s23, s23, 4096', 's_add_u32 s24, s24, 4096']
        return out
    nex = 0
    if kind in (1, 2, 3):
        STs = ST2 if kind == 3 else ST1
        A('v_mul_u32_u24 v4, 160, v2'); A('v_mul_u32_u24 v5, 40, v3'); A('v_add_u32 v4, v4, v5')
        A('s_mul_i32 s25, s19, 2560'); A('s_add_u32 s25, s25, 0x%x' % STs)
        for r in range(NRT):
            for k in range(5):
                A('buffer_load_dwordx2 v[%d:%d], v4, s[4:7], s25 offen offset:%d %s' % (STR + r * 10 + 2 * k, STR + r * 10 + 2 * k + 1, 8 * k, ldf))
            if r < NRT - 1: A('s_add_u32 s25, s25, 2560')
    if kind in (2, 4):
        srcs = (HF,) if kind == 2 else (HF, X1F)
        for si, src in enumerate(srcs):
            A('s_mul_i32 s25, s19, 20'); A('s_add_u32 s25, s25, s29'); A('s_lshl_b32 s25, s25, 10'); A('s_add_u32 s25, s25, 0x%x' % src)
            for r in range(NRT):
                e = EX + (si * NRT + r) * 4
                A('buffer_load_dwordx4 v[%d:%d], v%d, s[4:7], s25 offen %s' % (e, e + 3, vL16, ldf))
                if r < NRT - 1: A('s_add_u32 s25, s25, 20480')
    for ks in range(WD - 1):
        for x in wld(ks): A(x)
    if ln:
        for r in range(4): A('v_mov_b32 v%d, 0x3f803f80' % (ONE + r))
    A('s_waitcnt vmcnt(%d)' % (2 * (WD - 1)))
    A('s_barrier')
    if kind in (1, 2, 3):
        for r in range(NRT):
            b = STR + r * 10
            for k in range(1, 5):
                A('v_pk_add_f32 v[%d:%d], v[%d:%d], v[%d:%d]' % (b, b + 1, b, b + 1, b + 2 * k, b + 2 * k + 1))
            xlane(A, 'v_add_f32', b, 4); xlane(A, 'v_add_f32', b + 1, 4)
            mean, var, m1, s1 = b, b + 1, b + 2, b + 3
            A('v_mul_f32 v%d, 0x%08x, v%d' % (mean, f32bits(1 / 640), mean))
            A('v_mul_f32 v%d, 0x%08x, v%d' % (var, f32bits(1 / 640), var))
            A('v_fma_f32 v%d, -v%d, v%d, v%d' % (var, mean, mean, var))
            A('v_max_f32 v%d, 0, v%d' % (var, var))
            A('v_mov_b32 v%d, v%d' % (m1, mean)); rnd_bf16(A, m1)
            A('v_mov_b32 v%d, v%d' % (s1, var)); rnd_bf16(A, s1)
            A('v_add_f32 v%d, 0x%08x, v%d' % (s1, f32bits(1e-5), s1)); rnd_bf16(A, s1)
            A('v_sqrt_f32 v%d, v%d' % (s1, s1)); rnd_bf16(A, s1)
            A('v_rcp_f32 v%d, v%d' % (RHO + r, s1))
            if kind == 1:
                m2, s2 = b + 4, b + 5
                A('v_sub_f32 v%d, v%d, v%d' % (m2, mean, m1)); A('v_mul_f32 v%d, v%d, v%d' % (m2, m2, RHO + r)); rnd_bf16(A, m2)
                A('v_mul_f32 v%d, v%d, v%d' % (s2, var, RHO + r)); A('v_mul_f32 v%d, v%d, v%d' % (s2, s2, RHO + r)); rnd_bf16(A, s2)
                A('v_add_f32 v%d, 0x%08x, v%d' % (s2, f32bits(1e-5), s2)); rnd_bf16(A, s2)
                A('v_sqrt_f32 v%d, v%d' % (s2, s2)); rnd_bf16(A, s2)
                A('v_rcp_f32 v%d, v%d' % (s2, s2))
                A('v_fma_f32 v%d, v%d, v%d, v%d' % (MU + r, m2, s1, m1))
                A('v_mul_f32 v%d, v%d, v%d' % (RHO + r, RHO + r, s2))
            else:
                A('v_mov_b32 v%d, v%d' % (MU + r, m1))
    seq = [(ks, r) for ks in range(KS) for r in range(NRT)]
    NX = len(XB); LA = 5
    A('v_add_u32 v5, 65536, v%d' % vL16)
    def xrd(i):
        ks, r = seq[i]; b = XB[i % NX]; off = (r * KS + ks) * 1024
        if off < 65536: return 'ds_read_b128 v[%d:%d], v%d offset:%d' % (b, b + 3, vL16, off)
        return 'ds_read_b128 v[%d:%d], v5 offset:%d' % (b, b + 3, off - 65536)
    for i in range(LA): A(xrd(i))
    for i, (ks, r) in enumerate(seq):
        if r == 0:
            if ks + WD - 1 < KS:
                for x in wld(ks + WD - 1): A(x)
                A('s_waitcnt vmcnt(%d)' % (2 * (WD - 1)))
            else:
                A('s_waitcnt vmcnt(%d)' % (2 * (KS - 1 - ks)))
        if i + LA < len(seq):
            A(xrd(i + LA)); A('s_waitcnt lgkmcnt(%d)' % LA)
        else:
            A('s_waitcnt lgkmcnt(%d)' % (len(seq) - 1 - i))
        b = XB[i % NX]; wb = WB + (ks % WD) * 8
        for a in range(2):
            d = ACC + (r * 2 + a) * 4
            A('v_mfma_f32_16x16x32_bf16 v[%d:%d], v[%d:%d], v[%d:%d], %s' % (d, d + 3, wb + 4 * a, wb + 4 * a + 3, b, b + 3, '0' if ks == 0 else 'v[%d:%d]' % (d, d + 3)))
        if ln and r < 2:
            d = CS + 4 * r
            A('v_mfma_f32_16x16x32_bf16 v[%d:%d], v[%d:%d], v[%d:%d], %s' % (d, d + 3, wb + 4 * r, wb + 4 * r + 3, ONE, ONE + 3, '0' if ks == 0 else 'v[%d:%d]' % (d, d + 3)))
    c1 = -2 * math.log2(math.e) * 0.7978845608028654
    A('v_mov_b32 v7, 0x%08x' % f32bits(c1)); A('s_mov_b32 s51, 0x%08x' % f32bits(c1 * 0.044715))
    PK = 52
    t = [84, 85, 86, 87, 88, 89]
    def unpack(src, lo, hi):
        A('v_lshlrev_b32 v%d, 16, v%d' % (lo, src)); A('v_and_b32 v%d, 0xffff0000, v%d' % (hi, src))
    if kind == 2: A('v_mul_u32_u24 v6, 160, v2')
    if kind == 4:
        A('v_mul_u32_u24 v6, 1280, v2'); A('v_lshl_add_u32 v6, v3, 3, v6')
    for r in range(NRT):
        for j in range(4):
            d = ACC + r * 8 + 2 * j; pk = PK + 4 * r + j
            if ln:
                for e in range(2):
                    A('v_fma_f32 v%d, -v%d, v%d, v%d' % (d + e, MU + r, CS + 2 * j + e, d + e))
                    A('v_mul_f32 v%d, v%d, v%d' % (d + e, d + e, RHO + r))
                A('v_cvt_pk_bf16_f32 v%d, v%d, v%d' % (t[0], d, d + 1)); unpack(t[0], d, d + 1)
                gelu_pair(A, d, d + 1, t[0], t[1])
                A('v_cvt_pk_bf16_f32 v%d, v%d, v%d' % (pk, d, d + 1))
            elif kind == 2:
                A('v_cvt_pk_bf16_f32 v%d, v%d, v%d' % (t[0], d, d + 1)); unpack(t[0], d, d + 1)
                unpack(EX + 4 * r + j, t[0], t[1])
                A('v_sub_f32 v%d, v%d, v%d' % (t[0], t[0], MU + r)); A('v_sub_f32 v%d, v%d, v%d' % (t[1], t[1], MU + r))
                A('v_cvt_pk_bf16_f32 v%d, v%d, v%d' % (t[2], t[0], t[1])); unpack(t[2], t[0], t[1])
                A('v_mul_f32 v%d, v%d, v%d' % (t[0], t[0], RHO + r)); A('v_mul_f32 v%d, v%d, v%d' % (t[1], t[1], RHO + r))
                A('v_cvt_pk_bf16_f32 v%d, v%d, v%d' % (t[2], t[0], t[1])); unpack(t[2], t[0], t[1])
                A('v_add_f32 v%d, v%d, v%d' % (t[0], t[0], d)); A('v_add_f32 v%d, v%d, v%d' % (t[1], t[1], d + 1))
                A('v_cvt_pk_bf16_f32 v%d, v%d, v%d' % (pk, t[0], t[1])); unpack(pk, d, d + 1)
            else:
                A('v_cvt_pk_bf16_f32 v%d, v%d, v%d' % (t[0], d, d + 1)); unpack(t[0], d, d + 1)
                unpack(EX + 4 * (NRT + r) + j, t[0], t[1])
                A('v_add_f32 v%d, v%d, v%d' % (t[0], t[0], d)); A('v_add_f32 v%d, v%d, v%d' % (t[1], t[1], d + 1))
                A('v_cvt_pk_bf16_f32 v%d, v%d, v%d' % (t[2], t[0], t[1])); unpack(t[2], d, d + 1)
                unpack(EX + 4 * r + j, t[0], t[1])
                A('v_add_f32 v%d, v%d, v%d' % (t[0], t[0], d)); A('v_add_f32 v%d, v%d, v%d' % (t[1], t[1], d + 1))
                A('v_cvt_pk_bf16_f32 v%d, v%d, v%d' % (pk, t[0], t[1]))
        A('s_add_u32 s30, s19, %d' % r)
        if kind == 4:
            A('s_mul_i32 s31, s30, %d' % (16 * 1280)); A('s_lshl_b32 s32, s29, 6'); A('s_add_u32 s31, s31, s32')
            A('buffer_store_dwordx2 v[%d:%d], v6, s[8:11], s31 offen' % (PK + 4 * r, PK + 4 * r + 1))
            A('buffer_store_dwordx2 v[%d:%d], v6, s[8:11], s31 offen offset:32' % (PK + 4 * r + 2, PK + 4 * r + 3))
        else:
            dst, okS = {1: (TF, 20), 2: (X1F, 20), 3: (U2F, 48)}[kind]
            A('s_mul_i32 s31, s30, %d' % okS); A('s_add_u32 s31, s31, s29'); A('s_lshl_b32 s31, s31, 10'); A('s_add_u32 s31, s31, 0x%x' % dst)
            A('buffer_store_dwordx4 v[%d:%d], v%d, s[4:7], s31 offen %s' % (PK + 4 * r, PK + 4 * r + 3, vL16, stf))
            if kind == 2:
                A('s_mul_i32 s31, s30, 2560'); A('s_lshl_b32 s32, s29, 3'); A('s_add_u32 s31, s31, s32'); A('s_add_u32 s31, s31, 0x%x' % ST2)
                stats_out(A, list(range(ACC + r * 8, ACC + r * 8 + 8)), 6, 's31', 90 + 2 * r, 91 + 2 * r, 84, stf)

def gen_d_kernel(kind):
    name = 'd%d_kernel' % kind
    ncg = 12 if kind == 3 else 5
    nrb = 64 if kind == 4 else 32
    grid = ncg * nrb
    A = Asm()
    A.nuniq = 1000 * kind
    common_entry(A, name, grid)
    A('s_load_dwordx2 s[40:41], s[0:1], 96')
    A('s_waitcnt lgkmcnt(0)')
    srd(A, 4, 12, 13, WS_BYTES)
    if kind == 2:
        A('s_add_u32 s40, s12, 0x%x' % TF); A('s_addc_u32 s41, s13, 0')
    srd(A, 8, 40, 41, 2048 * 1280)
    A('s_mul_i32 s17, s2, 0x%x' % (0x1556 if ncg == 12 else 0x3334)); A('s_lshr_b32 s17, s17, 16')
    A('s_mul_i32 s18, s17, %d' % ncg); A('s_sub_u32 s18, s2, s18')
    gen_dtask(A, kind)
    A.label('L%s_end' % name)
    A('s_endpgm')
    return A, (name, (grid, 1, 1), 256, 98304 if kind == 4 else 81920, 224, 64, 224)
```

```python
from dsl import *
from layout import *
import struct
def f32bits(x): return struct.unpack('<I', struct.pack('<f', x))[0]

def srd(A, d, lo, hi, nbytes):
    A('s_mov_b32 s%d, s%d' % (d, lo)); A('s_and_b32 s%d, s%d, 0xffff' % (d + 1, hi))
    A('s_mov_b32 s%d, 0x%x' % (d + 2, nbytes)); A('s_mov_b32 s%d, 0x20000' % (d + 3))

def rnd_bf16(A, v, tmp=None):
    A('v_cvt_pk_bf16_f32 v%d, v%d, v%d' % (v, v, v))
    A('v_lshlrev_b32 v%d, 16, v%d' % (v, v))

N_LN, N_PK, N_INIT = 128, 170, 96
PREP_GRID = N_LN + N_PK + N_INIT + 2

def gen_prep():
    A = Asm()
    A.raw(kernel_header('prep_kernel'))
    A('s_cmp_ge_u32 s2, %d' % PREP_GRID); A('s_cbranch_scc1 Lprep_end')
    A('s_load_dwordx4 s[8:11], s[0:1], 0')
    A('s_load_dwordx8 s[16:23], s[0:1], 64')
    A('s_load_dwordx2 s[12:13], s[0:1], 112')
    A('v_lshrrev_b32 v1, 6, v0'); A('v_readfirstlane_b32 s14, v1')
    A('v_and_b32 v2, 63, v0')
    A('s_waitcnt lgkmcnt(0)')
    srd(A, 4, 12, 13, WS_BYTES)
    A('s_cmp_lt_u32 s2, %d' % N_LN); A('s_cbranch_scc1 Lprep_ln')
    A('s_cmp_lt_u32 s2, %d' % (N_LN + N_PK)); A('s_cbranch_scc1 Lprep_pk')
    A('s_cmp_lt_u32 s2, %d' % (N_LN + N_PK + N_INIT)); A('s_cbranch_scc1 Lprep_init')
    A('s_cmp_eq_u32 s2, %d' % (N_LN + N_PK + N_INIT)); A('s_cbranch_scc1 Lprep_mem')
    A('s_cmp_lg_u32 s14, 0'); A('s_cbranch_scc1 Lprep_end')
    A('s_mov_b64 exec, 1')
    A('v_mov_b32 v3, 0x%x' % (E2 + 0x100000)); A('v_mov_b32 v4, 0x%x' % (E2 + 0x102000))
    A('s_mov_b32 s24, -1'); A('s_mov_b32 s25, -1')
    A('s_mov_b32 s26, 0')
    A.label('Lprep_cal')
    for vr, sb in ((3, 24), (4, 25)):
        A('buffer_store_dword v2, v%d, s[4:7], 0 offen sc1' % vr)
        A('s_waitcnt vmcnt(0)')
        A('s_memtime s[28:29]')
        A('s_waitcnt lgkmcnt(0)')
        A('buffer_load_dword v5, v%d, s[4:7], 0 offen sc1' % vr)
        A('s_waitcnt vmcnt(0)')
        A('s_memtime s[30:31]')
        A('s_waitcnt lgkmcnt(0)')
        A('s_sub_u32 s27, s30, s28')
        A('s_min_u32 s%d, s%d, s27' % (sb, sb))
    A('s_add_u32 s26, s26, 1'); A('s_cmp_lt_u32 s26, 4'); A('s_cbranch_scc1 Lprep_cal')
    A('s_cmp_lt_u32 s25, s24'); A('s_cselect_b32 s26, 8192, 0')
    A('s_getreg_b32 s27, hwreg(HW_REG_XCC_ID)'); A('s_and_b32 s27, s27, 4'); A('s_lshl_b32 s27, s27, 11')
    A('s_xor_b32 s26, s26, s27')
    A('v_mov_b32 v5, s26'); A('v_mov_b32 v3, 0x%x' % CTL)
    A('buffer_store_dword v5, v3, s[4:7], 0 offen')
    A('s_branch Lprep_end')
    A.label('Lprep_mem')
    srd(A, 24, 10, 11, 10240)
    for k in range(5):
        A('v_add_u32 v3, %d, v0' % (256 * k))
        A('v_mul_u32_u24 v4, 0x199a, v3'); A('v_lshrrev_b32 v4, 20, v4')
        A('v_mul_u32_u24 v5, 160, v4'); A('v_sub_u32 v5, v3, v5')
        A('v_lshlrev_b32 v6, 3, v3')
        A('buffer_load_dwordx2 v[8:9], v6, s[24:27], 0 offen')
        A('v_lshrrev_b32 v6, 3, v5'); A('v_lshlrev_b32 v7, 9, v6')
        A('v_and_b32 v6, 3, v5'); A('v_lshl_add_u32 v7, v6, 7, v7')
        A('v_lshl_add_u32 v7, v4, 4, v7')
        A('v_bfe_u32 v6, v5, 2, 1'); A('v_lshl_add_u32 v7, v6, 3, v7')
        A('s_waitcnt vmcnt(0)')
        for G in range(4):
            A('s_mov_b32 s28, 0x%x' % (MEMF + G * 10240))
            A('buffer_store_dwordx2 v[8:9], v7, s[4:7], s28 offen')
    A('s_branch Lprep_end')
    A.label('Lprep_init')
    A('s_sub_u32 s24, s2, %d' % (N_LN + N_PK))
    A('s_lshl_b32 s25, s24, 14')
    A('s_add_u32 s26, s25, 0x%x' % E1)
    A('s_cmp_ge_u32 s24, 20'); A('s_cselect_b32 s27, 0x%x, 0' % ((MEMF + MEM_SLOT - 20 * 16384 - E1) & 0xffffffff)); A('s_add_u32 s26, s26, s27')
    A('s_cmp_ge_u32 s24, 28'); A('s_cselect_b32 s27, 0x%x, 0' % ((E2 - 28 * 16384 - (MEMF + MEM_SLOT - 20 * 16384)) & 0xffffffff)); A('s_add_u32 s26, s26, s27')
    A('v_mov_b32 v4, -1')
    A('s_cmp_ge_u32 s24, 92'); A('s_cselect_b32 s27, 0x%x, 0' % ((CTL + 0x1000 - 92 * 16384 - (E2 - 28 * 16384)) & 0xffffffff)); A('s_add_u32 s26, s26, s27')
    A('s_cselect_b32 s28, 0, -1' if False else 's_cmp_ge_u32 s24, 92'); A('s_cselect_b32 s28, 0, -1')
    A('v_mov_b32 v4, s28'); A('v_mov_b32 v5, s28'); A('v_mov_b32 v6, s28'); A('v_mov_b32 v7, s28')
    A('v_lshlrev_b32 v3, 4, v0')
    for k in range(4):
        A('buffer_store_dwordx4 v[4:7], v3, s[4:7], s26 offen')
        if k < 3: A('s_add_u32 s26, s26, 4096')
    A('s_branch Lprep_end')
    A.label('Lprep_pk')
    A('s_sub_u32 s24, s2, %d' % N_LN); A('s_lshl_b32 s24, s24, 2'); A('s_add_u32 s24, s24, s14')
    A('s_mov_b32 s26, s16'); A('s_mov_b32 s27, s17'); A('s_mov_b32 s28, 5'); A('s_mov_b32 s29, 1280'); A('s_mov_b32 s30, 20'); A('s_mov_b32 s31, 0x%x' % W1F)
    for lo, p, ncb, rb, KS, dst in ((100, 18, 5, 1280, 20, W2F), (200, 20, 12, 3072, 20, W3F), (440, 22, 5, 1280, 48, W4F)):
        L = A.uniq('Lpk')
        A('s_cmp_lt_u32 s24, %d' % lo); A('s_cbranch_scc1 Lprep_pk_go')
        A('s_mov_b32 s26, s%d' % p); A('s_mov_b32 s27, s%d' % (p + 1)); A('s_mov_b32 s28, %d' % ncb); A('s_mov_b32 s29, %d' % rb)
        A('s_mov_b32 s30, %d' % KS); A('s_mov_b32 s31, 0x%x' % dst); A('s_mov_b32 s25, %d' % lo)
    A.label('Lprep_pk_go')
    A('s_cmp_lt_u32 s24, 100'); A('s_cselect_b32 s25, 0, s25')
    A('s_sub_u32 s24, s24, s25')
    A('s_movk_i32 s32, 0x1556'); A('s_cmp_eq_u32 s28, 5'); A('s_cselect_b32 s32, 0x3334, s32')
    A('s_mul_i32 s33, s24, s32'); A('s_lshr_b32 s33, s33, 16')
    A('s_mul_i32 s34, s33, s28'); A('s_sub_u32 s34, s24, s34')
    A('s_mul_i32 s35, s33, s29'); A('s_lshl_b32 s35, s35, 5'); A('s_lshl_b32 s36, s34, 8'); A('s_add_u32 s35, s35, s36')
    A('s_add_u32 s26, s26, s35'); A('s_addc_u32 s27, s27, 0')
    A('v_lshrrev_b32 v3, 4, v2'); A('v_mul_lo_u32 v3, v3, s29'); A('v_and_b32 v4, 15, v2'); A('v_lshl_add_u32 v3, v4, 4, v3')
    A('s_lshl_b32 s37, s14, 13')
    A('s_lshl_b32 s38, s29, 2')
    for k in range(8):
        A('s_add_u32 m0, s37, %d' % (1024 * k))
        A('global_load_lds_dwordx4 v3, s[26:27]')
        if k < 7: A('v_add_u32 v3, s38, v3')
    A('v_lshrrev_b32 v5, 4, v2'); A('v_bfe_u32 v6, v2, 2, 2'); A('v_lshl_add_u32 v5, v5, 2, v6'); A('v_lshlrev_b32 v5, 8, v5')
    A('v_and_b32 v6, 3, v2'); A('v_lshl_add_u32 v5, v6, 3, v5'); A('v_add_u32 v5, s37, v5')
    A('s_lshl_b32 s35, s34, 3'); A('s_mul_i32 s35, s35, s30'); A('s_add_u32 s35, s35, s33'); A('s_lshl_b32 s35, s35, 10'); A('s_add_u32 s35, s35, s31')
    A('s_lshl_b32 s36, s30, 10')
    A('v_lshlrev_b32 v7, 4, v2')
    A('s_waitcnt vmcnt(0)')
    for nt in range(8):
        for a in range(2):
            A('ds_read_b64_tr_b16 v[%d:%d], v5 offset:%d' % (8 + 4 * nt + 2 * a, 9 + 4 * nt + 2 * a, a * 4096 + nt * 32))
    for nt in range(8):
        A('s_waitcnt lgkmcnt(%d)' % (14 - 2 * nt))
        A('buffer_store_dwordx4 v[%d:%d], v7, s[4:7], s35 offen' % (8 + 4 * nt, 11 + 4 * nt))
        if nt < 7: A('s_add_u32 s35, s35, s36')
    A('s_branch Lprep_end')
    A.label('Lprep_ln')
    srd(A, 24, 8, 9, 2048 * 1280)
    A('v_lshrrev_b32 v3, 4, v0')
    A('v_and_b32 v4, 15, v0')
    A('v_mul_u32_u24 v5, 1280, v3'); A('v_lshl_add_u32 v5, v4, 4, v5')
    A('s_mul_i32 s28, s2, %d' % (16 * 1280))
    X = 8
    F = 28
    for k in range(5):
        A('buffer_load_dwordx4 v[%d:%d], v5, s[24:27], s28 offen offset:%d' % (X + 4 * k, X + 4 * k + 3, 256 * k))
    A('v_lshrrev_b32 v6, 2, v4'); A('v_lshlrev_b32 v6, 10, v6')
    A('v_and_b32 v7, 1, v4'); A('v_lshl_add_u32 v6, v7, 9, v6')
    A('v_lshl_add_u32 v6, v3, 4, v6')
    A('v_bfe_u32 v7, v4, 1, 1'); A('v_lshl_add_u32 v6, v7, 3, v6')
    A('s_mul_i32 s29, s2, 20480'); A('s_add_u32 s29, s29, 0x%x' % XNF)
    A('s_waitcnt vmcnt(0)')
    for k in range(20):
        A('v_lshlrev_b32 v%d, 16, v%d' % (F + 2 * k, X + k))
        A('v_and_b32 v%d, 0xffff0000, v%d' % (F + 2 * k + 1, X + k))
    def rowsum(acc):
        for sh in (8, 4, 2, 1):
            A('v_add_f32_dpp v%d, v%d, v%d row_ror:%d row_mask:0xf bank_mask:0xf' % (acc, acc, acc, sh))
    A('v_pk_add_f32 v[68:69], v[%d:%d], v[%d:%d]' % (F, F + 1, F + 2, F + 3))
    for k in range(2, 20):
        A('v_pk_add_f32 v[68:69], v[68:69], v[%d:%d]' % (F + 2 * k, F + 2 * k + 1))
    A('v_add_f32 v68, v68, v69')
    rowsum(68)
    A('v_mul_f32 v68, 0x%08x, v68' % f32bits(1.0 / 640))
    A('v_mov_b32 v70, 0')
    for k in range(40):
        A('v_sub_f32 v71, v%d, v68' % (F + k))
        A('v_fmac_f32 v70, v71, v71')
    rowsum(70)
    A('v_mul_f32 v70, 0x%08x, v70' % f32bits(1.0 / 640))
    rnd_bf16(A, 68); rnd_bf16(A, 70)
    A('v_add_f32 v70, 0x%08x, v70' % f32bits(1e-5)); rnd_bf16(A, 70)
    A('v_sqrt_f32 v70, v70'); rnd_bf16(A, 70)
    A('v_rcp_f32 v70, v70')
    for k in range(20):
        A('v_sub_f32 v%d, v%d, v68' % (F + 2 * k, F + 2 * k))
        A('v_sub_f32 v%d, v%d, v68' % (F + 2 * k + 1, F + 2 * k + 1))
        A('v_cvt_pk_bf16_f32 v72, v%d, v%d' % (F + 2 * k, F + 2 * k + 1))
        A('v_lshlrev_b32 v73, 16, v72'); A('v_and_b32 v74, 0xffff0000, v72')
        A('v_mul_f32 v73, v73, v70'); A('v_mul_f32 v74, v74, v70')
        A('v_cvt_pk_bf16_f32 v%d, v73, v74' % (X + k))
    for k in range(5):
        A('buffer_store_dwordx2 v[%d:%d], v6, s[4:7], s29 offen' % (X + 4 * k, X + 4 * k + 1))
        A('buffer_store_dwordx2 v[%d:%d], v6, s[4:7], s29 offen offset:256' % (X + 4 * k + 2, X + 4 * k + 3))
        if k < 4: A('s_add_u32 s29, s29, 4096')
    A.label('Lprep_end')
    A('s_endpgm')
    return A, ('prep_kernel', (PREP_GRID, 1, 1), 256, 32768, 80, 48, 80)

def build(parts, path):
    hdr = ''
    seen = {}
    for A, (name, grid, block, lds, vg, sg, ac) in parts:
        hdr += '; @launch kernel=%s grid=(%d,%d,%d) block=(%d,1,1) lds=%d\n' % (name, grid[0], grid[1], grid[2], block, lds)
    out = hdr + '.amdgcn_target "amdgcn-amd-amdhsa--gfx950"\n.text\n'
    desc = '.section .rodata,"a"\n'
    for A, (name, grid, block, lds, vg, sg, ac) in parts:
        if name in seen: continue
        seen[name] = 1
        out += A.text()
        desc += kernel_desc(name, vg, sg, ac)
    open(path, 'w').write(out + desc)

if __name__ == '__main__':
    build([gen_prep()], 'prep.s')
```

```python
from dsl import *
from layout import *
import math, struct

def f32bits(x):
    return struct.unpack('<I', struct.pack('<f', x))[0]

NSTEP = 64
OPT = {}

def check_regs(A, regs, tmp):
    r = list(regs)
    A('v_max3_u32 v%d, v%d, v%d, v%d' % (tmp, r[0], r[1], r[2])); r = r[3:]
    while len(r) >= 2:
        A('v_max3_u32 v%d, v%d, v%d, v%d' % (tmp, tmp, r[0], r[1])); r = r[2:]
    if r: A('v_max_u32 v%d, v%d, v%d' % (tmp, tmp, r[0]))
    A('v_cmp_eq_u32 vcc, -1, v%d' % tmp)


def tight_poll(A, loads, keyregs, mask, tmp, tag):
    L = A.uniq('Lq_' + tag); D = A.uniq('Lqd_' + tag)
    if mask != '-1': A('s_mov_b64 exec, %s' % mask)
    A.label(L)
    A('s_waitcnt vmcnt(0)')
    check_regs(A, keyregs, tmp)
    A.lines.append('    s_cbranch_vccz %s' % D)
    A('s_mov_b64 exec, vcc')
    for ld in loads: A(ld)
    A('s_add_u32 s30, s30, 1')
    A('s_cmp_lt_u32 s30, s31')
    A('s_cbranch_scc1 %s' % L)
    A('s_waitcnt vmcnt(0)')
    A.lines.append(D + ':')
    A.hist = []
    A('s_mov_b64 exec, -1')

def interleave(A, main, fill):
    for i, m in enumerate(main):
        A(m)
        for f in fill.get(i, []): A(f)

class Retry:
    def __init__(self): self.items = []
    def add(self, label, back, cont, loads, regs, mask, tmp):
        self.items.append((label, back, cont, loads, regs, mask, tmp))
    def emit(self, A):
        for (label, back, cont, loads, regs, mask, tmp) in self.items:
            G = A.uniq('Lgive')
            A.label(label)
            A('s_mov_b64 exec, %s' % mask)
            check_regs(A, regs, tmp)
            A('s_cbranch_vccz %s' % G)
            A('s_add_u32 s30, s30, 1')
            A('s_cmp_ge_u32 s30, s31')
            A('s_cbranch_scc1 %s' % G)
            A('s_mov_b64 exec, vcc')
            for ld in loads: A(ld)
            A('s_mov_b64 exec, -1')
            A('s_branch %s' % back)
            A.label(G)
            A('s_mov_b64 exec, -1')
            A('s_branch %s' % cont)

def gen_rec(A, stamp=False):
    R = Retry()
    vT, vT2 = 1, 2
    vA_kx, vA_u0, vA_u1, vA_e2w, vA_e2r = 3, 4, 5, 6, 7
    MF = 8
    DQK = 28
    XR = 52
    vA_memw, vA_km, vA_zm0, vA_zm1, vA_zm2, vA_qw = 90, 91, 92, 93, 94, 95
    SEL0, SEL1 = 244, 248
    XA = 96
    MBS = 8
    vA_mb = 132
    XP = 104; KX = 110; UFr = 116
    vA_mem, vA_l16, vA_e1w, vA_e1r = 132, 133, 134, 135
    WQK = 136
    SEL2 = 240; SENT = 252
    E1R = 52; SD = 72; PX = 84; PXR = 52
    ZP = 28; DO = 32
    E2R = 52
    MEMS, QKP, OUTP, EXPL = 0, 20480, 20480 + 12288, 20480 + 12288 + 3072

    vN, vG = 28, 29
    t0, t1, t2, t3, t4, t5 = 30, 31, 32, 33, 34, 35
    A('v_and_b32 v%d, 15, v0' % vN)
    A('v_lshrrev_b32 v%d, 4, v0' % vG)
    A('s_lshr_b32 s18, s16, 2'); A('s_and_b32 s19, s16, 3')
    A('s_lshl_b32 s26, s15, 3'); A('s_add_u32 s26, s26, s18')
    A('s_mov_b32 s20, 0x00ff00ff'); A('s_mov_b32 s21, 0x00ff00ff')
    A('s_mov_b32 s22, 0xff00ff00'); A('s_mov_b32 s23, 0xff00ff00')
    A('s_and_b32 s18, s16, 1')
    A('s_mov_b32 s24, -1'); A('s_cmp_eq_u32 s18, 0'); A('s_cselect_b32 s25, 0xffff, 0')
    A('s_mov_b32 s30, 0'); A('s_mov_b32 s31, 0x80000')
    A('v_lshlrev_b32 v%d, 4, v0' % vA_l16)
    A('s_mul_i32 s27, s14, 30720')
    for k in range(3):
        A('v_add_u32 v%d, %d, v0' % (t0, 64 * k))
        A('v_mul_u32_u24 v%d, 0x2aab, v%d' % (t1, t0))
        A('v_lshrrev_b32 v%d, 16, v%d' % (t1, t1))
        A('v_mul_u32_u24 v%d, 6, v%d' % (t2, t1))
        A('v_sub_u32 v%d, v%d, v%d' % (t2, t0, t2))
        A('v_mul_u32_u24 v%d, 12288, v%d' % (t1, t1))
        A('v_lshl_add_u32 v%d, v%d, 4, v%d' % (36 + k, t2, t1))
    A('s_mul_i32 s28, s14, %d' % (160 * 12288))
    A('s_mul_i32 s29, s26, 384'); A('s_add_u32 s28, s28, s29')
    A('s_mul_i32 s29, s19, 96'); A('s_add_u32 s28, s28, s29')
    for mat in range(2):
        b = 8 + 2 * mat
        A('s_add_u32 s32, s%d, s28' % b); A('s_addc_u32 s33, s%d, 0' % (b + 1))
        for grp in range(5):
            for k in range(3):
                A('s_add_u32 m0, s27, %d' % (mat * 15360 + (grp * 3 + k) * 1024))
                A('global_load_lds_dwordx4 v%d, s[32:33]' % (36 + k))
            if grp < 4:
                A('s_add_u32 s32, s32, %d' % (32 * 12288)); A('s_addc_u32 s33, s33, 0')
    A('s_lshr_b32 s28, s16, 1'); A('s_mul_i32 s28, s28, 5'); A('s_mul_i32 s29, s18, 3'); A('s_add_u32 s28, s28, s29')
    A('s_sub_u32 s45, 2, s18'); A('s_add_u32 s45, s45, s28')
    A('s_lshl_b32 s29, s15, 3'); A('s_lshl_b32 s34, s14, 1'); A('s_add_u32 s29, s29, s34')
    def col_parts(vx, ct, cl, tmp):
        A('v_lshrrev_b32 v%d, 3, v%d' % (tmp, vx))
        A('v_add_u32 v%d, s28, v%d' % (tmp, tmp))
        A('v_min_u32 v%d, s45, v%d' % (tmp, tmp))
        A('v_lshrrev_b32 v%d, 2, v%d' % (ct, tmp))
        A('v_lshlrev_b32 v%d, 1, v%d' % (ct, ct))
        A('v_bfe_u32 v%d, v%d, 2, 1' % (cl, vx))
        A('v_add_u32 v%d, v%d, v%d' % (ct, ct, cl))
        A('v_and_b32 v%d, 3, v%d' % (tmp, tmp))
        A('v_and_b32 v%d, 3, v%d' % (cl, vx))
        A('v_lshl_add_u32 v%d, v%d, 2, v%d' % (cl, tmp, cl))
    def base_off(dst, ct, cl):
        A('v_lshlrev_b32 v%d, 10, v%d' % (dst, ct))
        A('v_lshl_add_u32 v%d, v%d, 4, v%d' % (dst, cl, dst))
    b0, b1 = 42, 43
    col_parts(vN, t1, t2, t3); base_off(b0, t1, t2)
    A('v_and_b32 v%d, 7, v%d' % (t0, vN)); A('v_add_u32 v%d, 16, v%d' % (t0, t0))
    col_parts(t0, t1, t2, t3); base_off(b1, t1, t2)
    A('s_mul_i32 s35, s29, 40960')
    for dst, b in ((vA_u0, b0), (vA_u1, b1)):
        A('v_lshl_add_u32 v%d, v%d, 8, v%d' % (dst, vG, b))
        A('v_add_u32 v%d, s35, v%d' % (dst, dst))
    A('v_lshrrev_b32 v%d, 3, v%d' % (t3, vN))
    A('v_mul_u32_u24 v%d, 40960, v%d' % (t4, t3))
    A('v_add_u32 v39, v%d, v%d' % (vA_u1, t4))
    A('v_add_u32 v40, 40960, v%d' % vA_u0)
    A('s_mul_i32 s34, s14, 5')
    for kk in range(20):
        A('s_add_u32 s35, s34, %d' % kk)
        A('s_cmp_ge_u32 s35, 20'); A('s_cselect_b32 s36, 20, 0'); A('s_sub_u32 s35, s35, s36')
        A('s_mul_i32 s35, s35, %d' % SEG_UF); A('s_add_u32 s35, s35, %d' % BF)
        for T, va in ((0, vA_u0), (1, 40), (2, 39)):
            r = T * 80 + kk * 4
            A('buffer_load_dwordx4 a[%d:%d], v%d, s[4:7], s35 offen' % (r, r + 3, va))
    A('s_mul_i32 s35, s14, 768'); A('s_add_u32 s35, s35, %d' % EXPL)
    A('v_lshlrev_b32 v%d, 4, v%d' % (vA_zm0, vN))
    A('v_lshl_add_u32 v%d, v%d, 2, v%d' % (vA_zm0, vG, vA_zm0))
    A('v_add_u32 v%d, s35, v%d' % (vA_zm0, vA_zm0))
    A('v_mul_u32_u24 v%d, 256, v%d' % (t1, t3))
    A('v_add3_u32 v%d, v%d, v%d, 256' % (vA_zm2, vA_zm0, t1) if False else 'v_add_u32 v%d, v%d, v%d' % (vA_zm2, vA_zm0, t1))
    A('v_add_u32 v%d, 256, v%d' % (vA_zm2, vA_zm2))
    A('s_lshl_b32 s35, s15, 5'); A('s_add_u32 s35, s35, s16'); A('s_lshl_b32 s35, s35, 12')
    A('v_add_u32 v%d, s35, v%d' % (vA_zm1, vA_l16))
    A('v_and_b32 v%d, 7, v%d' % (t0, vN))
    A('v_lshlrev_b32 v%d, 4, v%d' % (t1, t0))
    A('v_lshl_add_u32 v%d, v%d, 7, v%d' % (t2, vG, t1))
    A('s_mul_i32 s35, s14, %d' % (2560 - 768)); A('s_mul_i32 s36, s15, 10240'); A('s_add_u32 s35, s35, s36')
    A('s_sub_u32 s46, s35, %d' % OUTP)
    A('s_mul_i32 s35, s14, 768'); A('s_add_u32 s35, s35, %d' % OUTP)
    A('v_add_u32 v%d, s35, v%d' % (vA_e2w, t2))
    A('v_and_b32 v%d, 1, v%d' % (t3, vG))
    A('v_lshl_add_u32 v%d, v%d, 3, v%d' % (vA_e1w, t3, t1))
    A('v_lshrrev_b32 v%d, 1, v%d' % (t3, vG))
    A('v_lshl_add_u32 v%d, v%d, 7, v%d' % (vA_e1w, t3, vA_e1w))
    A('s_sub_u32 s35, s14, 1'); A('s_lshl_b32 s35, s35, 8')
    A('s_cmp_eq_u32 s14, 0'); A('s_cselect_b32 s35, 384, s35')
    A('s_cmp_eq_u32 s14, 3'); A('s_cselect_b32 s35, 0, s35')
    A('s_mul_i32 s36, s16, 640'); A('s_add_u32 s35, s35, s36')
    A('s_mul_i32 s36, s15, %d' % E1_G); A('s_add_u32 s35, s35, s36')
    A('v_add_u32 v%d, s35, v%d' % (vA_e1w, vA_e1w))
    A('v_lshrrev_b32 v%d, 3, v%d' % (t3, vN))
    A('v_lshl_add_u32 v%d, v%d, 2, v%d' % (t3, t3, vG))
    A('v_mul_u32_u24 v%d, 640, v%d' % (t3, t3))
    A('v_add_u32 v%d, v%d, v%d' % (vA_e1r, t3, t1))
    A('s_mul_i32 s35, s14, 5120'); A('s_add_u32 s35, s35, s36')
    A('v_add_u32 v%d, s35, v%d' % (vA_e1r, vA_e1r))
    A('s_sub_u32 s35, s14, 1'); A('s_and_b32 s35, s35, 1'); A('s_mul_i32 s35, s35, 384')
    A('s_mul_i32 s36, s26, 12'); A('s_add_u32 s35, s35, s36')
    A('s_mul_i32 s37, s19, 3'); A('s_add_u32 s35, s35, s37'); A('s_lshl_b32 s35, s35, 9')
    A('v_lshlrev_b32 v%d, 3, v0' % vA_kx)
    A('v_add_u32 v%d, s35, v%d' % (vA_kx, vA_kx))
    A('s_mov_b32 s36, %d' % (EXPL + 3072))
    A('v_lshlrev_b32 v%d, 3, v%d' % (vA_km, t0))
    A('v_lshl_add_u32 v%d, v%d, 6, v%d' % (vA_km, vG, vA_km))
    A('v_add_u32 v%d, s36, v%d' % (vA_km, vA_km))
    A('s_lshr_b32 s35, s16, 1'); A('s_lshl_b32 s35, s35, 14'); A('s_lshl_b32 s36, s18, 12'); A('s_add_u32 s35, s35, s36')
    A('s_add_u32 s35, s35, s44')
    A('v_add_u32 v%d, s35, v%d' % (vA_e2r, vA_l16))
    A('v_lshrrev_b32 v%d, 4, v0' % t1)
    A('v_add_u32 v%d, s28, v%d' % (t1, t1))
    A('v_min_u32 v%d, s45, v%d' % (t1, t1))
    A('v_lshlrev_b32 v%d, 7, v%d' % (vA_memw, t1))
    A('v_and_b32 v%d, 7, v0' % t2)
    A('v_lshl_add_u32 v%d, v%d, 4, v%d' % (vA_memw, t2, vA_memw))
    A('v_bfe_u32 v%d, v0, 3, 1' % t3)
    A('v_lshl_add_u32 v%d, v%d, 3, v%d' % (vA_memw, t3, vA_memw))
    A('s_mul_i32 s35, s15, 10240')
    A('v_add_u32 v%d, s35, v%d' % (vA_memw, vA_memw))
    for jj in range(4):
        for S, off in ((SEL0, 0), (SEL1, 8)):
            A('v_mov_b32 v%d, 0' % t1)
            A('v_cmp_eq_u32 vcc, %d, v%d' % (2 * jj + off, vN))
            A('v_mov_b32 v%d, 0x3f80' % t0)
            A('v_cndmask_b32 v%d, v%d, v%d, vcc' % (t1, t1, t0))
            A('v_cmp_eq_u32 vcc, %d, v%d' % (2 * jj + 1 + off, vN))
            A('v_mov_b32 v%d, 0x3f800000' % t0)
            A('v_cndmask_b32 v%d, v%d, v%d, vcc' % (t1, t1, t0))
            A('v_accvgpr_write_b32 a%d, v%d' % (S + jj, t1))
        A('v_mov_b32 v%d, 0' % t1)
        A('v_cmp_eq_u32 vcc, %d, v%d' % (4 * jj, vN))
        A('v_mov_b32 v%d, 0x3f80' % t0)
        A('v_cndmask_b32 v%d, v%d, v%d, vcc' % (t1, t1, t0))
        A('v_cmp_eq_u32 vcc, %d, v%d' % (4 * jj + 1, vN))
        A('v_mov_b32 v%d, 0x3f800000' % t0)
        A('v_cndmask_b32 v%d, v%d, v%d, vcc' % (t1, t1, t0))
        A('v_accvgpr_write_b32 a%d, v%d' % (SEL2 + jj, t1))
    for r in range(4): A('v_accvgpr_write_b32 a%d, -1' % (SENT + r))
    A('s_mov_b32 s38, 0'); A('s_mov_b32 s39, 0x00ff00ff')
    A('s_mov_b32 s40, 0x00ff00ff'); A('s_mov_b32 s41, 0')
    sc = (192 ** -0.5) * math.log2(math.e)
    A('s_mov_b32 s48, 0x%08x' % f32bits(sc))
    A('v_lshrrev_b32 v%d, 2, v%d' % (t1, vN))
    A('v_and_b32 v%d, 1, v%d' % (t2, vN))
    A('v_lshl_add_u32 v%d, v%d, 1, v%d' % (t1, t1, t2))
    A('v_lshl_add_u32 v%d, v%d, 4, v%d' % (t1, vG, t1))
    A('v_lshlrev_b32 v%d, 4, v%d' % (t1, t1))
    A('v_mov_b32 v%d, v%d' % (vA_mb, t1))
    for q in range(4):
        A('s_add_u32 s35, s14, %d' % q); A('s_and_b32 s35, s35, 3'); A('s_mul_i32 s%d, s35, 5120' % (MBS + q))
    A('v_lshrrev_b32 v%d, 2, v%d' % (t0, vN))
    A('v_lshl_add_u32 v%d, v%d, 2, v%d' % (t0, vG, t0))
    A('v_mul_u32_u24 v%d, 96, v%d' % (t0, t0))
    A('v_and_b32 v%d, 3, v%d' % (t1, vN))
    A('v_mul_u32_u24 v%d, 24, v%d' % (t1, t1))
    A('v_add3_u32 v%d, v%d, v%d, s27' % (t0, t0, t1))
    A('s_waitcnt vmcnt(60)')
    for mat in range(2):
        for t in range(3):
            for ks in range(5):
                r = WQK + (mat * 3 + t) * 20 + ks * 4
                for a in range(2):
                    A('ds_read_b64_tr_b16 v[%d:%d], v%d offset:%d' % (r + 2 * a, r + 2 * a + 1, t0, mat * 15360 + (32 * ks + 16 * a) * 96 + 8 * t))
            A('s_waitcnt lgkmcnt(0)')
    for r in range(20): A('v_mov_b32 v%d, 0' % (MF + r))
    A('s_waitcnt vmcnt(0)')
    A('s_barrier')
    A('s_mul_i32 s50, s14, 5120')
    A('v_add_u32 v0, s50, v%d' % vA_l16)
    A('s_mul_i32 s51, s14, 3072'); A('s_add_u32 s51, s51, %d' % QKP)
    A('v_add_u32 v%d, s51, v%d' % (vA_qw, vA_l16))
    A('s_mov_b32 s17, 0')
    A('s_mov_b32 s52, %d' % KF)
    for t in range(3):
        A('buffer_load_dwordx2 v[%d:%d], v%d, s[4:7], s52 offen offset:%d' % (KX + 2 * t, KX + 2 * t + 1, vA_kx, 512 * t))
    A('s_add_u32 s55, s46, %d' % MEMF)
    LOOP = A.uniq('Lstep')
    A.label(LOOP)
    FINE = OPT['fine'].split(',') if OPT.get('fine') else None
    def st(i):
        if stamp and (FINE is None or i == 0): A('s_memtime s[%d:%d]' % (64 + 2 * i, 65 + 2 * i))
    def fs(name):
        if stamp and FINE and name in FINE:
            i = 1 + FINE.index(name)
            A('s_memtime s[%d:%d]' % (64 + 2 * i, 65 + 2 * i))
    mloads = ['buffer_load_dwordx4 v[%d:%d], v%d, s[4:7], s55 offen offset:%d %s' % (MF + 4 * k, MF + 4 * k + 3, vA_e2w, 512 * k, OPT.get('lf', 'sc1').replace('_', ' ')) for k in range(5)]
    A('s_mov_b64 exec, s[20:21]')
    for ld in mloads: A(ld)
    A('s_mov_b64 exec, -1')
    A('s_and_b32 s53, s17, 3')
    A('s_add_u32 s54, s17, 2'); A('s_and_b32 s54, s54, 3')
    A('s_mul_i32 s56, s53, %d' % E1_SLOT); A('s_add_u32 s56, s56, %d' % E1)
    A('s_mul_i32 s57, s54, %d' % E1_SLOT); A('s_add_u32 s57, s57, %d' % E1)
    A('s_lshl_b32 s58, s53, 18'); A('s_add_u32 s58, s58, %d' % E2)
    A('s_lshl_b32 s59, s54, 18'); A('s_add_u32 s59, s59, %d' % E2)
    A('s_add_u32 s60, s17, 1'); A('s_and_b32 s60, s60, 3'); A('s_mul_i32 s60, s60, %d' % MEM_SLOT); A('s_add_u32 s60, s60, %d' % MEMF)
    A('s_add_u32 s61, s17, 3'); A('s_and_b32 s61, s61, 3'); A('s_mul_i32 s61, s61, %d' % MEM_SLOT); A('s_add_u32 s61, s61, %d' % MEMF)
    A('s_mul_i32 s62, s17, %d' % SEG_UF); A('s_add_u32 s62, s62, %d' % UF)
    A('s_add_u32 s63, s62, 40960')
    A('s_mul_i32 s35, s15, 768'); A('s_add_u32 s36, s35, s58'); A('s_add_u32 s37, s35, s59')
    A('s_lshl_b32 s42, s17, 19'); A('s_add_u32 s42, s42, %d' % EXP)
    A('s_add_u32 s52, s52, %d' % SEG_KF)
    A('v_add_u32 v%d, s%d, v%d' % (vT2, MBS, vA_mb))
    Lma, Lmr, Lmc = A.uniq('Lma'), A.uniq('Lmr'), A.uniq('Lmc')
    A.label(Lma)
    tight_poll(A, mloads, [MF + 4 * k + 3 for k in range(5)], 's[20:21]', vT, 'mem')
    st(0)
    if stamp: A('s_memrealtime s[80:81]')
    order = [(1, 0), (0, 0), (1, 1), (0, 1), (1, 2), (0, 2)]
    main = []
    for (mat, t) in order:
        tile = mat * 3 + t; d = DQK + 4 * tile
        for ks in range(5):
            wq = WQK + tile * 20 + ks * 4
            main.append('v_mfma_f32_16x16x32_bf16 v[%d:%d], v[%d:%d], v[%d:%d], %s' % (d, d + 3, wq, wq + 3, MF + 4 * ks, MF + 4 * ks + 3, '0' if ks == 0 else 'v[%d:%d]' % (d, d + 3)))
    NCHK = 8
    fill = {}
    for k in range(5):
        fill.setdefault(2 + k, []).append('ds_write_b128 v0, v[%d:%d] offset:%d' % (MF + 4 * k, MF + 4 * k + 3, 1024 * k))
    interleave(A, main[:NCHK], fill)
    A('v_cmp_u_f32 vcc, v%d, v%d' % (DQK + 12, DQK + 12))
    A.lines.append('    s_cbranch_vccnz %s' % Lmr)
    A.lines.append(Lmc + ':')
    R.add(Lmr, Lma, Lmc, mloads, range(MF, MF + 20), 's[20:21]', vT)
    def merge(t):
        return ['v_mov_b32_dpp v%d, v%d row_shr:8 row_mask:0xf bank_mask:0xc' % (DQK + 4 * t + r, DQK + 12 + 4 * t + r) for r in range(4)]
    def wr(t):
        return ['ds_write_b128 v%d, v[%d:%d] offset:%d' % (vA_qw, DQK + 4 * t, DQK + 4 * t + 3, 1024 * t)]
    DBv = 76
    OWN = 52
    def bm(kk, b):
        out = []
        for T in range(3):
            wb = T * 80 + kk * 4; d = DBv + 4 * T
            out.append('v_mfma_f32_16x16x32_bf16 v[%d:%d], v[%d:%d], a[%d:%d], %s' % (d, d + 3, b, b + 3, wb, wb + 3, '0' if kk == 0 else 'v[%d:%d]' % (d, d + 3)))
        return out
    own = []
    for kk in range(5): own += bm(kk, OWN + 4 * kk)
    RT = {0: [28, 40, 72, 44], 1: [32, 248 - 248 + 0, 0, 0]}
    fill = {}
    i = NCHK
    for tau, va in ((0, vA_u0), (1, vA_u1)):
        for hb in range(2):
            r = UFr + (tau * 2 + hb) * 4
            fill.setdefault(i, []).append('buffer_load_dwordx4 v[%d:%d], v%d, s[4:7], s%d offen %s' % (r, r + 3, va, 62 + hb, OPT.get('upf', ''))); i += 1
    for k in range(5):
        fill.setdefault(12 + k, []).append('ds_read_b128 v[%d:%d], v%d offset:%d' % (OWN + 4 * k, OWN + 3 + 4 * k, vT2, 1024 * k))
    m = merge(0)
    fill.setdefault(15, []).extend(m[:2]); fill.setdefault(16, []).extend(m[2:]); fill.setdefault(17, []).extend(wr(0))
    m = merge(1)
    fill.setdefault(20, []).append('s_nop 1'); fill.setdefault(21, []).append('s_nop 1')
    fill.setdefault(22, []).extend(['s_nop 0'] + m[:2]); fill.setdefault(23, []).extend(m[2:] + wr(1))
    fill.setdefault(27, []).extend(['s_waitcnt lgkmcnt(0)', 's_barrier'])
    for idx in range(NCHK, 28):
        A(main[idx])
        for f in fill.get(idx, []): A(f)
    st(1)
    e1loads = ['buffer_load_dwordx4 v[%d:%d], v%d, s[4:7], s56 offen offset:%d sc1' % (E1R + 4 * k, E1R + 4 * k + 3, vA_e1r, 128 * k) for k in range(5)]
    def red(t, regs):
        a, b, c_, d_ = regs
        out = []
        for h2 in range(2):
            out.append('v_pk_add_f32 v[%d:%d], v[%d:%d], v[%d:%d]' % (a + 2 * h2, a + 2 * h2 + 1, a + 2 * h2, a + 2 * h2 + 1, b + 2 * h2, b + 2 * h2 + 1))
            out.append('v_pk_add_f32 v[%d:%d], v[%d:%d], v[%d:%d]' % (c_ + 2 * h2, c_ + 2 * h2 + 1, c_ + 2 * h2, c_ + 2 * h2 + 1, d_ + 2 * h2, d_ + 2 * h2 + 1))
        for h2 in range(2):
            out.append('v_pk_add_f32 v[%d:%d], v[%d:%d], v[%d:%d]' % (a + 2 * h2, a + 2 * h2 + 1, a + 2 * h2, a + 2 * h2 + 1, c_ + 2 * h2, c_ + 2 * h2 + 1))
        out.append('v_cvt_pk_bf16_f32 v%d, v%d, v%d' % (XP + 2 * t, a, a + 1))
        out.append('v_cvt_pk_bf16_f32 v%d, v%d, v%d' % (XP + 2 * t + 1, a + 2, a + 3))
        return out
    def rd(t, regs):
        return ['ds_read_b128 v[%d:%d], v%d offset:%d' % (r, r + 3, vA_l16, QKP + (ws * 3 + t) * 1024) for ws, r in enumerate(regs)]
    R0 = [28, 40, 32, 44]
    R1 = [72, XA, XA + 4, OWN]
    R2 = [28, 40, 32, 44]
    MBB = [36, 48, XA, XA + 4]
    SS = 72
    Lr0, Lr3, Lb = A.uniq('Lr0'), A.uniq('Lr3'), A.uniq('Lb')
    def phaseB(role):
        r0 = rd(0, R0); r1 = rd(1, R1)
        fs('b0')
        A(r0[0]); A(r0[1]); A(main[28]); A(r0[2]); A(r0[3]); A(main[29])
        for x in r1[:3]: A(x)
        A(own[0]); A(own[1]); A(own[2]); A(r1[3])
        m = merge(2)
        A(m[0]); A(m[1]); A(m[2]); A(m[3])
        for x in wr(2): A(x)
        fs('b1')
        A(own[3])
        A('s_waitcnt lgkmcnt(5)' if not FINE else 's_waitcnt lgkmcnt(0)')
        fs('b2')
        for x in red(0, R0): A(x)
        A('s_waitcnt lgkmcnt(0)')
        fs('b3')
        A('s_barrier')
        fs('b4')
        for x in rd(2, R2): A(x)
        A('v_add_u32 v%d, s%d, v%d' % (vT2, MBS + 1, vA_mb))
        for x in red(1, R1): A(x)
        def smf(t):
            a = XP if role == 0 else KX
            return 'v_mfma_f32_16x16x16_bf16 v[%d:%d], v[%d:%d], v[%d:%d], %s' % (SS, SS + 3, a + 2 * t, a + 2 * t + 1, XP + 2 * t, XP + 2 * t + 1, '0' if t == 0 else 'v[%d:%d]' % (SS, SS + 3))
        if role != 3:
            A(smf(0)); A(smf(1))
        A(own[4])
        A('s_waitcnt lgkmcnt(0)')
        fs('b5')
        for x in red(2, R2): A(x)
        if role != 3:
            A(smf(2))
            A(own[5]); A(own[6])
            for k in range(3):
                A('ds_read_b128 v[%d:%d], v%d offset:%d' % (MBB[(5 + k) % 4], MBB[(5 + k) % 4] + 3, vT2, 1024 * k))
            A('v_cvt_pk_bf16_f32 v32, v%d, v%d' % (SS, SS + 1))
            A('v_cvt_pk_bf16_f32 v33, v%d, v%d' % (SS + 2, SS + 3))
            fs('b6')
            A('s_mov_b64 exec, %s' % ('s[38:39]' if role == 0 else 's[20:21]'))
            A('buffer_store_dwordx2 v[32:33], v%d, s[4:7], s56 offen' % vA_e1w)
            A('buffer_store_dwordx2 a[%d:%d], v%d, s[4:7], s57 offen' % (SENT, SENT + 1, vA_e1w))
            A('s_mov_b64 exec, -1')
            if role == 1:
                for t in range(3):
                    A('buffer_load_dwordx2 v[%d:%d], v%d, s[4:7], s52 offen offset:%d %s' % (KX + 2 * t, KX + 2 * t + 1, vA_kx, 512 * t, OPT.get('upf', '')))
        else:
            A(own[5]); A(own[6])
            A('s_mov_b64 exec, s[22:23]')
            for t in range(3):
                A('ds_write_b64 v%d, v[%d:%d] offset:%d' % (vA_km, XP + 2 * t, XP + 2 * t + 1, 256 * t))
            A('s_mov_b64 exec, -1')
            for k in range(3):
                A('ds_read_b128 v[%d:%d], v%d offset:%d' % (MBB[(5 + k) % 4], MBB[(5 + k) % 4] + 3, vT2, 1024 * k))
    A.lines.append('    s_cmp_eq_u32 s14, 0'); A.lines.append('    s_cbranch_scc1 %s' % Lr0)
    A.lines.append('    s_cmp_eq_u32 s14, 3'); A.lines.append('    s_cbranch_scc1 %s' % Lr3)
    h0 = list(A.hist)
    phaseB(1); A('s_branch %s' % Lb)
    A.lines.append(Lr0 + ':'); A.hist = list(h0)
    phaseB(0); A('s_branch %s' % Lb)
    A.lines.append(Lr3 + ':'); A.hist = list(h0)
    phaseB(3)
    A.label(Lb)
    st(2)
    for x in own[7:]: A(x)
    E1AT = int(OPT.get('e1at', 10))
    for kk in range(5, 20):
        nk = kk + 3
        if nk < 20:
            if nk % 5 == 0: A('v_add_u32 v%d, s%d, v%d' % (vT2, MBS + nk // 5, vA_mb))
            b = MBB[nk % 4]
            A('ds_read_b128 v[%d:%d], v%d offset:%d' % (b, b + 3, vT2, 1024 * (nk % 5)))
            A('s_waitcnt lgkmcnt(3)')
        else:
            A('s_waitcnt lgkmcnt(%d)' % (19 - kk))
        for T, x in enumerate(bm(kk, MBB[kk % 4])):
            A(x)
            j = (kk - E1AT) * 3 + T
            if 0 <= j < 5: A(e1loads[j])
    st(3)
    SD = 36; PX = 72
    Lea, Ler, Lec = A.uniq('Lea'), A.uniq('Ler'), A.uniq('Lec')
    A.lines.append(Lea + ':')
    tight_poll(A, e1loads, [E1R + 4 * k + 3 for k in range(5)], '-1', 48, 'e1')
    fs('d0')
    A('v_mfma_f32_16x16x32_bf16 v[%d:%d], a[%d:%d], v[%d:%d], 0' % (SD, SD + 3, SEL0, SEL0 + 3, E1R, E1R + 3))
    A('v_cvt_pk_bf16_f32 v%d, v%d, v%d' % (ZP, DBv, DBv + 1))
    A('v_mfma_f32_16x16x32_bf16 v[%d:%d], a[%d:%d], v[%d:%d], 0' % (SD + 4, SD + 7, SEL0, SEL0 + 3, E1R + 8, E1R + 11))
    A('v_cvt_pk_bf16_f32 v%d, v%d, v%d' % (ZP + 1, DBv + 4, DBv + 5))
    A('v_mfma_f32_16x16x32_bf16 v[%d:%d], a[%d:%d], v[%d:%d], 0' % (SD + 8, SD + 11, SEL2, SEL2 + 3, E1R + 16, E1R + 19))
    A('v_cvt_pk_bf16_f32 v%d, v%d, v%d' % (ZP + 2, DBv + 8, DBv + 9))
    A('v_mfma_f32_16x16x32_bf16 v[%d:%d], a[%d:%d], v[%d:%d], v[%d:%d]' % (SD, SD + 3, SEL1, SEL1 + 3, E1R + 4, E1R + 7, SD, SD + 3))
    A('ds_write_b32 v%d, v%d' % (vA_zm0, ZP))
    A('v_mfma_f32_16x16x32_bf16 v[%d:%d], a[%d:%d], v[%d:%d], v[%d:%d]' % (SD + 4, SD + 7, SEL1, SEL1 + 3, E1R + 12, E1R + 15, SD + 4, SD + 7))
    A('v_mov_b32_dpp v%d, v%d row_ror:8 row_mask:0xf bank_mask:0xf' % (ZP + 3, ZP + 2))
    A('ds_write_b32 v%d, v%d offset:384' % (vA_zm0, ZP + 1))
    A('ds_write_b32 v%d, v%d' % (vA_zm2, ZP + 2))
    A('v_add_f32 v48, v%d, v%d' % (SD + 8, SD))
    A('v_max3_f32 v%d, v%d, v%d, v%d' % (vT, SD + 8, SD + 9, SD))
    A('v_max3_f32 v%d, v%d, v%d, v%d' % (vT, vT, SD + 1, SD + 2))
    A('v_cmp_u_f32 vcc, v48, v%d' % (SD + 4))
    A('v_max3_f32 v%d, v%d, v%d, v%d' % (vT, vT, SD + 3, SD + 4))
    A('v_max3_f32 v%d, v%d, v%d, v%d' % (vT, vT, SD + 5, SD + 6))
    A.lines.append('    s_cbranch_vccnz %s' % Ler)
    A.lines.append(Lec + ':')
    R.add(Ler, Lea, Lec, e1loads, range(E1R, E1R + 20), '-1', 48)
    st(4)
    A('v_max_f32 v%d, v%d, v%d' % (vT, vT, SD + 7))
    for sw in ('v_permlane16_swap_b32', 'v_permlane32_swap_b32'):
        A('v_mov_b32 v%d, v%d' % (vT2, vT))
        A('%s v%d, v%d' % (sw, vT, vT2))
        A('v_max_f32 v%d, v%d, v%d' % (vT, vT, vT2))
    fs('d1')
    A('v_mul_f32 v48, s48, v%d' % vT)
    for k in range(10):
        A('v_fma_f32 v%d, v%d, s48, -v48' % (SD + k, SD + k))
        if k >= 1: A('v_exp_f32 v%d, v%d' % (SD + k - 1, SD + k - 1))
    A('v_exp_f32 v%d, v%d' % (SD + 9, SD + 9))
    fs('d2')
    A('v_pk_add_f32 v[48:49], v[%d:%d], v[%d:%d]' % (SD, SD + 1, SD + 2, SD + 3))
    A('v_pk_add_f32 v[50:51], v[%d:%d], v[%d:%d]' % (SD + 4, SD + 5, SD + 6, SD + 7))
    A('v_pk_add_f32 v[48:49], v[48:49], v[50:51]')
    A('v_pk_add_f32 v[48:49], v[48:49], v[%d:%d]' % (SD + 8, SD + 9))
    A('v_add_f32 v%d, v48, v49' % vT)
    for sw in ('v_permlane16_swap_b32', 'v_permlane32_swap_b32'):
        A('v_mov_b32 v%d, v%d' % (vT2, vT))
        A('%s v%d, v%d' % (sw, vT, vT2))
        A('v_add_f32 v%d, v%d, v%d' % (vT, vT, vT2))
    A('v_rcp_f32 v48, v%d' % vT)
    for k in range(5):
        A('v_pk_mul_f32 v[%d:%d], v[%d:%d], v[48:49] op_sel_hi:[1,0]' % (SD + 2 * k, SD + 2 * k + 1, SD + 2 * k, SD + 2 * k + 1))
    for k in range(4):
        A('v_cvt_pk_bf16_f32 v%d, v%d, v%d' % (PX + k, SD + 2 * k, SD + 2 * k + 1))
    A('v_cvt_pk_bf16_f32 v88, v%d, v%d' % (SD + 8, SD + 9))
    DO = 76
    fs('d3')
    for tau in range(2):
        d = DO + 4 * tau; u = UFr + (tau * 2) * 4
        A('v_mfma_f32_16x16x32_bf16 v[%d:%d], v[%d:%d], v[%d:%d], 0' % (d, d + 3, u, u + 3, PX, PX + 3))
        if tau == 0:
            A('v_mov_b32_dpp v89, v88 row_ror:8 row_mask:0xf bank_mask:0xf')
            A('v_mov_b32_dpp v%d, v%d row_ror:8 row_mask:0xf bank_mask:0xf' % (PXR, PX))
        else:
            A('v_mov_b32_dpp v%d, v%d row_ror:8 row_mask:0xf bank_mask:0xf' % (PXR + 1, PX + 1))
            A('v_mov_b32_dpp v%d, v%d row_ror:8 row_mask:0xf bank_mask:0xf' % (PXR + 2, PX + 2))
    for tau in range(2):
        d = DO + 4 * tau; z = ZP + 2 * tau
        A('v_mfma_f32_16x16x16_bf16 v[%d:%d], v[%d:%d], v[88:89], v[%d:%d]' % (d, d + 3, z, z + 1, d, d + 3))
        if tau == 0: A('v_mov_b32_dpp v%d, v%d row_ror:8 row_mask:0xf bank_mask:0xf' % (PXR + 3, PX + 3))
    for tau in range(2):
        d = DO + 4 * tau; u = UFr + (tau * 2 + 1) * 4
        A('v_mfma_f32_16x16x32_bf16 v[%d:%d], v[%d:%d], v[%d:%d], v[%d:%d]' % (d, d + 3, u, u + 3, PXR, PXR + 3, d, d + 3))
    A('s_mov_b64 exec, s[20:21]')
    A('ds_write_b128 v%d, v[%d:%d]' % (vA_e2w, DO, DO + 3))
    A('s_mov_b64 exec, s[40:41]')
    A('ds_write_b128 v%d, v[%d:%d] offset:512' % (vA_e2w, DO + 4, DO + 7))
    A('s_mov_b64 exec, -1')
    A('s_add_u32 s55, s60, s46')
    fs('d4')
    A('s_waitcnt lgkmcnt(0)')
    A('s_barrier')
    fs('d5')
    Lskip, Lw3b, Lhelp, Lpoll = A.uniq('Lskip'), A.uniq('Lw3b'), A.uniq('Lhelp'), A.uniq('Lpoll')
    e = E2R
    def sum4(e, o):
        for h2 in range(2):
            A('v_pk_add_f32 v[%d:%d], v[%d:%d], v[%d:%d]' % (o + 2 * h2, o + 2 * h2 + 1, e + 2 * h2, e + 2 * h2 + 1, e + 4 + 2 * h2, e + 5 + 2 * h2))
            A('v_pk_add_f32 v[%d:%d], v[%d:%d], v[%d:%d]' % (o + 4 + 2 * h2, o + 5 + 2 * h2, e + 8 + 2 * h2, e + 9 + 2 * h2, e + 12 + 2 * h2, e + 13 + 2 * h2))
        for h2 in range(2):
            A('v_pk_add_f32 v[%d:%d], v[%d:%d], v[%d:%d]' % (o + 2 * h2, o + 2 * h2 + 1, o + 2 * h2, o + 2 * h2 + 1, o + 4 + 2 * h2, o + 5 + 2 * h2))
    A('s_cmp_lg_u32 s14, 0'); A('s_cbranch_scc1 %s' % Lhelp)
    for k in range(4):
        A('ds_read_b128 v[%d:%d], v%d offset:%d' % (e + 4 * k, e + 4 * k + 3, vA_l16, OUTP + 768 * k))
    A('s_waitcnt lgkmcnt(0)')
    sum4(e, 36)
    fs('d6')
    A('s_mov_b64 exec, s[24:25]')
    A('buffer_store_dwordx4 v[36:39], v%d, s[4:7], s36 offen sc1' % vA_e2r)
    A('buffer_store_dwordx4 a[%d:%d], v%d, s[4:7], s37 offen sc1' % (SENT, SENT + 3, vA_e2r))
    A('buffer_store_dwordx2 a[%d:%d], v%d, s[4:7], s61 offen' % (SENT, SENT + 1, vA_memw))
    st(5)
    A('s_sleep %s' % OPT.get('sl0', 6))
    A('s_branch %s' % Lpoll)
    A.label(Lhelp)
    A('s_cmp_eq_u32 s14, 3'); A('s_cbranch_scc1 %s' % Lw3b)
    A('s_sleep %s' % OPT.get('sl1', 10))
    A('s_cmp_eq_u32 s14, 1'); A('s_cbranch_scc1 %s' % Lpoll)
    A('s_sleep %s' % OPT.get('sl2', 2))
    A.label(Lpoll)
    e2loads = ['buffer_load_dwordx4 v[%d:%d], v%d, s[4:7], s58 offen offset:%d sc1' % (E2R + 4 * k, E2R + 4 * k + 3, vA_e2r, 768 * k) for k in range(4)]
    A('s_mov_b64 exec, s[24:25]')
    for ld in e2loads: A(ld)
    L2a, L2r, L2c = A.uniq('L2a'), A.uniq('L2r'), A.uniq('L2c')
    A.label(L2a)
    tight_poll(A, e2loads, [E2R + 4 * k + 3 for k in range(4)], 's[24:25]', vT, 'e2')
    A('s_mov_b64 exec, s[24:25]')
    sum4(e, 44)
    A('v_add_f32 v%d, v44, v45' % vT)
    A('v_add_f32 v%d, v46, v47' % vT2)
    A('v_cvt_pk_bf16_f32 v44, v44, v45')
    A('v_cmp_u_f32 vcc, v%d, v%d' % (vT, vT2))
    A('v_cvt_pk_bf16_f32 v45, v46, v47')
    A.lines.append('    s_cbranch_vccnz %s' % L2r)
    A.lines.append(L2c + ':')
    R.add(L2r, L2a, L2c, e2loads, range(E2R, E2R + 16), 's[24:25]', vT)
    A('s_mov_b64 exec, s[24:25]')
    A('buffer_store_dwordx2 v[44:45], v%d, s[4:7], s60 offen' % vA_memw)
    st(6)
    A('s_mov_b64 exec, -1')
    A('s_branch %s' % Lskip)
    A.label(Lw3b)
    for k in range(4):
        A('ds_read_b128 v[%d:%d], v%d offset:%d' % (e + 4 * k, e + 4 * k + 3, vA_l16, EXPL + 1024 * k))
    A('s_waitcnt lgkmcnt(0)')
    if not OPT.get('noexp'):
        for k in range(4):
            A('buffer_store_dwordx4 v[%d:%d], v%d, s[4:7], s42 offen offset:%d sc1' % (e + 4 * k, e + 4 * k + 3, vA_zm1, 1024 * k))
    A('s_sleep %s' % OPT.get('sl3', 16))
    A.label(Lskip)
    st(7)
    if OPT.get('memsleep'): A('s_sleep %s' % OPT['memsleep'])
    if stamp:
        Ls = A.uniq('Lst')
        A('s_waitcnt lgkmcnt(0)')
        A('s_cmp_lg_u32 s17, 40'); A('s_cbranch_scc1 %s' % Ls)
        for i in range(9): A('s_mov_b32 s%d, s%d' % (84 + i, 64 + 2 * i))
        A.label(Ls)
        Ls2 = A.uniq('Lst')
        A('s_cmp_lg_u32 s17, 41'); A('s_cbranch_scc1 %s' % Ls2)
        for i in range(9): A('s_mov_b32 s%d, s%d' % (93 + i, 64 + 2 * i))
        A.label(Ls2)
    A('s_add_u32 s17, s17, 1')
    A('s_cmp_lt_u32 s17, %d' % NSTEP)
    A('s_cbranch_scc1 %s' % LOOP)
    if stamp:
        A('s_lshl_b32 s35, s15, 5'); A('s_add_u32 s35, s35, s16'); A('s_lshl_b32 s35, s35, 2'); A('s_add_u32 s35, s35, s14')
        A('s_lshl_b32 s35, s35, 7'); A('s_add_u32 s35, s35, 0xF000000')
        A('v_mov_b32 v40, s35')
        A('s_mov_b64 exec, 1')
        for stp in range(2):
            for i in range(9):
                A('v_mov_b32 v41, s%d' % (84 + 9 * stp + i))
                A('buffer_store_dword v41, v40, s[4:7], 0 offen offset:%d' % (64 * stp + 4 * i))
            A('v_mov_b32 v41, s30')
            A('buffer_store_dword v41, v40, s[4:7], 0 offen offset:%d' % (64 * stp + 36))
        A('s_mov_b64 exec, -1')
    return R

def gen_rec_kernel(stamp=False):
    A = Asm()
    A.raw(kernel_header('rec_kernel'))
    A('s_cmp_ge_u32 s2, 256'); A('s_cbranch_scc1 Lrec_end')
    A('s_load_dwordx4 s[8:11], s[0:1], 16')
    A('s_load_dwordx4 s[32:35], s[0:1], 104')
    A('s_getreg_b32 s15, hwreg(HW_REG_XCC_ID)')
    A('s_and_b32 s15, s15, 15')
    A('s_cmp_ge_u32 s15, 4'); A('s_cbranch_scc1 Lrec_end')
    A('v_lshrrev_b32 v1, 6, v0')
    A('v_readfirstlane_b32 s14, v1')
    A('v_and_b32 v0, 63, v0')
    A('s_waitcnt lgkmcnt(0)')
    A('s_mov_b32 s12, s32'); A('s_mov_b32 s13, s33')
    A('s_mov_b32 s4, s34'); A('s_and_b32 s5, s35, 0xffff'); A('s_mov_b32 s6, 0x%x' % WS_BYTES); A('s_mov_b32 s7, 0x20000')
    A('s_cmp_lg_u32 s14, 0'); A('s_cbranch_scc1 Lrec_w')
    A('s_lshl_b32 s16, s15, 2')
    A('v_mov_b32 v1, s16'); A('v_mov_b32 v2, 1')
    A('s_mov_b64 exec, 1')
    A('global_atomic_add v3, v1, v2, s[12:13] sc0')
    A('s_waitcnt vmcnt(0)')
    A('v_mov_b32 v1, 0')
    A('ds_write_b32 v1, v3')
    A('s_mov_b64 exec, -1')
    A('s_waitcnt lgkmcnt(0)')
    A.label('Lrec_w')
    A('s_barrier')
    A('v_mov_b32 v1, 0')
    A('ds_read_b32 v3, v1')
    A('s_waitcnt lgkmcnt(0)')
    A('v_readfirstlane_b32 s16, v3')
    A('s_barrier')
    A('s_cmp_ge_u32 s16, 32'); A('s_cbranch_scc1 Lrec_end')
    if 'par' in OPT:
        A('s_mov_b32 s44, %d' % (8192 * int(OPT.get('par', 0))))
    else:
        A('v_mov_b32 v1, 0x%x' % CTL)
        A('buffer_load_dword v1, v1, s[4:7], 0 offen')
        A('s_waitcnt vmcnt(0)')
        A('v_readfirstlane_b32 s44, v1')
        A('s_and_b32 s44, s44, 8192')
    R = gen_rec(A, stamp)
    A.label('Lrec_end')
    A('s_endpgm')
    A.hist = []
    for it in R.items: pass
    R2 = Retry(); R2.items = R.items
    for (label, back, cont, loads, regs, mask, tmp) in R.items:
        G = A.uniq('Lgive')
        A.label(label)
        A('s_nop 15')
        A('s_mov_b64 exec, %s' % mask)
        check_regs(A, regs, tmp + 0 if tmp != 1 else 89)
        A('s_cbranch_vccz %s' % G)
        A('s_add_u32 s30, s30, 1')
        A('s_cmp_ge_u32 s30, s31')
        A('s_cbranch_scc1 %s' % G)
        A('s_mov_b64 exec, vcc')
        for ld in loads: A(ld)
        A('s_mov_b64 exec, -1')
        A('s_branch %s' % back)
        A.label(G)
        A('s_mov_b64 exec, -1')
        A('s_branch %s' % cont)
    return A

if __name__ == '__main__':
    import sys
    name = 'rec.s'
    for a in sys.argv[1:]:
        if a.endswith('.s'): name = a
        else:
            k, _, v = a.partition('='); OPT[k] = v if _ else True
    A = gen_rec_kernel(stamp=not OPT.get('nostamp'))
    out = '; @launch kernel=rec_kernel grid=(256,1,1) block=(256,1,1) lds=131072\n'
    out += '.amdgcn_target "amdgcn-amd-amdhsa--gfx950"\n.text\n' + A.text()
    out += '.section .rodata,"a"\n' + kernel_desc('rec_kernel', 512, 102, 256)
    open(name, 'w').write(out)
```

```python
from dsl import *
from layout import *
from gen_prep import srd, f32bits, build, gen_prep

def load_w_proj(A, sW, tmpv=40):
    t0, t1, t2 = tmpv, tmpv + 1, tmpv + 2
    ad = tmpv + 3
    A('s_mul_i32 s27, s14, 30720')
    for k in range(3):
        A('v_add_u32 v%d, %d, v0' % (t0, 64 * k))
        A('v_mul_u32_u24 v%d, 0x2aab, v%d' % (t1, t0)); A('v_lshrrev_b32 v%d, 16, v%d' % (t1, t1))
        A('v_mul_u32_u24 v%d, 6, v%d' % (t2, t1)); A('v_sub_u32 v%d, v%d, v%d' % (t2, t0, t2))
        A('v_mul_u32_u24 v%d, 12288, v%d' % (t1, t1))
        A('v_lshl_add_u32 v%d, v%d, 4, v%d' % (ad + k, t2, t1))
    A('s_mul_i32 s28, s26, 384'); A('s_mul_i32 s29, s14, 96'); A('s_add_u32 s28, s28, s29')
    A('s_add_u32 s32, s%d, s28' % sW); A('s_addc_u32 s33, s%d, 0' % (sW + 1))
    A('v_lshrrev_b32 v%d, 4, v0' % t0); A('v_bfe_u32 v%d, v0, 2, 2' % t1)
    A('v_lshl_add_u32 v%d, v%d, 2, v%d' % (t0, t0, t1)); A('v_mul_u32_u24 v%d, 96, v%d' % (t0, t0))
    A('v_and_b32 v%d, 3, v0' % t1); A('v_mul_u32_u24 v%d, 24, v%d' % (t1, t1))
    A('v_add3_u32 v%d, v%d, v%d, s27' % (t0, t0, t1))
    def dma(buf):
        for grp in range(5):
            for k in range(3):
                A('s_add_u32 m0, s27, %d' % (buf * 15360 + (grp * 3 + k) * 1024))
                A('global_load_lds_dwordx4 v%d, s[32:33]' % (ad + k))
            A('s_add_u32 s32, s32, %d' % (32 * 12288)); A('s_addc_u32 s33, s33, 0')
    def trr(q, buf):
        for t in range(3):
            for ks in range(5):
                r = (t * 20 + q * 5 + ks) * 4
                for a in range(2):
                    A('ds_read_b64_tr_b16 a[%d:%d], v%d offset:%d' % (r + 2 * a, r + 2 * a + 1, t0, buf * 15360 + (32 * ks + 16 * a) * 96 + 8 * t))
            A('s_waitcnt lgkmcnt(0)')
    dma(0); dma(1)
    A('s_waitcnt vmcnt(15)'); trr(0, 0); dma(0)
    A('s_waitcnt vmcnt(15)'); trr(1, 1); dma(1)
    A('s_waitcnt vmcnt(15)'); trr(2, 0)
    A('s_waitcnt vmcnt(0)'); trr(3, 1)

def gen_prole(A, stf=''):
    load_w_proj(A, 8)
    A('s_barrier')
    vL16, vO = 1, 2
    XB = [8, 12, 16, 20]
    ACC = [24, 48]
    PK = 72
    A('v_lshlrev_b32 v%d, 4, v0' % vL16)
    A('v_lshlrev_b32 v%d, 3, v0' % vO)
    A('s_mul_i32 s20, s26, 12'); A('s_mul_i32 s21, s14, 3'); A('s_add_u32 s20, s20, s21'); A('s_lshl_b32 s20, s20, 9')
    A('s_add_u32 s19, s19, s20')
    A('s_mul_i32 s22, s14, 10240')
    def dma(sseg, slot_sgpr):
        A('s_mul_i32 s23, %s, 40960' % sseg); A('s_add_u32 s23, s23, s22')
        A('s_add_u32 s24, %s, s22' % slot_sgpr)
        for k in range(10):
            A('s_add_u32 m0, s24, %d' % (1024 * k))
            A('buffer_load_dwordx4 v%d, s[4:7], s23 offen lds' % vL16)
            if k < 9: A('s_add_u32 s23, s23, 1024')
    A('s_mov_b32 s34, 0'); A('s_mov_b32 s35, 40960'); A('s_mov_b32 s36, 81920')
    dma('s17', 's34')
    A('s_add_u32 s25, s17, 1'); dma('s25', 's35')
    LOOP, END = A.uniq('Lp_loop'), A.uniq('Lp_end')
    def epilogue(acc):
        out = []
        for mt in range(2):
            for t in range(3):
                d = acc + (mt * 3 + t) * 4; pk = PK + (mt * 3 + t) * 2
                out.append('v_cvt_pk_bf16_f32 v%d, v%d, v%d' % (pk, d, d + 1))
                out.append('v_cvt_pk_bf16_f32 v%d, v%d, v%d' % (pk + 1, d + 2, d + 3))
                out.append('buffer_store_dwordx2 v[%d:%d], v%d, s[4:7], s%d offen offset:%d %s' % (pk, pk + 1, vO, 37 + mt, 512 * t, stf))
        return out
    def body(par, first, wait=16):
        acc = ACC[par]; prev = ACC[1 - par]
        A('s_waitcnt vmcnt(%d)' % wait)
        A('s_barrier')
        A('s_add_u32 s25, s17, 2'); dma('s25', 's36')
        A('s_sub_u32 s25, s17, 1'); A('s_mul_i32 s37, s25, %d' % SEG_KF); A('s_add_u32 s37, s37, s19'); A('s_add_u32 s38, s37, %d' % (SEG_KF // 2))
        A('v_add_u32 v3, s34, v%d' % vL16)
        ep = [] if first else epilogue(prev)
        seq = [(ks, mt) for ks in range(20) for mt in range(2)]
        for i in range(3):
            ks, mt = seq[i]
            A('ds_read_b128 v[%d:%d], v3 offset:%d' % (XB[i % 4], XB[i % 4] + 3, (mt * 20 + ks) * 1024))
        for i, (ks, mt) in enumerate(seq):
            if i + 3 < 40:
                k2, m2 = seq[i + 3]; b = XB[(i + 3) % 4]
                A('ds_read_b128 v[%d:%d], v3 offset:%d' % (b, b + 3, (m2 * 20 + k2) * 1024))
                A('s_waitcnt lgkmcnt(3)')
            else:
                A('s_waitcnt lgkmcnt(%d)' % (39 - i))
            b = XB[i % 4]
            for t in range(3):
                d = acc + (mt * 3 + t) * 4; w = (t * 20 + ks) * 4
                A('v_mfma_f32_16x16x32_bf16 v[%d:%d], a[%d:%d], v[%d:%d], %s' % (d, d + 3, w, w + 3, b, b + 3, '0' if ks == 0 else 'v[%d:%d]' % (d, d + 3)))
            if i >= 4 and ep: A(ep.pop(0))
        assert not ep
        A('s_mov_b32 s25, s34'); A('s_mov_b32 s34, s35'); A('s_mov_b32 s35, s36'); A('s_mov_b32 s36, s25')
        A('s_add_u32 s17, s17, 1')
    E0, E1_ = A.uniq('Lp_e0'), A.uniq('Lp_e1')
    body(0, True, 10)
    A('s_cmp_ge_u32 s17, s18'); A('s_cbranch_scc1 %s' % E0)
    body(1, False, 10)
    A('s_cmp_ge_u32 s17, s18'); A('s_cbranch_scc1 %s' % E1_)
    A.label(LOOP)
    body(0, False)
    A('s_cmp_ge_u32 s17, s18'); A('s_cbranch_scc1 %s' % E0)
    body(1, False)
    A('s_cmp_lt_u32 s17, s18'); A('s_cbranch_scc1 %s' % LOOP)
    A('s_branch %s' % E1_)
    for lab, par in ((E0, 0), (E1_, 1)):
        A.label(lab)
        A('s_sub_u32 s25, s17, 1'); A('s_mul_i32 s37, s25, %d' % SEG_KF); A('s_add_u32 s37, s37, s19'); A('s_add_u32 s38, s37, %d' % (SEG_KF // 2))
        for x in epilogue(ACC[par]): A(x)
        A('s_branch %s' % END)
    A.label(END)
    A('s_waitcnt vmcnt(0)')

def load_w_u(A, sW, tmpv=40):
    t0, t1, t2 = tmpv, tmpv + 1, tmpv + 2
    ad = tmpv + 3
    A('s_mul_i32 s27, s14, 30720')
    for k in range(5):
        A('v_add_u32 v%d, %d, v0' % (t0, 64 * k))
        A('v_mul_u32_u24 v%d, 0xccd, v%d' % (t1, t0)); A('v_lshrrev_b32 v%d, 16, v%d' % (t1, t1))
        A('v_mul_u32_u24 v%d, 20, v%d' % (t2, t1)); A('v_sub_u32 v%d, v%d, v%d' % (t2, t0, t2))
        A('v_mul_u32_u24 v%d, 1280, v%d' % (t1, t1))
        A('v_lshl_add_u32 v%d, v%d, 4, v%d' % (ad + k, t2, t1))
    A('s_mul_i32 s28, s26, 245760'); A('s_mul_i32 s29, s14, 320'); A('s_add_u32 s28, s28, s29')
    A('s_add_u32 s32, s%d, s28' % sW); A('s_addc_u32 s33, s%d, 0' % (sW + 1))
    A('v_lshrrev_b32 v%d, 4, v0' % t0); A('v_mul_u32_u24 v%d, 12, v%d' % (t0, t0)); A('v_bfe_u32 v%d, v0, 2, 2' % t1)
    A('v_add_u32 v%d, v%d, v%d' % (t0, t0, t1)); A('v_mul_u32_u24 v%d, 320, v%d' % (t0, t0))
    A('v_and_b32 v%d, 3, v0' % t1); A('v_lshlrev_b32 v%d, 3, v%d' % (t1, t1))
    A('v_add3_u32 v%d, v%d, v%d, s27' % (t0, t0, t1))
    for ch in range(2):
        for grp in range(6):
            for k in range(5):
                A('s_add_u32 m0, s27, %d' % ((grp * 5 + k) * 1024))
                A('global_load_lds_dwordx4 v%d, s[32:33]' % (ad + k))
            A('s_add_u32 s32, s32, %d' % (16 * 1280)); A('s_addc_u32 s33, s33, 0')
        A('s_waitcnt vmcnt(0)')
        for nu in range(10):
            for kl in range(3):
                kap = ch * 3 + kl
                r = (nu * 6 + kap) * 4
                for a in range(2):
                    pl = 2 * kap + a; pp, t = pl // 3, pl % 3
                    A('ds_read_b64_tr_b16 a[%d:%d], v%d offset:%d' % (r + 2 * a, r + 2 * a + 1, t0, (48 * pp + 4 * t - 96 * ch) * 320 + 32 * nu))
            A('s_waitcnt lgkmcnt(0)')

def gen_urole_loop(A, mode, ldf='', stf=''):
    vL16, vA = 1, 2
    VB = [8, 56]
    DD = [104, 112, 120]
    PK = [128, 132, 136]
    A('v_lshlrev_b32 v%d, 4, v0' % vL16)
    if mode == 'U':
        A('v_lshlrev_b32 v%d, 3, v0' % vA)
        A('s_mul_i32 s20, s26, %d' % (12 * 512)); A('s_add_u32 s20, s20, 0x%x' % VF)
    else:
        A('v_and_b32 v3, 15, v0'); A('v_mul_u32_u24 v%d, 12288, v3' % vA)
        A('v_lshrrev_b32 v3, 4, v0'); A('v_mul_u32_u24 v3, 24, v3'); A('v_add_u32 v%d, v%d, v3' % (vA, vA))
        A('s_mul_i32 s20, s26, 384'); A('s_sub_u32 s20, s20, %d' % (64 * 32 * 12288))
    A('s_mul_i32 s21, s26, 40'); A('s_mul_i32 s22, s14, 10'); A('s_add_u32 s21, s21, s22'); A('s_lshl_b32 s21, s21, 10'); A('s_add_u32 s21, s21, 0x%x' % UF)
    def loads(sseg, vb):
        out = []
        if mode == 'U':
            out.append('s_mul_i32 s23, %s, %d' % (sseg, SEG_KF)); out.append('s_add_u32 s23, s23, s20')
            out.append('s_add_u32 s24, s23, 4096'); out.append('s_add_u32 s25, s23, %d' % (SEG_KF // 2)); out.append('s_add_u32 s28, s25, 4096')
            for mt in range(2):
                for pl in range(12):
                    so = (23, 24, 25, 28)[mt * 2 + pl // 8]
                    out.append('buffer_load_dwordx2 v[%d:%d], v%d, s[4:7], s%d offen offset:%d %s' % (vb + mt * 24 + 2 * pl, vb + mt * 24 + 2 * pl + 1, vA, so, 512 * (pl % 8), ldf))
        else:
            out.append('s_mul_i32 s23, %s, %d' % (sseg, 32 * 12288)); out.append('s_add_u32 s23, s23, s20')
            out.append('s_add_u32 s25, s23, %d' % (16 * 12288))
            for mt in range(2):
                for pl in range(12):
                    out.append('buffer_load_dwordx2 v[%d:%d], v%d, s[8:11], s%d offen offset:%d' % (vb + mt * 24 + 2 * pl, vb + mt * 24 + 2 * pl + 1, vA, (23, 25)[mt], 96 * (pl // 3) + 8 * (pl % 3)))
        return out
    for x in loads('s17', VB[0]): A(x)
    LOOP, END = A.uniq('Lu_loop'), A.uniq('Lu_end')
    NAFTER = [None]
    def body(par, first):
        vb = VB[par]
        A('s_waitcnt vmcnt(%d)' % (0 if first else NAFTER[0]))
        A('s_add_u32 s29, s17, 1')
        nl = loads('s29', VB[1 - par])
        A('s_mul_i32 s37, s17, %d' % SEG_UF); A('s_add_u32 s37, s37, s21'); A('s_add_u32 s38, s37, 4096'); A('s_add_u32 s39, s37, 8192')
        pend = []
        cnt = [0]
        def emit(x):
            A(x)
            if x.startswith('buffer_store'): cnt[0] += 1
            if x.startswith('buffer_load'): cnt[0] = 0
        for nu in range(10):
            d = DD[nu % 3]
            k = 0
            for kap in range(6):
                for mt in range(2):
                    w = (nu * 6 + kap) * 4; a = vb + mt * 24 + 4 * kap; dd = d + 4 * mt
                    A('v_mfma_f32_16x16x32_bf16 v[%d:%d], v[%d:%d], a[%d:%d], %s' % (dd, dd + 3, a, a + 3, w, w + 3, '0' if kap == 0 else 'v[%d:%d]' % (dd, dd + 3)))
                    k += 1
                    if k >= 6 and pend: emit(pend.pop(0))
                    elif nl: emit(nl.pop(0))
            while pend: emit(pend.pop(0))
            pk = PK[nu % 3]
            pend = ['v_cvt_pk_bf16_f32 v%d, v%d, v%d' % (pk + j, d + 2 * j, d + 2 * j + 1) for j in range(4)]
            pend.append('buffer_store_dwordx4 v[%d:%d], v%d, s[4:7], s%d offen offset:%d %s' % (pk, pk + 3, vL16, 37 + nu // 4, 1024 * (nu % 4), stf))
        assert not nl
        while pend: emit(pend.pop(0))
        NAFTER[0] = cnt[0]
        A('s_add_u32 s17, s17, 1')
    body(0, True)
    A('s_cmp_ge_u32 s17, s18'); A('s_cbranch_scc1 %s' % END)
    A.label(LOOP)
    body(1, False)
    A('s_cmp_ge_u32 s17, s18'); A('s_cbranch_scc1 %s' % END)
    body(0, False)
    A('s_cmp_lt_u32 s17, s18'); A('s_cbranch_scc1 %s' % LOOP)
    A.label(END)
    A('s_waitcnt vmcnt(0)')

def common_entry(A, name, grid):
    A.raw(kernel_header(name))
    A('s_cmp_ge_u32 s2, %d' % grid); A('s_cbranch_scc1 L%s_end' % name)
    A('s_load_dwordx2 s[12:13], s[0:1], 112')
    A('v_lshrrev_b32 v1, 6, v0'); A('v_readfirstlane_b32 s14, v1'); A('v_and_b32 v0, 63, v0')

def gen_kv_kernel():
    A = Asm()
    common_entry(A, 'kv_kernel', 256)
    A('s_load_dwordx4 s[8:11], s[0:1], 24')
    A('s_waitcnt lgkmcnt(0)')
    srd(A, 4, 12, 13, WS_BYTES)
    A('s_lshr_b32 s26, s2, 2'); A('s_and_b32 s26, s26, 31')
    A('s_and_b32 s17, s2, 3'); A('s_lshl_b32 s17, s17, 4'); A('s_add_u32 s18, s17, 16')
    A('s_mov_b32 s19, 0x%x' % KF)
    A('s_cmp_lt_u32 s2, 128'); A('s_cbranch_scc1 Lkv_go')
    A('s_mov_b32 s8, s10'); A('s_mov_b32 s9, s11'); A('s_mov_b32 s19, 0x%x' % VF)
    A.label('Lkv_go')
    gen_prole(A)
    A.label('Lkv_kernel_end')
    A('s_endpgm')
    return A, ('kv_kernel', (256, 1, 1), 256, 122880, 512, 64, 256)

def gen_u_kernel():
    A = Asm()
    common_entry(A, 'u_kernel', 256)
    A('s_load_dwordx4 s[40:43], s[0:1], 32')
    A('s_waitcnt lgkmcnt(0)')
    srd(A, 4, 12, 13, WS_BYTES)
    srd(A, 8, 40, 41, 640 * 12288)
    A('s_lshr_b32 s26, s2, 3')
    A('s_and_b32 s30, s2, 7')
    load_w_u(A, 42)
    A('s_mul_i32 s17, s30, 11'); A('s_add_u32 s18, s17, 11')
    A('s_cmp_lt_u32 s30, 4'); A('s_cbranch_scc1 Lu_U')
    A('s_mul_i32 s17, s30, 10'); A('s_add_u32 s17, s17, 4'); A('s_add_u32 s18, s17, 10')
    A('s_cmp_lt_u32 s30, 6'); A('s_cbranch_scc1 Lu_U')
    gen_urole_loop(A, 'B')
    A('s_branch Lu_kernel_end')
    A.label('Lu_U')
    gen_urole_loop(A, 'U')
    A.label('Lu_kernel_end')
    A('s_endpgm')
    return A, ('u_kernel', (256, 1, 1), 256, 122880, 512, 64, 256)

if __name__ == '__main__':
    build([gen_prep(), gen_kv_kernel(), gen_u_kernel()], 'stage1.s')
```

```python
XNF  = 0x0000000
KF   = 0x0400000
VF   = 0x1C00000
UF   = 0x3400000
BF   = 0x8400000
PFR  = 0x9D00000
PMF  = 0xA100000
HF   = 0xA200000
TF   = 0xA500000
X1F  = 0xA800000
U2F  = 0xAB00000
ST1  = 0xB100000
ST2  = 0xB180000
CTL  = 0xB200000
E1   = 0xB700000
MEMF = 0xB780000
E2   = 0xB800000
W1F  = 0xBA00000
W2F  = 0xBB00000
W3F  = 0xBC00000
W4F  = 0xBE00000
EXP  = 0xC000000
WS_BYTES = 0x10000000
E1_SLOT = 4 * 32 * 640
E1_G = 32 * 640
MEM_SLOT = 4 * 10240
SEG_KF = 2 * 32 * 12 * 512
SEG_UF = 32 * 40 * 1024
```

```python
import sys
from gen_mlp import *
import gen_rec4
def rec_part():
    gen_rec4.OPT.clear()
    A = gen_rec4.gen_rec_kernel(stamp=False)
    return A, ('rec_kernel', (256, 1, 1), 256, 131072, 512, 102, 256)
if __name__ == '__main__':
    parts = [gen_prep(), gen_kv_kernel(), gen_u_kernel(), rec_part(), gen_q_kernel(), gen_c2_kernel()] + [gen_d_kernel(k) for k in (1, 2, 3, 4)]
    build(parts, sys.argv[1] if len(sys.argv) > 1 else 'all1.s')
```

```python
from dsl import *
from layout import *
from gen_prep import srd, f32bits, build, gen_prep, rnd_bf16
from gen_roles import *
import math

def xlane(A, op, v, tmp):
    for sw in ('v_permlane16_swap_b32', 'v_permlane32_swap_b32'):
        A('v_mov_b32 v%d, v%d' % (tmp, v))
        A('%s v%d, v%d' % (sw, v, tmp))
        A('%s v%d, v%d, v%d' % (op, v, v, tmp))

def gen_qrole(A, ldf='', stf='', flag=False):
    load_w_proj(A, 8)
    A('s_barrier')
    vL16, vKX, vKM, vPM = 1, 2, 163, 164
    XB = [8, 12, 16, 20]
    ACC = 24
    QP = 48
    KX = 60
    KM = 72
    SP = 80
    RD = 104
    BX = 152
    T1, T2 = 6, 7
    SPL = 122880
    A('v_lshlrev_b32 v%d, 4, v0' % vL16)
    A('v_and_b32 v40, 15, v0'); A('v_lshrrev_b32 v41, 4, v0')
    A('s_mul_i32 s20, s26, 12'); A('s_mul_i32 s21, s14, 3'); A('s_add_u32 s20, s20, s21'); A('s_lshl_b32 s20, s20, 9')
    A('v_lshlrev_b32 v%d, 3, v0' % vKX); A('v_add_u32 v%d, s20, v%d' % (vKX, vKX))
    A('s_lshl_b32 s20, s26, 2'); A('s_add_u32 s20, s20, s14'); A('s_lshl_b32 s20, s20, 12'); A('s_add_u32 s20, s20, 3072')
    A('v_and_b32 v42, 7, v40'); A('v_lshlrev_b32 v%d, 3, v42' % vKM); A('v_lshl_add_u32 v%d, v41, 6, v%d' % (vKM, vKM)); A('v_add_u32 v%d, s20, v%d' % (vKM, vKM))
    A('s_lshr_b32 s20, s26, 2'); A('s_lshl_b32 s20, s20, 1'); A('s_add_u32 s20, s20, s14'); A('s_lshl_b32 s20, s20, 10')
    A('s_and_b32 s21, s26, 3'); A('s_lshl_b32 s21, s21, 8'); A('s_add_u32 s20, s20, s21')
    A('v_lshlrev_b32 v%d, 4, v40' % vPM); A('v_lshl_add_u32 v%d, v41, 3, v%d' % (vPM, vPM)); A('v_add_u32 v%d, s20, v%d' % (vPM, vPM))
    A('v_mov_b32 v43, 0xf149f2ca')
    A('s_cmp_eq_u32 s14, 0'); A('s_cselect_b64 s[40:41], -1, 0')
    for r in range(4):
        A('v_lshl_add_u32 v42, v41, 2, %d' % r)
        A('v_cmp_gt_u32 vcc, v42, v40')
        A('v_cndmask_b32 v44, 0, v43, vcc')
        A('v_cndmask_b32 v%d, 0, v44, s[40:41]' % (BX + r))
        A('v_cndmask_b32 v%d, v44, v43, s[40:41]' % (BX + 4 + r))
    A('v_cmp_lt_u32 vcc, 1, v41'); A('v_cndmask_b32 v%d, 0, v43, vcc' % (BX + 8))
    A('s_mul_i32 s22, s14, 10240')
    A('s_mul_i32 s42, s14, 6144'); A('s_add_u32 s42, s42, %d' % SPL)
    A('s_mul_i32 s43, s14, 3072'); A('s_add_u32 s43, s43, %d' % SPL)
    A('s_lshl_b32 s44, s26, 1'); A('s_add_u32 s44, s44, s14'); A('s_lshl_b32 s44, s44, 10'); A('s_add_u32 s44, s44, 0x%x' % PFR)
    A('s_mov_b32 s45, 0x%08x' % f32bits(192 ** -0.5)); A('s_mov_b32 s50, 0x%08x' % f32bits(math.log2(math.e)))
    A('s_mov_b32 s48, -1'); A('s_mov_b32 s49, 0')
    if flag:
        A('s_lshl_b32 s20, s26, 2'); A('s_add_u32 s20, s20, s14'); A('s_lshl_b32 s20, s20, 2'); A('s_add_u32 s20, s20, 0x%x' % PROG_R)
        A('v_mov_b32 v161, s20')
    def dma(sseg, slot_sgpr):
        A('s_mul_i32 s23, %s, 40960' % sseg); A('s_add_u32 s23, s23, s22')
        A('s_add_u32 s24, %s, s22' % slot_sgpr)
        for k in range(10):
            A('s_add_u32 m0, s24, %d' % (1024 * k))
            A('buffer_load_dwordx4 v%d, s[4:7], s23 offen lds' % vL16)
            if k < 9: A('s_add_u32 s23, s23, 1024')
    A('s_mov_b32 s34, 0'); A('s_mov_b32 s35, 40960'); A('s_mov_b32 s36, 81920')
    dma('s17', 's34')
    A('s_add_u32 s25, s17, 1'); dma('s25', 's35')
    A('s_waitcnt vmcnt(10)')
    LOOP, SKIP = A.uniq('Lq_loop'), A.uniq('Lq_skip')
    A.label(LOOP)
    A('s_barrier')
    A('s_mul_i32 s37, s17, %d' % SEG_KF); A('s_add_u32 s37, s37, 0x%x' % KF); A('s_add_u32 s38, s37, %d' % (SEG_KF // 2))
    A('s_lshl_b32 s39, s17, 19'); A('s_add_u32 s39, s39, 0x%x' % EXP)
    def kloads():
        for a in range(2):
            for t in range(3):
                r = KX + (a * 3 + t) * 2
                A('buffer_load_dwordx2 v[%d:%d], v%d, s[4:7], s%d offen offset:%d %s' % (r, r + 1, vKX, 37 + a, 512 * t, ldf))
        for t in range(3):
            A('buffer_load_dwordx2 v[%d:%d], v%d, s[4:7], s39 offen offset:%d %s' % (KM + 2 * t, KM + 2 * t + 1, vKM, 256 * t, ldf))
    if not flag: kloads()
    else: signal(A, 's17', 0)
    A('s_add_u32 s25, s17, 2'); dma('s25', 's36')
    A('v_add_u32 v3, s34, v%d' % vL16)
    seq = [(ks, mt) for ks in range(20) for mt in range(2)]
    for i in range(3):
        ks, mt = seq[i]
        A('ds_read_b128 v[%d:%d], v3 offset:%d' % (XB[i % 4], XB[i % 4] + 3, (mt * 20 + ks) * 1024))
    for i, (ks, mt) in enumerate(seq):
        if i + 3 < 40:
            k2, m2 = seq[i + 3]; b = XB[(i + 3) % 4]
            A('ds_read_b128 v[%d:%d], v3 offset:%d' % (b, b + 3, (m2 * 20 + k2) * 1024))
            A('s_waitcnt lgkmcnt(3)')
        else:
            A('s_waitcnt lgkmcnt(%d)' % (39 - i))
        b = XB[i % 4]
        for t in range(3):
            d = ACC + (mt * 3 + t) * 4; w = (t * 20 + ks) * 4
            A('v_mfma_f32_16x16x32_bf16 v[%d:%d], a[%d:%d], v[%d:%d], %s' % (d, d + 3, w, w + 3, b, b + 3, '0' if ks == 0 else 'v[%d:%d]' % (d, d + 3)))
    for j in range(6):
        A('v_cvt_pk_bf16_f32 v%d, v%d, v%d' % (QP + 2 * j, ACC + 4 * j, ACC + 4 * j + 1))
        A('v_cvt_pk_bf16_f32 v%d, v%d, v%d' % (QP + 2 * j + 1, ACC + 4 * j + 2, ACC + 4 * j + 3))
    if flag:
        A('s_add_u32 s41, s17, 1')
        wait_prog(A, 161, 162, 's41')
        kloads()
        A('s_waitcnt vmcnt(0)')
    else:
        A('s_waitcnt vmcnt(10)')
    for t in range(3):
        for mt in range(2):
            for kt in range(3):
                d = SP + (mt * 3 + kt) * 4
                a = (KX + (kt * 3 + t) * 2) if kt < 2 else (KM + 2 * t)
                q = QP + (mt * 3 + t) * 2
                A('v_mfma_f32_16x16x16_bf16 v[%d:%d], v[%d:%d], v[%d:%d], %s' % (d, d + 3, a, a + 1, q, q + 1, '0' if t == 0 else 'v[%d:%d]' % (d, d + 3)))
    A('v_add_u32 v3, s42, v%d' % vL16)
    for j in range(6):
        A('ds_write_b128 v3, v[%d:%d] offset:%d' % (SP + 4 * j, SP + 4 * j + 3, 1024 * j))
    A('s_waitcnt lgkmcnt(0)')
    A('s_barrier')
    A('s_cmp_ge_u32 s14, 2'); A('s_cbranch_scc1 %s' % SKIP)
    A('v_add_u32 v3, s43, v%d' % vL16)
    for kt in range(3):
        for ws in range(4):
            r = RD + (kt * 4 + ws) * 4
            A('ds_read_b128 v[%d:%d], v3 offset:%d' % (r, r + 3, ws * 6144 + kt * 1024))
    S = SP
    for kt in range(3):
        A('s_waitcnt lgkmcnt(%d)' % (8 - 4 * kt))
        a = RD + kt * 16
        for h2 in range(2):
            A('v_pk_add_f32 v[%d:%d], v[%d:%d], v[%d:%d]' % (a + 2 * h2, a + 2 * h2 + 1, a + 2 * h2, a + 2 * h2 + 1, a + 4 + 2 * h2, a + 5 + 2 * h2))
            A('v_pk_add_f32 v[%d:%d], v[%d:%d], v[%d:%d]' % (a + 8 + 2 * h2, a + 9 + 2 * h2, a + 8 + 2 * h2, a + 9 + 2 * h2, a + 12 + 2 * h2, a + 13 + 2 * h2))
        for h2 in range(2):
            A('v_pk_add_f32 v[%d:%d], v[%d:%d], v[%d:%d]' % (a + 2 * h2, a + 2 * h2 + 1, a + 2 * h2, a + 2 * h2 + 1, a + 8 + 2 * h2, a + 9 + 2 * h2))
        for h2 in range(2):
            A('v_cvt_pk_bf16_f32 v%d, v%d, v%d' % (T1, a + 2 * h2, a + 2 * h2 + 1))
            A('v_lshlrev_b32 v%d, 16, v%d' % (T2, T1)); A('v_and_b32 v%d, 0xffff0000, v%d' % (T1, T1))
            A('v_mul_f32 v%d, s45, v%d' % (T2, T2)); A('v_mul_f32 v%d, s45, v%d' % (T1, T1))
            A('v_cvt_pk_bf16_f32 v%d, v%d, v%d' % (T1, T2, T1))
            A('v_lshlrev_b32 v%d, 16, v%d' % (T2, T1)); A('v_and_b32 v%d, 0xffff0000, v%d' % (T1, T1))
            b0 = (BX + 4 * kt + 2 * h2) if kt < 2 else BX + 8
            b1 = (BX + 4 * kt + 2 * h2 + 1) if kt < 2 else BX + 8
            A('v_add_f32 v%d, v%d, v%d' % (S + 4 * kt + 2 * h2, T2, b0))
            A('v_add_f32 v%d, v%d, v%d' % (S + 4 * kt + 2 * h2 + 1, T1, b1))
    A('v_max3_f32 v%d, v%d, v%d, v%d' % (T1, S, S + 1, S + 2))
    for k in range(3, 11, 2): A('v_max3_f32 v%d, v%d, v%d, v%d' % (T1, T1, S + k, S + k + 1))
    A('v_max_f32 v%d, v%d, v%d' % (T1, T1, S + 11))
    xlane(A, 'v_max_f32', T1, T2)
    for k in range(12):
        A('v_sub_f32 v%d, v%d, v%d' % (S + k, S + k, T1))
        A('v_mul_f32 v%d, s50, v%d' % (S + k, S + k))
        A('v_exp_f32 v%d, v%d' % (S + k, S + k))
    A('v_add_f32 v%d, v%d, v%d' % (T1, S, S + 1))
    for k in range(2, 12): A('v_add_f32 v%d, v%d, v%d' % (T1, T1, S + k))
    xlane(A, 'v_add_f32', T1, T2)
    A('v_rcp_f32 v%d, v%d' % (T1, T1))
    for k in range(12): A('v_mul_f32 v%d, v%d, v%d' % (S + k, S + k, T1))
    for k in range(6): A('v_cvt_pk_bf16_f32 v%d, v%d, v%d' % (RD + k, S + 2 * k, S + 2 * k + 1))
    A('s_lshl_b32 s37, s17, 16'); A('s_add_u32 s37, s37, s44')
    A('s_lshl_b32 s38, s17, 14'); A('s_add_u32 s38, s38, 0x%x' % PMF)
    A('buffer_store_dwordx4 v[%d:%d], v%d, s[4:7], s37 offen %s' % (RD, RD + 3, vL16, stf))
    A('s_mov_b64 exec, s[48:49]')
    A('buffer_store_dwordx2 v[%d:%d], v%d, s[4:7], s38 offen %s' % (RD + 4, RD + 5, vPM, stf))
    A('s_mov_b64 exec, -1')
    if flag: A('s_waitcnt vmcnt(0)')
    A.label(SKIP)
    A('s_mov_b32 s25, s34'); A('s_mov_b32 s34, s35'); A('s_mov_b32 s35, s36'); A('s_mov_b32 s36, s25')
    A('s_add_u32 s17, s17, 1')
    A('s_cmp_lt_u32 s17, s18'); A('s_cbranch_scc1 %s' % LOOP)
    A('s_waitcnt vmcnt(0)')
    if flag:
        A('s_barrier')
        signal(A, 's17', 0)

def gen_q_kernel():
    A = Asm()
    common_entry(A, 'q_kernel', 256)
    A('s_load_dwordx2 s[8:9], s[0:1], 16')
    A('s_waitcnt lgkmcnt(0)')
    srd(A, 4, 12, 13, WS_BYTES)
    A('s_lshr_b32 s26, s2, 3')
    A('s_and_b32 s17, s2, 7'); A('s_lshl_b32 s17, s17, 3'); A('s_add_u32 s18, s17, 8')
    gen_qrole(A)
    A.label('Lq_kernel_end')
    A('s_endpgm')
    return A, ('q_kernel', (256, 1, 1), 256, 147456, 512, 64, 256)

def stats_out(A, vals, vaddr, soff, t1, t2, tmp, stf=''):
    A('v_add_f32 v%d, v%d, v%d' % (t1, vals[0], vals[1]))
    A('v_mul_f32 v%d, v%d, v%d' % (t2, vals[0], vals[0]))
    A('v_fmac_f32 v%d, v%d, v%d' % (t2, vals[1], vals[1]))
    for v in vals[2:]:
        A('v_add_f32 v%d, v%d, v%d' % (t1, t1, v))
        A('v_fmac_f32 v%d, v%d, v%d' % (t2, v, v))
    xlane(A, 'v_add_f32', t1, tmp); xlane(A, 'v_add_f32', t2, tmp)
    A('s_mov_b64 exec, 0xffff')
    A('buffer_store_dwordx2 v[%d:%d], v%d, s[4:7], %s offen %s' % (t1, t2, vaddr, soff, stf))
    A('s_mov_b64 exec, -1')

def gen_c2_task(A, ldf='', stf='', dep=None):
    vL16 = 1
    ZA = 2
    ACC = 12
    BUF = [76, 116, 156]
    A('v_lshlrev_b32 v%d, 4, v0' % vL16)
    A('v_and_b32 v10, 15, v0'); A('v_lshrrev_b32 v11, 4, v0')
    A('s_lshl_b32 s20, s17, 5'); A('s_lshl_b32 s21, s14, 3'); A('s_add_u32 s20, s20, s21')
    A('s_mul_i32 s22, s20, 40'); A('s_lshl_b32 s23, s18, 3'); A('s_add_u32 s22, s22, s23'); A('s_lshl_b32 s22, s22, 10'); A('s_add_u32 s22, s22, 0x%x' % UF)
    A('s_lshl_b32 s24, s20, 11'); A('s_add_u32 s24, s24, 0x%x' % PFR)
    A('s_lshl_b32 s25, s20, 9'); A('s_add_u32 s25, s25, 0x%x' % PMF)
    A('s_lshl_b32 s27, s17, 19'); A('s_lshl_b32 s28, s14, 17'); A('s_add_u32 s27, s27, s28'); A('s_add_u32 s27, s27, 0x%x' % EXP)
    def ld(k):
        b = BUF[k % 3]; out = []
        if k < 8:
            out.append('s_add_u32 s29, s22, 4096')
            for ct in range(8):
                out.append('buffer_load_dwordx4 v[%d:%d], v%d, s[4:7], s%d offen offset:%d %s' % (b + 4 * ct, b + 4 * ct + 3, vL16, 22 if ct < 4 else 29, 1024 * (ct % 4), ldf))
            for mt in range(2):
                out.append('buffer_load_dwordx4 v[%d:%d], v%d, s[4:7], s24 offen offset:%d %s' % (b + 32 + 4 * mt, b + 35 + 4 * mt, vL16, 1024 * mt, ldf))
            out.append('s_add_u32 s22, s22, 40960'); out.append('s_add_u32 s24, s24, 2048')
        else:
            for ct in range(8):
                out.append('buffer_load_dwordx4 v[%d:%d], v%d, s[4:7], s27 offen offset:%d %s' % (b + 4 * ct, b + 4 * ct + 3, ZA + ct, 1536 * (k - 8), ldf))
            for mt in range(2):
                out.append('buffer_load_dwordx4 v[%d:%d], v%d, s[4:7], s25 offen offset:%d %s' % (b + 32 + 4 * mt, b + 35 + 4 * mt, vL16, 2048 * (k - 8) + 1024 * mt, ldf))
        return out
    if dep: dep()
    for k in range(2):
        for x in ld(k): A(x)
    t0, t1, t2, t3 = 196, 197, 198, 199
    for ct in range(8):
        A('s_lshl_b32 s29, s18, 4'); A('s_add_u32 s29, s29, %d' % ((ct >> 1) * 4))
        A('v_lshrrev_b32 v%d, 2, v10' % t0); A('v_add_u32 v%d, s29, v%d' % (t0, t0))
        A('v_mul_u32_u24 v%d, 0x3334, v%d' % (t1, t0)); A('v_lshrrev_b32 v%d, 16, v%d' % (t1, t1))
        A('v_mul_u32_u24 v%d, 5, v%d' % (t2, t1)); A('v_sub_u32 v%d, v%d, v%d' % (t2, t0, t2))
        A('v_cmp_lt_u32 vcc, 2, v%d' % t2)
        A('v_cndmask_b32 v%d, 0, 1, vcc' % t3)
        A('v_lshl_add_u32 v%d, v%d, 1, v%d' % (t1, t1, t3))
        A('v_mul_u32_u24 v%d, 3, v%d' % (t3, t3)); A('v_sub_u32 v%d, v%d, v%d' % (t2, t2, t3))
        A('v_lshlrev_b32 v%d, 12, v%d' % (ZA + ct, t1))
        A('v_lshl_add_u32 v%d, v%d, 7, v%d' % (ZA + ct, t2, ZA + ct))
        A('v_and_b32 v%d, 3, v10' % t3); A('v_lshl_add_u32 v%d, v%d, 4, v%d' % (ZA + ct, t3, ZA + ct))
        A('v_mul_u32_u24 v%d, 384, v11' % t3); A('v_add_u32 v%d, v%d, v%d' % (ZA + ct, ZA + ct, t3))
        if ct & 1: A('v_add_u32 v%d, 64, v%d' % (ZA + ct, ZA + ct))
    for k in range(10):
        if k + 2 < 10:
            for x in ld(k + 2): A(x)
            A('s_waitcnt vmcnt(20)')
        else:
            A('s_waitcnt vmcnt(%d)' % (10 * (9 - k)))
        b = BUF[k % 3]
        for ct in range(8):
            for mt in range(2):
                d = ACC + (ct * 2 + mt) * 4
                A('v_mfma_f32_16x16x32_bf16 v[%d:%d], v[%d:%d], v[%d:%d], %s' % (d, d + 3, b + 4 * ct, b + 4 * ct + 3, b + 32 + 4 * mt, b + 35 + 4 * mt, '0' if k == 0 else 'v[%d:%d]' % (d, d + 3)))
    XR = 200
    A('s_lshl_b32 s29, s18, 2'); A('s_add_u32 s29, s29, s14')
    A('v_mul_u32_u24 v%d, 1280, v10' % t0); A('v_lshl_add_u32 v%d, v11, 3, v%d' % (t0, t0))
    A('s_mul_i32 s30, s17, %d' % (32 * 1280)); A('s_lshl_b32 s31, s29, 6'); A('s_add_u32 s30, s30, s31'); A('s_add_u32 s31, s30, %d' % (16 * 1280))
    for mt in range(2):
        for a in range(2):
            A('buffer_load_dwordx2 v[%d:%d], v%d, s[8:11], s%d offen offset:%d' % (XR + 4 * mt + 2 * a, XR + 4 * mt + 2 * a + 1, t0, 30 + mt, 32 * a))
    A('s_lshl_b32 s32, s14, 14')
    A('v_add_u32 v%d, s32, v%d' % (t1, vL16))
    for j in range(16):
        A('ds_write_b128 v%d, v[%d:%d] offset:%d' % (t1, ACC + 4 * j, ACC + 4 * j + 3, 1024 * j))
    A('s_waitcnt lgkmcnt(0)')
    A('s_barrier')
    A('s_lshl_b32 s32, s14, 12')
    A('v_add_u32 v%d, s32, v%d' % (t1, vL16))
    RD = 76
    for j in range(4):
        for ws in range(4):
            r = RD + (j * 4 + ws) * 4
            A('ds_read_b128 v[%d:%d], v%d offset:%d' % (r, r + 3, t1, ws * 16384 + j * 1024))
    for j in range(4):
        A('s_waitcnt lgkmcnt(%d)' % (12 - 4 * j))
        a = RD + j * 16
        for h2 in range(2):
            A('v_pk_add_f32 v[%d:%d], v[%d:%d], v[%d:%d]' % (a + 2 * h2, a + 2 * h2 + 1, a + 2 * h2, a + 2 * h2 + 1, a + 4 + 2 * h2, a + 5 + 2 * h2))
            A('v_pk_add_f32 v[%d:%d], v[%d:%d], v[%d:%d]' % (a + 8 + 2 * h2, a + 9 + 2 * h2, a + 8 + 2 * h2, a + 9 + 2 * h2, a + 12 + 2 * h2, a + 13 + 2 * h2))
        for h2 in range(2):
            A('v_pk_add_f32 v[%d:%d], v[%d:%d], v[%d:%d]' % (a + 2 * h2, a + 2 * h2 + 1, a + 2 * h2, a + 2 * h2 + 1, a + 8 + 2 * h2, a + 9 + 2 * h2))
    A('s_waitcnt vmcnt(0)')
    A('v_mul_u32_u24 v%d, 160, v10' % t2)
    HP = 12
    for mt in range(2):
        for a in range(2):
            for h2 in range(2):
                src = RD + (a * 2 + mt) * 16 + 2 * h2; xr = XR + 4 * mt + 2 * a + h2; f = 20 + 4 * a + 2 * h2
                A('v_cvt_pk_bf16_f32 v28, v%d, v%d' % (src, src + 1))
                A('v_lshlrev_b32 v29, 16, v28'); A('v_and_b32 v28, 0xffff0000, v28')
                A('v_lshlrev_b32 v30, 16, v%d' % xr); A('v_and_b32 v31, 0xffff0000, v%d' % xr)
                A('v_add_f32 v29, v29, v30'); A('v_add_f32 v28, v28, v31')
                pk = HP + 4 * mt + 2 * a + h2
                A('v_cvt_pk_bf16_f32 v%d, v29, v28' % pk)
                A('v_lshlrev_b32 v%d, 16, v%d' % (f, pk)); A('v_and_b32 v%d, 0xffff0000, v%d' % (f + 1, pk))
        A('s_lshl_b32 s30, s17, 1'); A('s_add_u32 s30, s30, %d' % mt)
        A('s_mul_i32 s31, s30, 20'); A('s_add_u32 s31, s31, s29'); A('s_lshl_b32 s31, s31, 10'); A('s_add_u32 s31, s31, 0x%x' % HF)
        A('buffer_store_dwordx4 v[%d:%d], v%d, s[4:7], s31 offen %s' % (HP + 4 * mt, HP + 4 * mt + 3, vL16, stf))
        A('s_mul_i32 s30, s30, 2560'); A('s_lshl_b32 s31, s29, 3'); A('s_add_u32 s30, s30, s31'); A('s_add_u32 s30, s30, 0x%x' % ST1)
        stats_out(A, list(range(20, 28)), t2, 's30', 32 + 2 * mt, 33 + 2 * mt, 28, stf)

def gen_c2_kernel():
    A = Asm()
    common_entry(A, 'c2_kernel', 320)
    A('s_load_dwordx2 s[40:41], s[0:1], 0')
    A('s_waitcnt lgkmcnt(0)')
    srd(A, 4, 12, 13, WS_BYTES); srd(A, 8, 40, 41, 2048 * 1280)
    A('s_mul_i32 s17, s2, 0x3334'); A('s_lshr_b32 s17, s17, 16'); A('s_mul_i32 s18, s17, 5'); A('s_sub_u32 s18, s2, s18')
    gen_c2_task(A)
    A.label('Lc2_kernel_end')
    A('s_endpgm')
    return A, ('c2_kernel', (320, 1, 1), 256, 65536, 208, 64, 208)
```

```python
from dsl import *
from layout import *
from gen_prep import srd, f32bits, build, gen_prep, rnd_bf16
from gen_roles import *
from gen_attn import *
import math

def gelu_pair(A, a, b, t1, t2):
    for v, t in ((a, t1), (b, t2)):
        A('v_mul_f32 v%d, v%d, v%d' % (t, v, v))
        A('v_fma_f32 v%d, v%d, s51, v%d' % (t, t, 7))
        A('v_mul_f32 v%d, v%d, v%d' % (t, t, v))
        A('v_exp_f32 v%d, v%d' % (t, t))
    for v, t in ((a, t1), (b, t2)):
        A('v_add_f32 v%d, 1.0, v%d' % (t, t))
        A('v_rcp_f32 v%d, v%d' % (t, t))
    for v, t in ((a, t1), (b, t2)):
        A('v_mul_f32 v%d, v%d, v%d' % (v, v, t))

def gen_dtask(A, kind, ldf='', stf='', dep=None):
    KS = 48 if kind == 4 else 20
    NRT = 2 if kind == 4 else 4
    Asrc = {1: HF, 2: TF, 3: X1F, 4: U2F}[kind]
    Wsrc = {1: W1F, 2: W2F, 3: W3F, 4: W4F}[kind]
    ln = kind in (1, 3)
    vL16 = 1
    ACC = 8
    CS = 40
    ONE = 48
    XB = [52, 56, 60, 64, 68, 72, 76, 80]
    WD = 6
    WB = 84
    STR = 132
    MU, RHO = 172, 176
    EX = 188
    A('v_lshlrev_b32 v%d, 4, v0' % vL16)
    A('v_and_b32 v2, 15, v0'); A('v_lshrrev_b32 v3, 4, v0')
    A('s_mul_i32 s19, s17, %d' % NRT)
    A('s_lshl_b32 s29, s18, 2'); A('s_add_u32 s29, s29, s14')
    if dep: dep()
    nfr = NRT * KS
    if kind != 2:
        A('s_mul_i32 s20, s19, %d' % (KS * 1024)); A('s_add_u32 s20, s20, 0x%x' % Asrc)
        A('s_mul_i32 s21, s14, %d' % (nfr // 4 * 1024)); A('s_add_u32 s20, s20, s21')
        for k in range(nfr // 4):
            A('s_add_u32 m0, s21, %d' % (1024 * k))
            A('buffer_load_dwordx4 v%d, s[4:7], s20 offen %s lds' % (vL16, ldf))
            if k < nfr // 4 - 1: A('s_add_u32 s20, s20, 1024')
    else:
        A('s_add_u32 s20, s19, s14'); A('s_lshl_b32 s20, s20, 4')
        A('s_mul_i32 s21, s14, 20480')
        for gi, dl in enumerate((-1, 1, -2, 2)):
            A('v_add_u32 v4, s20, v2'); A('v_add_u32 v4, %d, v4' % dl)
            A('v_ashrrev_i32 v5, 4, v4'); A('v_mul_i32_i24 v5, 20480, v5')
            A('v_and_b32 v4, 15, v4'); A('v_lshl_add_u32 v4, v3, 4, v4'); A('v_lshl_add_u32 v5, v4, 4, v5')
            for k5 in range(5):
                ks = gi * 5 + k5
                A('s_add_u32 m0, s21, %d' % (1024 * ks))
                A('s_movk_i32 s22, %d' % (1024 * ks))
                A('buffer_load_dwordx4 v5, s[8:11], s22 offen %s lds' % ldf)
    ndma = nfr // 4
    A('s_mul_i32 s23, s29, %d' % (2 * KS * 1024)); A('s_add_u32 s23, s23, 0x%x' % Wsrc); A('s_add_u32 s24, s23, %d' % (KS * 1024))
    def wld(ks):
        b = WB + (ks % WD) * 8
        out = ['buffer_load_dwordx4 v[%d:%d], v%d, s[4:7], s23 offen offset:%d' % (b, b + 3, vL16, 1024 * (ks % 4)),
               'buffer_load_dwordx4 v[%d:%d], v%d, s[4:7], s24 offen offset:%d' % (b + 4, b + 7, vL16, 1024 * (ks % 4))]
        if ks % 4 == 3: out += ['s_add_u32 s23, s23, 4096', 's_add_u32 s24, s24, 4096']
        return out
    nex = 0
    if kind in (1, 2, 3):
        STs = ST2 if kind == 3 else ST1
        A('v_mul_u32_u24 v4, 160, v2'); A('v_mul_u32_u24 v5, 40, v3'); A('v_add_u32 v4, v4, v5')
        A('s_mul_i32 s25, s19, 2560'); A('s_add_u32 s25, s25, 0x%x' % STs)
        for r in range(NRT):
            for k in range(5):
                A('buffer_load_dwordx2 v[%d:%d], v4, s[4:7], s25 offen offset:%d %s' % (STR + r * 10 + 2 * k, STR + r * 10 + 2 * k + 1, 8 * k, ldf))
            if r < NRT - 1: A('s_add_u32 s25, s25, 2560')
    if kind in (2, 4):
        srcs = (HF,) if kind == 2 else (HF, X1F)
        for si, src in enumerate(srcs):
            A('s_mul_i32 s25, s19, 20'); A('s_add_u32 s25, s25, s29'); A('s_lshl_b32 s25, s25, 10'); A('s_add_u32 s25, s25, 0x%x' % src)
            for r in range(NRT):
                e = EX + (si * NRT + r) * 4
                A('buffer_load_dwordx4 v[%d:%d], v%d, s[4:7], s25 offen %s' % (e, e + 3, vL16, ldf))
                if r < NRT - 1: A('s_add_u32 s25, s25, 20480')
    for ks in range(WD - 1):
        for x in wld(ks): A(x)
    if ln:
        for r in range(4): A('v_mov_b32 v%d, 0x3f803f80' % (ONE + r))
    A('s_waitcnt vmcnt(%d)' % (2 * (WD - 1)))
    A('s_barrier')
    if kind in (1, 2, 3):
        for r in range(NRT):
            b = STR + r * 10
            for k in range(1, 5):
                A('v_pk_add_f32 v[%d:%d], v[%d:%d], v[%d:%d]' % (b, b + 1, b, b + 1, b + 2 * k, b + 2 * k + 1))
            xlane(A, 'v_add_f32', b, 4); xlane(A, 'v_add_f32', b + 1, 4)
            mean, var, m1, s1 = b, b + 1, b + 2, b + 3
            A('v_mul_f32 v%d, 0x%08x, v%d' % (mean, f32bits(1 / 640), mean))
            A('v_mul_f32 v%d, 0x%08x, v%d' % (var, f32bits(1 / 640), var))
            A('v_fma_f32 v%d, -v%d, v%d, v%d' % (var, mean, mean, var))
            A('v_max_f32 v%d, 0, v%d' % (var, var))
            A('v_mov_b32 v%d, v%d' % (m1, mean)); rnd_bf16(A, m1)
            A('v_mov_b32 v%d, v%d' % (s1, var)); rnd_bf16(A, s1)
            A('v_add_f32 v%d, 0x%08x, v%d' % (s1, f32bits(1e-5), s1)); rnd_bf16(A, s1)
            A('v_sqrt_f32 v%d, v%d' % (s1, s1)); rnd_bf16(A, s1)
            A('v_rcp_f32 v%d, v%d' % (RHO + r, s1))
            if kind == 1:
                m2, s2 = b + 4, b + 5
                A('v_sub_f32 v%d, v%d, v%d' % (m2, mean, m1)); A('v_mul_f32 v%d, v%d, v%d' % (m2, m2, RHO + r)); rnd_bf16(A, m2)
                A('v_mul_f32 v%d, v%d, v%d' % (s2, var, RHO + r)); A('v_mul_f32 v%d, v%d, v%d' % (s2, s2, RHO + r)); rnd_bf16(A, s2)
                A('v_add_f32 v%d, 0x%08x, v%d' % (s2, f32bits(1e-5), s2)); rnd_bf16(A, s2)
                A('v_sqrt_f32 v%d, v%d' % (s2, s2)); rnd_bf16(A, s2)
                A('v_rcp_f32 v%d, v%d' % (s2, s2))
                A('v_fma_f32 v%d, v%d, v%d, v%d' % (MU + r, m2, s1, m1))
                A('v_mul_f32 v%d, v%d, v%d' % (RHO + r, RHO + r, s2))
            else:
                A('v_mov_b32 v%d, v%d' % (MU + r, m1))
    seq = [(ks, r) for ks in range(KS) for r in range(NRT)]
    NX = len(XB); LA = 5
    A('v_add_u32 v5, 65536, v%d' % vL16)
    def xrd(i):
        ks, r = seq[i]; b = XB[i % NX]; off = (r * KS + ks) * 1024
        if off < 65536: return 'ds_read_b128 v[%d:%d], v%d offset:%d' % (b, b + 3, vL16, off)
        return 'ds_read_b128 v[%d:%d], v5 offset:%d' % (b, b + 3, off - 65536)
    for i in range(LA): A(xrd(i))
    for i, (ks, r) in enumerate(seq):
        if r == 0:
            if ks + WD - 1 < KS:
                for x in wld(ks + WD - 1): A(x)
                A('s_waitcnt vmcnt(%d)' % (2 * (WD - 1)))
            else:
                A('s_waitcnt vmcnt(%d)' % (2 * (KS - 1 - ks)))
        if i + LA < len(seq):
            A(xrd(i + LA)); A('s_waitcnt lgkmcnt(%d)' % LA)
        else:
            A('s_waitcnt lgkmcnt(%d)' % (len(seq) - 1 - i))
        b = XB[i % NX]; wb = WB + (ks % WD) * 8
        for a in range(2):
            d = ACC + (r * 2 + a) * 4
            A('v_mfma_f32_16x16x32_bf16 v[%d:%d], v[%d:%d], v[%d:%d], %s' % (d, d + 3, wb + 4 * a, wb + 4 * a + 3, b, b + 3, '0' if ks == 0 else 'v[%d:%d]' % (d, d + 3)))
        if ln and r < 2:
            d = CS + 4 * r
            A('v_mfma_f32_16x16x32_bf16 v[%d:%d], v[%d:%d], v[%d:%d], %s' % (d, d + 3, wb + 4 * r, wb + 4 * r + 3, ONE, ONE + 3, '0' if ks == 0 else 'v[%d:%d]' % (d, d + 3)))
    c1 = -2 * math.log2(math.e) * 0.7978845608028654
    A('v_mov_b32 v7, 0x%08x' % f32bits(c1)); A('s_mov_b32 s51, 0x%08x' % f32bits(c1 * 0.044715))
    PK = 52
    t = [84, 85, 86, 87, 88, 89]
    def unpack(src, lo, hi):
        A('v_lshlrev_b32 v%d, 16, v%d' % (lo, src)); A('v_and_b32 v%d, 0xffff0000, v%d' % (hi, src))
    if kind == 2: A('v_mul_u32_u24 v6, 160, v2')
    if kind == 4:
        A('v_mul_u32_u24 v6, 1280, v2'); A('v_lshl_add_u32 v6, v3, 3, v6')
    for r in range(NRT):
        for j in range(4):
            d = ACC + r * 8 + 2 * j; pk = PK + 4 * r + j
            if ln:
                for e in range(2):
                    A('v_fma_f32 v%d, -v%d, v%d, v%d' % (d + e, MU + r, CS + 2 * j + e, d + e))
                    A('v_mul_f32 v%d, v%d, v%d' % (d + e, d + e, RHO + r))
                A('v_cvt_pk_bf16_f32 v%d, v%d, v%d' % (t[0], d, d + 1)); unpack(t[0], d, d + 1)
                gelu_pair(A, d, d + 1, t[0], t[1])
                A('v_cvt_pk_bf16_f32 v%d, v%d, v%d' % (pk, d, d + 1))
            elif kind == 2:
                A('v_cvt_pk_bf16_f32 v%d, v%d, v%d' % (t[0], d, d + 1)); unpack(t[0], d, d + 1)
                unpack(EX + 4 * r + j, t[0], t[1])
                A('v_sub_f32 v%d, v%d, v%d' % (t[0], t[0], MU + r)); A('v_sub_f32 v%d, v%d, v%d' % (t[1], t[1], MU + r))
                A('v_cvt_pk_bf16_f32 v%d, v%d, v%d' % (t[2], t[0], t[1])); unpack(t[2], t[0], t[1])
                A('v_mul_f32 v%d, v%d, v%d' % (t[0], t[0], RHO + r)); A('v_mul_f32 v%d, v%d, v%d' % (t[1], t[1], RHO + r))
                A('v_cvt_pk_bf16_f32 v%d, v%d, v%d' % (t[2], t[0], t[1])); unpack(t[2], t[0], t[1])
                A('v_add_f32 v%d, v%d, v%d' % (t[0], t[0], d)); A('v_add_f32 v%d, v%d, v%d' % (t[1], t[1], d + 1))
                A('v_cvt_pk_bf16_f32 v%d, v%d, v%d' % (pk, t[0], t[1])); unpack(pk, d, d + 1)
            else:
                A('v_cvt_pk_bf16_f32 v%d, v%d, v%d' % (t[0], d, d + 1)); unpack(t[0], d, d + 1)
                unpack(EX + 4 * (NRT + r) + j, t[0], t[1])
                A('v_add_f32 v%d, v%d, v%d' % (t[0], t[0], d)); A('v_add_f32 v%d, v%d, v%d' % (t[1], t[1], d + 1))
                A('v_cvt_pk_bf16_f32 v%d, v%d, v%d' % (t[2], t[0], t[1])); unpack(t[2], d, d + 1)
                unpack(EX + 4 * r + j, t[0], t[1])
                A('v_add_f32 v%d, v%d, v%d' % (t[0], t[0], d)); A('v_add_f32 v%d, v%d, v%d' % (t[1], t[1], d + 1))
                A('v_cvt_pk_bf16_f32 v%d, v%d, v%d' % (pk, t[0], t[1]))
        A('s_add_u32 s30, s19, %d' % r)
        if kind == 4:
            A('s_mul_i32 s31, s30, %d' % (16 * 1280)); A('s_lshl_b32 s32, s29, 6'); A('s_add_u32 s31, s31, s32')
            A('buffer_store_dwordx2 v[%d:%d], v6, s[8:11], s31 offen' % (PK + 4 * r, PK + 4 * r + 1))
            A('buffer_store_dwordx2 v[%d:%d], v6, s[8:11], s31 offen offset:32' % (PK + 4 * r + 2, PK + 4 * r + 3))
        else:
            dst, okS = {1: (TF, 20), 2: (X1F, 20), 3: (U2F, 48)}[kind]
            A('s_mul_i32 s31, s30, %d' % okS); A('s_add_u32 s31, s31, s29'); A('s_lshl_b32 s31, s31, 10'); A('s_add_u32 s31, s31, 0x%x' % dst)
            A('buffer_store_dwordx4 v[%d:%d], v%d, s[4:7], s31 offen %s' % (PK + 4 * r, PK + 4 * r + 3, vL16, stf))
            if kind == 2:
                A('s_mul_i32 s31, s30, 2560'); A('s_lshl_b32 s32, s29, 3'); A('s_add_u32 s31, s31, s32'); A('s_add_u32 s31, s31, 0x%x' % ST2)
                stats_out(A, list(range(ACC + r * 8, ACC + r * 8 + 8)), 6, 's31', 90 + 2 * r, 91 + 2 * r, 84, stf)

def gen_d_kernel(kind):
    name = 'd%d_kernel' % kind
    ncg = 12 if kind == 3 else 5
    nrb = 64 if kind == 4 else 32
    grid = ncg * nrb
    A = Asm()
    A.nuniq = 1000 * kind
    common_entry(A, name, grid)
    A('s_load_dwordx2 s[40:41], s[0:1], 96')
    A('s_waitcnt lgkmcnt(0)')
    srd(A, 4, 12, 13, WS_BYTES)
    if kind == 2:
        A('s_add_u32 s40, s12, 0x%x' % TF); A('s_addc_u32 s41, s13, 0')
    srd(A, 8, 40, 41, 2048 * 1280)
    A('s_mul_i32 s17, s2, 0x%x' % (0x1556 if ncg == 12 else 0x3334)); A('s_lshr_b32 s17, s17, 16')
    A('s_mul_i32 s18, s17, %d' % ncg); A('s_sub_u32 s18, s2, s18')
    gen_dtask(A, kind)
    A.label('L%s_end' % name)
    A('s_endpgm')
    return A, (name, (grid, 1, 1), 256, 98304 if kind == 4 else 81920, 224, 64, 224)
```

```python
from dsl import *
from layout import *
from gen_prep import srd, f32bits, build, gen_prep

def load_w_proj(A, sW, tmpv=40):
    t0, t1, t2 = tmpv, tmpv + 1, tmpv + 2
    ad = tmpv + 3
    A('s_mul_i32 s27, s14, 30720')
    for k in range(3):
        A('v_add_u32 v%d, %d, v0' % (t0, 64 * k))
        A('v_mul_u32_u24 v%d, 0x2aab, v%d' % (t1, t0)); A('v_lshrrev_b32 v%d, 16, v%d' % (t1, t1))
        A('v_mul_u32_u24 v%d, 6, v%d' % (t2, t1)); A('v_sub_u32 v%d, v%d, v%d' % (t2, t0, t2))
        A('v_mul_u32_u24 v%d, 12288, v%d' % (t1, t1))
        A('v_lshl_add_u32 v%d, v%d, 4, v%d' % (ad + k, t2, t1))
    A('s_mul_i32 s28, s26, 384'); A('s_mul_i32 s29, s14, 96'); A('s_add_u32 s28, s28, s29')
    A('s_add_u32 s32, s%d, s28' % sW); A('s_addc_u32 s33, s%d, 0' % (sW + 1))
    A('v_lshrrev_b32 v%d, 4, v0' % t0); A('v_bfe_u32 v%d, v0, 2, 2' % t1)
    A('v_lshl_add_u32 v%d, v%d, 2, v%d' % (t0, t0, t1)); A('v_mul_u32_u24 v%d, 96, v%d' % (t0, t0))
    A('v_and_b32 v%d, 3, v0' % t1); A('v_mul_u32_u24 v%d, 24, v%d' % (t1, t1))
    A('v_add3_u32 v%d, v%d, v%d, s27' % (t0, t0, t1))
    def dma(buf):
        for grp in range(5):
            for k in range(3):
                A('s_add_u32 m0, s27, %d' % (buf * 15360 + (grp * 3 + k) * 1024))
                A('global_load_lds_dwordx4 v%d, s[32:33]' % (ad + k))
            A('s_add_u32 s32, s32, %d' % (32 * 12288)); A('s_addc_u32 s33, s33, 0')
    def trr(q, buf):
        for t in range(3):
            for ks in range(5):
                r = (t * 20 + q * 5 + ks) * 4
                for a in range(2):
                    A('ds_read_b64_tr_b16 a[%d:%d], v%d offset:%d' % (r + 2 * a, r + 2 * a + 1, t0, buf * 15360 + (32 * ks + 16 * a) * 96 + 8 * t))
            A('s_waitcnt lgkmcnt(0)')
    dma(0); dma(1)
    A('s_waitcnt vmcnt(15)'); trr(0, 0); dma(0)
    A('s_waitcnt vmcnt(15)'); trr(1, 1); dma(1)
    A('s_waitcnt vmcnt(15)'); trr(2, 0)
    A('s_waitcnt vmcnt(0)'); trr(3, 1)

TRACE = [False]
def trace(A, sidx, va, vb):
    A('s_memrealtime s[96:97]')
    A('s_lshl_b32 s99, s98, 7'); A('s_add_u32 s99, s99, %s' % sidx); A('s_lshl_b32 s99, s99, 2'); A('s_add_u32 s99, s99, 0xF000000')
    A('s_waitcnt lgkmcnt(0)')
    A('v_mov_b32 v%d, s96' % va); A('v_mov_b32 v%d, s99' % vb)
    A('buffer_store_dword v%d, v%d, s[4:7], 0 offen' % (va, vb))

def signal(A, sval, add, wave0=True):
    L = A.uniq('Lsig')
    if wave0:
        A('s_cmp_lg_u32 s14, 0'); A('s_cbranch_scc1 %s' % L)
    A('s_add_u32 s46, %s, %d' % (sval, add) if add >= 0 else 's_sub_u32 s46, %s, %d' % (sval, -add))
    A('v_mov_b32 v4, s46'); A('v_mov_b32 v5, s47')
    A('s_mov_b64 exec, 1')
    A('buffer_store_dword v4, v5, s[4:7], 0 offen sc1')
    if TRACE[0]: trace(A, 's46', 4, 5)
    A('s_mov_b64 exec, -1')
    A.label(L)

def wait_prog(A, vaddr, vval, sneed, mask='-1'):
    L, D = A.uniq('Lwp'), A.uniq('Lwpd')
    if mask != '-1': A('s_mov_b64 exec, %s' % mask)
    A.label(L)
    A('buffer_load_dword v%d, v%d, s[4:7], 0 offen sc1' % (vval, vaddr))
    A('s_waitcnt vmcnt(0)')
    A('v_cmp_gt_u32 vcc, %s, v%d' % (sneed, vval))
    A('s_cbranch_vccz %s' % D)
    A('s_sleep 2')
    A('s_add_u32 s30, s30, 1')
    A('s_cmp_lt_u32 s30, s31')
    A('s_cbranch_scc1 %s' % L)
    A.label(D)
    if mask != '-1': A('s_mov_b64 exec, -1')

def gen_prole(A, stf='', flag=False):
    load_w_proj(A, 8)
    A('s_barrier')
    vL16, vO = 1, 2
    XB = [8, 12, 16, 20]
    ACC = [24, 48]
    PK = 72
    A('v_lshlrev_b32 v%d, 4, v0' % vL16)
    A('v_lshlrev_b32 v%d, 3, v0' % vO)
    A('s_mul_i32 s20, s26, 12'); A('s_mul_i32 s21, s14, 3'); A('s_add_u32 s20, s20, s21'); A('s_lshl_b32 s20, s20, 9')
    A('s_add_u32 s19, s19, s20')
    A('s_mul_i32 s22, s14, 10240')
    def dma(sseg, slot_sgpr):
        A('s_mul_i32 s23, %s, 40960' % sseg); A('s_add_u32 s23, s23, s22')
        A('s_add_u32 s24, %s, s22' % slot_sgpr)
        for k in range(10):
            A('s_add_u32 m0, s24, %d' % (1024 * k))
            A('buffer_load_dwordx4 v%d, s[4:7], s23 offen lds' % vL16)
            if k < 9: A('s_add_u32 s23, s23, 1024')
    A('s_mov_b32 s34, 0'); A('s_mov_b32 s35, 40960'); A('s_mov_b32 s36, 81920')
    dma('s17', 's34')
    A('s_add_u32 s25, s17, 1'); dma('s25', 's35')
    LOOP, END = A.uniq('Lp_loop'), A.uniq('Lp_end')
    def epilogue(acc):
        out = []
        for mt in range(2):
            for t in range(3):
                d = acc + (mt * 3 + t) * 4; pk = PK + (mt * 3 + t) * 2
                out.append('v_cvt_pk_bf16_f32 v%d, v%d, v%d' % (pk, d, d + 1))
                out.append('v_cvt_pk_bf16_f32 v%d, v%d, v%d' % (pk + 1, d + 2, d + 3))
                out.append('buffer_store_dwordx2 v[%d:%d], v%d, s[4:7], s%d offen offset:%d %s' % (pk, pk + 1, vO, 37 + mt, 512 * t, stf))
        return out
    def body(par, first, wait=16):
        acc = ACC[par]; prev = ACC[1 - par]
        A('s_waitcnt vmcnt(%d)' % (wait if (not flag or first) else 0))
        A('s_barrier')
        if flag and not first: signal(A, 's17', -1)
        A('s_add_u32 s25, s17, 2'); dma('s25', 's36')
        A('s_sub_u32 s25, s17, 1'); A('s_mul_i32 s37, s25, %d' % SEG_KF); A('s_add_u32 s37, s37, s19'); A('s_add_u32 s38, s37, %d' % (SEG_KF // 2))
        A('v_add_u32 v3, s34, v%d' % vL16)
        ep = [] if first else epilogue(prev)
        seq = [(ks, mt) for ks in range(20) for mt in range(2)]
        for i in range(3):
            ks, mt = seq[i]
            A('ds_read_b128 v[%d:%d], v3 offset:%d' % (XB[i % 4], XB[i % 4] + 3, (mt * 20 + ks) * 1024))
        for i, (ks, mt) in enumerate(seq):
            if i + 3 < 40:
                k2, m2 = seq[i + 3]; b = XB[(i + 3) % 4]
                A('ds_read_b128 v[%d:%d], v3 offset:%d' % (b, b + 3, (m2 * 20 + k2) * 1024))
                A('s_waitcnt lgkmcnt(3)')
            else:
                A('s_waitcnt lgkmcnt(%d)' % (39 - i))
            b = XB[i % 4]
            for t in range(3):
                d = acc + (mt * 3 + t) * 4; w = (t * 20 + ks) * 4
                A('v_mfma_f32_16x16x32_bf16 v[%d:%d], a[%d:%d], v[%d:%d], %s' % (d, d + 3, w, w + 3, b, b + 3, '0' if ks == 0 else 'v[%d:%d]' % (d, d + 3)))
            if i >= 4 and ep: A(ep.pop(0))
        assert not ep
        A('s_mov_b32 s25, s34'); A('s_mov_b32 s34, s35'); A('s_mov_b32 s35, s36'); A('s_mov_b32 s36, s25')
        A('s_add_u32 s17, s17, 1')
    E0, E1_ = A.uniq('Lp_e0'), A.uniq('Lp_e1')
    body(0, True, 10)
    A('s_cmp_ge_u32 s17, s18'); A('s_cbranch_scc1 %s' % E0)
    body(1, False, 10)
    A('s_cmp_ge_u32 s17, s18'); A('s_cbranch_scc1 %s' % E1_)
    A.label(LOOP)
    body(0, False)
    A('s_cmp_ge_u32 s17, s18'); A('s_cbranch_scc1 %s' % E0)
    body(1, False)
    A('s_cmp_lt_u32 s17, s18'); A('s_cbranch_scc1 %s' % LOOP)
    A('s_branch %s' % E1_)
    for lab, par in ((E0, 0), (E1_, 1)):
        A.label(lab)
        A('s_sub_u32 s25, s17, 1'); A('s_mul_i32 s37, s25, %d' % SEG_KF); A('s_add_u32 s37, s37, s19'); A('s_add_u32 s38, s37, %d' % (SEG_KF // 2))
        for x in epilogue(ACC[par]): A(x)
        A('s_branch %s' % END)
    A.label(END)
    A('s_waitcnt vmcnt(0)')
    if flag:
        A('s_barrier')
        signal(A, 's17', 0)

def load_w_u(A, sW, tmpv=40, scol='s14'):
    t0, t1, t2 = tmpv, tmpv + 1, tmpv + 2
    ad = tmpv + 3
    A('s_mul_i32 s27, s14, 30720')
    for k in range(5):
        A('v_add_u32 v%d, %d, v0' % (t0, 64 * k))
        A('v_mul_u32_u24 v%d, 0xccd, v%d' % (t1, t0)); A('v_lshrrev_b32 v%d, 16, v%d' % (t1, t1))
        A('v_mul_u32_u24 v%d, 20, v%d' % (t2, t1)); A('v_sub_u32 v%d, v%d, v%d' % (t2, t0, t2))
        A('v_mul_u32_u24 v%d, 1280, v%d' % (t1, t1))
        A('v_lshl_add_u32 v%d, v%d, 4, v%d' % (ad + k, t2, t1))
    A('s_mul_i32 s28, s26, 245760'); A('s_mul_i32 s29, %s, 320' % scol); A('s_add_u32 s28, s28, s29')
    A('s_add_u32 s32, s%d, s28' % sW); A('s_addc_u32 s33, s%d, 0' % (sW + 1))
    A('v_lshrrev_b32 v%d, 4, v0' % t0); A('v_mul_u32_u24 v%d, 12, v%d' % (t0, t0)); A('v_bfe_u32 v%d, v0, 2, 2' % t1)
    A('v_add_u32 v%d, v%d, v%d' % (t0, t0, t1)); A('v_mul_u32_u24 v%d, 320, v%d' % (t0, t0))
    A('v_and_b32 v%d, 3, v0' % t1); A('v_lshlrev_b32 v%d, 3, v%d' % (t1, t1))
    A('v_add3_u32 v%d, v%d, v%d, s27' % (t0, t0, t1))
    for ch in range(2):
        for grp in range(6):
            for k in range(5):
                A('s_add_u32 m0, s27, %d' % ((grp * 5 + k) * 1024))
                A('global_load_lds_dwordx4 v%d, s[32:33]' % (ad + k))
            A('s_add_u32 s32, s32, %d' % (16 * 1280)); A('s_addc_u32 s33, s33, 0')
        A('s_waitcnt vmcnt(0)')
        for nu in range(10):
            for kl in range(3):
                kap = ch * 3 + kl
                r = (nu * 6 + kap) * 4
                for a in range(2):
                    pl = 2 * kap + a; pp, t = pl // 3, pl % 3
                    A('ds_read_b64_tr_b16 a[%d:%d], v%d offset:%d' % (r + 2 * a, r + 2 * a + 1, t0, (48 * pp + 4 * t - 96 * ch) * 320 + 32 * nu))
            A('s_waitcnt lgkmcnt(0)')

def gen_urole_loop(A, mode, ldf='', stf='', scol='s14', flag=False):
    vL16, vA = 1, 2
    VB = [8, 56]
    DD = [104, 112, 120]
    PK = [128, 132, 136]
    A('v_lshlrev_b32 v%d, 4, v0' % vL16)
    if mode == 'U':
        A('v_lshlrev_b32 v%d, 3, v0' % vA)
        A('s_mul_i32 s20, s26, %d' % (12 * 512)); A('s_add_u32 s20, s20, 0x%x' % VF)
    else:
        A('v_and_b32 v3, 15, v0'); A('v_mul_u32_u24 v%d, 12288, v3' % vA)
        A('v_lshrrev_b32 v3, 4, v0'); A('v_mul_u32_u24 v3, 24, v3'); A('v_add_u32 v%d, v%d, v3' % (vA, vA))
        A('s_mul_i32 s20, s26, 384'); A('s_sub_u32 s20, s20, %d' % (64 * 32 * 12288))
    A('s_mul_i32 s21, s26, 40'); A('s_mul_i32 s22, %s, 10' % scol); A('s_add_u32 s21, s21, s22'); A('s_lshl_b32 s21, s21, 10'); A('s_add_u32 s21, s21, 0x%x' % UF)
    def loads(sseg, vb):
        out = []
        if mode == 'U':
            out.append('s_mul_i32 s23, %s, %d' % (sseg, SEG_KF)); out.append('s_add_u32 s23, s23, s20')
            out.append('s_add_u32 s24, s23, 4096'); out.append('s_add_u32 s25, s23, %d' % (SEG_KF // 2)); out.append('s_add_u32 s28, s25, 4096')
            for mt in range(2):
                for pl in range(12):
                    so = (23, 24, 25, 28)[mt * 2 + pl // 8]
                    out.append('buffer_load_dwordx2 v[%d:%d], v%d, s[4:7], s%d offen offset:%d %s' % (vb + mt * 24 + 2 * pl, vb + mt * 24 + 2 * pl + 1, vA, so, 512 * (pl % 8), ldf))
        else:
            out.append('s_mul_i32 s23, %s, %d' % (sseg, 32 * 12288)); out.append('s_add_u32 s23, s23, s20')
            out.append('s_add_u32 s25, s23, %d' % (16 * 12288))
            for mt in range(2):
                for pl in range(12):
                    out.append('buffer_load_dwordx2 v[%d:%d], v%d, s[8:11], s%d offen offset:%d' % (vb + mt * 24 + 2 * pl, vb + mt * 24 + 2 * pl + 1, vA, (23, 25)[mt], 96 * (pl // 3) + 8 * (pl % 3)))
        return out
    if flag:
        A('s_lshl_b32 s40, s26, 7'); A('s_add_u32 s40, s40, 0x%x' % PROG_V); A('v_mov_b32 v6, s40')
        A('s_add_u32 s41, s17, 1')
        wait_prog(A, 6, 7, 's41')
    for x in loads('s17', VB[0]): A(x)
    LOOP, END = A.uniq('Lu_loop'), A.uniq('Lu_end')
    NAFTER = [None]
    def body(par, first):
        vb = VB[par]
        if flag:
            A('s_add_u32 s41, s17, 2'); A('s_min_u32 s41, s41, 64')
            L = A.uniq('Lu_have')
            A('v_cmp_gt_u32 vcc, s41, v7'); A('s_cbranch_vccz %s' % L)
            wait_prog(A, 6, 7, 's41')
            A.label(L)
            A('s_waitcnt vmcnt(0)')
            A('s_barrier')
            if not first: signal(A, 's17', 0)
        else:
            A('s_waitcnt vmcnt(%d)' % (0 if first else NAFTER[0]))
        A('s_add_u32 s29, s17, 1')
        nl = loads('s29', VB[1 - par])
        A('s_mul_i32 s37, s17, %d' % SEG_UF); A('s_add_u32 s37, s37, s21'); A('s_add_u32 s38, s37, 4096'); A('s_add_u32 s39, s37, 8192')
        pend = []
        cnt = [0]
        def emit(x):
            A(x)
            if x.startswith('buffer_store'): cnt[0] += 1
            if x.startswith('buffer_load'): cnt[0] = 0
        for nu in range(10):
            d = DD[nu % 3]
            k = 0
            for kap in range(6):
                for mt in range(2):
                    w = (nu * 6 + kap) * 4; a = vb + mt * 24 + 4 * kap; dd = d + 4 * mt
                    A('v_mfma_f32_16x16x32_bf16 v[%d:%d], v[%d:%d], a[%d:%d], %s' % (dd, dd + 3, a, a + 3, w, w + 3, '0' if kap == 0 else 'v[%d:%d]' % (dd, dd + 3)))
                    k += 1
                    if k >= 6 and pend: emit(pend.pop(0))
                    elif nl: emit(nl.pop(0))
            while pend: emit(pend.pop(0))
            pk = PK[nu % 3]
            pend = ['v_cvt_pk_bf16_f32 v%d, v%d, v%d' % (pk + j, d + 2 * j, d + 2 * j + 1) for j in range(4)]
            pend.append('buffer_store_dwordx4 v[%d:%d], v%d, s[4:7], s%d offen offset:%d %s' % (pk, pk + 3, vL16, 37 + nu // 4, 1024 * (nu % 4), stf))
        assert not nl
        while pend: emit(pend.pop(0))
        NAFTER[0] = cnt[0]
        A('s_add_u32 s17, s17, 1')
    body(0, True)
    A('s_cmp_ge_u32 s17, s18'); A('s_cbranch_scc1 %s' % END)
    A.label(LOOP)
    body(1, False)
    A('s_cmp_ge_u32 s17, s18'); A('s_cbranch_scc1 %s' % END)
    body(0, False)
    A('s_cmp_lt_u32 s17, s18'); A('s_cbranch_scc1 %s' % LOOP)
    A.label(END)
    A('s_waitcnt vmcnt(0)')
    if flag:
        A('s_barrier')
        signal(A, 's17', 0)

def common_entry(A, name, grid):
    A.raw(kernel_header(name))
    A('s_cmp_ge_u32 s2, %d' % grid); A('s_cbranch_scc1 L%s_end' % name)
    A('s_load_dwordx2 s[12:13], s[0:1], 112')
    A('v_lshrrev_b32 v1, 6, v0'); A('v_readfirstlane_b32 s14, v1'); A('v_and_b32 v0, 63, v0')

def gen_kv_kernel():
    A = Asm()
    common_entry(A, 'kv_kernel', 256)
    A('s_load_dwordx4 s[8:11], s[0:1], 24')
    A('s_waitcnt lgkmcnt(0)')
    srd(A, 4, 12, 13, WS_BYTES)
    A('s_lshr_b32 s26, s2, 2'); A('s_and_b32 s26, s26, 31')
    A('s_and_b32 s17, s2, 3'); A('s_lshl_b32 s17, s17, 4'); A('s_add_u32 s18, s17, 16')
    A('s_mov_b32 s19, 0x%x' % KF)
    A('s_cmp_lt_u32 s2, 128'); A('s_cbranch_scc1 Lkv_go')
    A('s_mov_b32 s8, s10'); A('s_mov_b32 s9, s11'); A('s_mov_b32 s19, 0x%x' % VF)
    A.label('Lkv_go')
    gen_prole(A)
    A.label('Lkv_kernel_end')
    A('s_endpgm')
    return A, ('kv_kernel', (256, 1, 1), 256, 122880, 512, 64, 256)

def gen_u_kernel():
    A = Asm()
    common_entry(A, 'u_kernel', 256)
    A('s_load_dwordx4 s[40:43], s[0:1], 32')
    A('s_waitcnt lgkmcnt(0)')
    srd(A, 4, 12, 13, WS_BYTES)
    srd(A, 8, 40, 41, 640 * 12288)
    A('s_lshr_b32 s26, s2, 3')
    A('s_and_b32 s30, s2, 7')
    load_w_u(A, 42)
    A('s_mul_i32 s17, s30, 11'); A('s_add_u32 s18, s17, 11')
    A('s_cmp_lt_u32 s30, 4'); A('s_cbranch_scc1 Lu_U')
    A('s_mul_i32 s17, s30, 10'); A('s_add_u32 s17, s17, 4'); A('s_add_u32 s18, s17, 10')
    A('s_cmp_lt_u32 s30, 6'); A('s_cbranch_scc1 Lu_U')
    gen_urole_loop(A, 'B')
    A('s_branch Lu_kernel_end')
    A.label('Lu_U')
    gen_urole_loop(A, 'U')
    A.label('Lu_kernel_end')
    A('s_endpgm')
    return A, ('u_kernel', (256, 1, 1), 256, 122880, 512, 64, 256)

if __name__ == '__main__':
    build([gen_prep(), gen_kv_kernel(), gen_u_kernel()], 'stage1.s')
```

```python
XNF  = 0x0000000
KF   = 0x0400000
VF   = 0x1C00000
UF   = 0x3400000
BF   = 0x8400000
PFR  = 0x9D00000
PMF  = 0xA100000
HF   = 0xA200000
TF   = 0xA500000
X1F  = 0xA800000
U2F  = 0xAB00000
ST1  = 0xB100000
ST2  = 0xB180000
CTL  = 0xB200000
E1   = 0xB700000
MEMF = 0xB780000
E2   = 0xB800000
W1F  = 0xBA00000
W2F  = 0xBB00000
W3F  = 0xBC00000
W4F  = 0xBE00000
EXP  = 0xC000000
WS_BYTES = 0x10000000
E1_SLOT = 4 * 32 * 640
E1_G = 32 * 640
MEM_SLOT = 4 * 10240
SEG_KF = 2 * 32 * 12 * 512
SEG_UF = 32 * 40 * 1024
PROG_UK = CTL + 0x1000
PROG_V  = CTL + 0x1400
PROG_R  = CTL + 0x2400
PROG_Q  = CTL + 0x2600
BCNT    = CTL + 0x2800
TQ      = CTL + 0x2a00
CNT     = CTL + 0x3000
```

```python
from dsl import *
from layout import *
from gen_prep import srd, f32bits, build, gen_prep, rnd_bf16
from gen_roles import *
import math

def xlane(A, op, v, tmp):
    for sw in ('v_permlane16_swap_b32', 'v_permlane32_swap_b32'):
        A('v_mov_b32 v%d, v%d' % (tmp, v))
        A('%s v%d, v%d' % (sw, v, tmp))
        A('%s v%d, v%d, v%d' % (op, v, v, tmp))

def gen_qrole(A, ldf='', stf='', flag=False):
    load_w_proj(A, 8)
    A('s_barrier')
    vL16, vKX, vKM, vPM = 1, 2, 163, 164
    XB = [8, 12, 16, 20]
    ACC = 24
    QP = 48
    KX = 60
    KM = 72
    SP = 80
    RD = 104
    BX = 152
    T1, T2 = 6, 7
    SPL = 122880
    A('v_lshlrev_b32 v%d, 4, v0' % vL16)
    A('v_and_b32 v40, 15, v0'); A('v_lshrrev_b32 v41, 4, v0')
    A('s_mul_i32 s20, s26, 12'); A('s_mul_i32 s21, s14, 3'); A('s_add_u32 s20, s20, s21'); A('s_lshl_b32 s20, s20, 9')
    A('v_lshlrev_b32 v%d, 3, v0' % vKX); A('v_add_u32 v%d, s20, v%d' % (vKX, vKX))
    A('s_lshl_b32 s20, s26, 2'); A('s_add_u32 s20, s20, s14'); A('s_lshl_b32 s20, s20, 12'); A('s_add_u32 s20, s20, 3072')
    A('v_and_b32 v42, 7, v40'); A('v_lshlrev_b32 v%d, 3, v42' % vKM); A('v_lshl_add_u32 v%d, v41, 6, v%d' % (vKM, vKM)); A('v_add_u32 v%d, s20, v%d' % (vKM, vKM))
    A('s_lshr_b32 s20, s26, 2'); A('s_lshl_b32 s20, s20, 1'); A('s_add_u32 s20, s20, s14'); A('s_lshl_b32 s20, s20, 10')
    A('s_and_b32 s21, s26, 3'); A('s_lshl_b32 s21, s21, 8'); A('s_add_u32 s20, s20, s21')
    A('v_lshlrev_b32 v%d, 4, v40' % vPM); A('v_lshl_add_u32 v%d, v41, 3, v%d' % (vPM, vPM)); A('v_add_u32 v%d, s20, v%d' % (vPM, vPM))
    A('v_mov_b32 v43, 0xf149f2ca')
    A('s_cmp_eq_u32 s14, 0'); A('s_cselect_b64 s[40:41], -1, 0')
    for r in range(4):
        A('v_lshl_add_u32 v42, v41, 2, %d' % r)
        A('v_cmp_gt_u32 vcc, v42, v40')
        A('v_cndmask_b32 v44, 0, v43, vcc')
        A('v_cndmask_b32 v%d, 0, v44, s[40:41]' % (BX + r))
        A('v_cndmask_b32 v%d, v44, v43, s[40:41]' % (BX + 4 + r))
    A('v_cmp_lt_u32 vcc, 1, v41'); A('v_cndmask_b32 v%d, 0, v43, vcc' % (BX + 8))
    A('s_mul_i32 s22, s14, 10240')
    A('s_mul_i32 s42, s14, 6144'); A('s_add_u32 s42, s42, %d' % SPL)
    A('s_mul_i32 s43, s14, 3072'); A('s_add_u32 s43, s43, %d' % SPL)
    A('s_lshl_b32 s44, s26, 1'); A('s_add_u32 s44, s44, s14'); A('s_lshl_b32 s44, s44, 10'); A('s_add_u32 s44, s44, 0x%x' % PFR)
    A('s_mov_b32 s45, 0x%08x' % f32bits(192 ** -0.5)); A('s_mov_b32 s50, 0x%08x' % f32bits(math.log2(math.e)))
    A('s_mov_b32 s48, -1'); A('s_mov_b32 s49, 0')
    if flag:
        A('s_lshl_b32 s20, s26, 2'); A('s_add_u32 s20, s20, s14'); A('s_lshl_b32 s20, s20, 2'); A('s_add_u32 s20, s20, 0x%x' % PROG_R)
        A('v_mov_b32 v161, s20')
    def dma(sseg, slot_sgpr, defer=False):
        return dma_seg(A, sseg, slot_sgpr, vL16, defer)
    A('s_mov_b32 s34, 0'); A('s_mov_b32 s35, 40960'); A('s_mov_b32 s36, 81920')
    dma('s17', 's34')
    A('s_add_u32 s25, s17, 1'); dma('s25', 's35')
    if flag:
        A('s_lshr_b32 s20, s26, 3'); A('s_lshl_b32 s20, s20, 7'); A('s_and_b32 s21, s26, 7'); A('s_lshl_b32 s21, s21, 2'); A('s_add_u32 s20, s20, s21')
        A('s_add_u32 s20, s20, 0x%x' % (PROG_UK + 32)); A('v_mov_b32 v165, s20')
        wait_prog(A, 165, 162, '1')
    A('s_waitcnt vmcnt(10)')
    LOOP, SKIP = A.uniq('Lq_loop'), A.uniq('Lq_skip')
    A.label(LOOP)
    A('s_barrier')
    A('s_mul_i32 s37, s17, %d' % SEG_KF); A('s_add_u32 s37, s37, 0x%x' % KF); A('s_add_u32 s38, s37, %d' % (SEG_KF // 2))
    A('s_lshl_b32 s39, s17, 19'); A('s_add_u32 s39, s39, 0x%x' % EXP)
    def kxloads():
        for a in range(2):
            for t in range(3):
                r = KX + (a * 3 + t) * 2
                A('buffer_load_dwordx2 v[%d:%d], v%d, s[4:7], s%d offen offset:%d %s' % (r, r + 1, vKX, 37 + a, 512 * t, ldf))
    def kmloads():
        for t in range(3):
            A('buffer_load_dwordx2 v[%d:%d], v%d, s[4:7], s39 offen offset:%d %s' % (KM + 2 * t, KM + 2 * t + 1, vKM, 256 * t, ldf))
    kxloads()
    if not flag: kmloads()
    A('s_add_u32 s25, s17, 2'); dg = dma('s25', 's36', True)
    A('v_add_u32 v3, s34, v%d' % vL16)
    seq = [(ks, mt) for ks in range(20) for mt in range(2)]
    for i in range(3):
        ks, mt = seq[i]
        A('ds_read_b128 v[%d:%d], v3 offset:%d' % (XB[i % 4], XB[i % 4] + 3, (mt * 20 + ks) * 1024))
    for i, (ks, mt) in enumerate(seq):
        if i + 3 < 40:
            k2, m2 = seq[i + 3]; b = XB[(i + 3) % 4]
            A('ds_read_b128 v[%d:%d], v3 offset:%d' % (b, b + 3, (m2 * 20 + k2) * 1024))
            A('s_waitcnt lgkmcnt(3)')
        else:
            A('s_waitcnt lgkmcnt(%d)' % (39 - i))
        b = XB[i % 4]
        for t in range(3):
            d = ACC + (mt * 3 + t) * 4; w = (t * 20 + ks) * 4
            A('v_mfma_f32_16x16x32_bf16 v[%d:%d], a[%d:%d], v[%d:%d], %s' % (d, d + 3, w, w + 3, b, b + 3, '0' if ks == 0 else 'v[%d:%d]' % (d, d + 3)))
        if i < 10:
            for x in dg.pop(0): A(x)
        if flag and i == 24:
            A('s_waitcnt vmcnt(16)'); A('s_barrier'); signal(A, 's17', 0)
    for j in range(6):
        A('v_cvt_pk_bf16_f32 v%d, v%d, v%d' % (QP + 2 * j, ACC + 4 * j, ACC + 4 * j + 1))
        A('v_cvt_pk_bf16_f32 v%d, v%d, v%d' % (QP + 2 * j + 1, ACC + 4 * j + 2, ACC + 4 * j + 3))
    def smf(kts):
        for t in range(3):
            for mt in range(2):
                for kt in kts:
                    d = SP + (mt * 3 + kt) * 4
                    a = (KX + (kt * 3 + t) * 2) if kt < 2 else (KM + 2 * t)
                    q = QP + (mt * 3 + t) * 2
                    A('v_mfma_f32_16x16x16_bf16 v[%d:%d], v[%d:%d], v[%d:%d], %s' % (d, d + 3, a, a + 1, q, q + 1, '0' if t == 0 else 'v[%d:%d]' % (d, d + 3)))
    A('s_waitcnt vmcnt(0)')
    smf((0, 1))
    if flag:
        A('s_add_u32 s41, s17, 1')
        wait_prog(A, 161, 162, 's41')
        kmloads()
        A('s_waitcnt vmcnt(0)')
    smf((2,))
    A('v_add_u32 v3, s42, v%d' % vL16)
    for j in range(6):
        A('ds_write_b128 v3, v[%d:%d] offset:%d' % (SP + 4 * j, SP + 4 * j + 3, 1024 * j))
    A('s_waitcnt lgkmcnt(0)')
    A('s_barrier')
    A('s_cmp_ge_u32 s14, 2'); A('s_cbranch_scc1 %s' % SKIP)
    A('v_add_u32 v3, s43, v%d' % vL16)
    for kt in range(3):
        for ws in range(4):
            r = RD + (kt * 4 + ws) * 4
            A('ds_read_b128 v[%d:%d], v3 offset:%d' % (r, r + 3, ws * 6144 + kt * 1024))
    S = SP
    for kt in range(3):
        A('s_waitcnt lgkmcnt(%d)' % (8 - 4 * kt))
        a = RD + kt * 16
        for h2 in range(2):
            A('v_pk_add_f32 v[%d:%d], v[%d:%d], v[%d:%d]' % (a + 2 * h2, a + 2 * h2 + 1, a + 2 * h2, a + 2 * h2 + 1, a + 4 + 2 * h2, a + 5 + 2 * h2))
            A('v_pk_add_f32 v[%d:%d], v[%d:%d], v[%d:%d]' % (a + 8 + 2 * h2, a + 9 + 2 * h2, a + 8 + 2 * h2, a + 9 + 2 * h2, a + 12 + 2 * h2, a + 13 + 2 * h2))
        for h2 in range(2):
            A('v_pk_add_f32 v[%d:%d], v[%d:%d], v[%d:%d]' % (a + 2 * h2, a + 2 * h2 + 1, a + 2 * h2, a + 2 * h2 + 1, a + 8 + 2 * h2, a + 9 + 2 * h2))
        for h2 in range(2):
            A('v_cvt_pk_bf16_f32 v%d, v%d, v%d' % (T1, a + 2 * h2, a + 2 * h2 + 1))
            A('v_lshlrev_b32 v%d, 16, v%d' % (T2, T1)); A('v_and_b32 v%d, 0xffff0000, v%d' % (T1, T1))
            A('v_mul_f32 v%d, s45, v%d' % (T2, T2)); A('v_mul_f32 v%d, s45, v%d' % (T1, T1))
            A('v_cvt_pk_bf16_f32 v%d, v%d, v%d' % (T1, T2, T1))
            A('v_lshlrev_b32 v%d, 16, v%d' % (T2, T1)); A('v_and_b32 v%d, 0xffff0000, v%d' % (T1, T1))
            b0 = (BX + 4 * kt + 2 * h2) if kt < 2 else BX + 8
            b1 = (BX + 4 * kt + 2 * h2 + 1) if kt < 2 else BX + 8
            A('v_add_f32 v%d, v%d, v%d' % (S + 4 * kt + 2 * h2, T2, b0))
            A('v_add_f32 v%d, v%d, v%d' % (S + 4 * kt + 2 * h2 + 1, T1, b1))
    A('v_max3_f32 v%d, v%d, v%d, v%d' % (T1, S, S + 1, S + 2))
    for k in range(3, 11, 2): A('v_max3_f32 v%d, v%d, v%d, v%d' % (T1, T1, S + k, S + k + 1))
    A('v_max_f32 v%d, v%d, v%d' % (T1, T1, S + 11))
    xlane(A, 'v_max_f32', T1, T2)
    for k in range(12):
        A('v_sub_f32 v%d, v%d, v%d' % (S + k, S + k, T1))
        A('v_mul_f32 v%d, s50, v%d' % (S + k, S + k))
        A('v_exp_f32 v%d, v%d' % (S + k, S + k))
    A('v_add_f32 v%d, v%d, v%d' % (T1, S, S + 1))
    for k in range(2, 12): A('v_add_f32 v%d, v%d, v%d' % (T1, T1, S + k))
    xlane(A, 'v_add_f32', T1, T2)
    A('v_rcp_f32 v%d, v%d' % (T1, T1))
    for k in range(12): A('v_mul_f32 v%d, v%d, v%d' % (S + k, S + k, T1))
    for k in range(6): A('v_cvt_pk_bf16_f32 v%d, v%d, v%d' % (RD + k, S + 2 * k, S + 2 * k + 1))
    A('s_lshl_b32 s37, s17, 16'); A('s_add_u32 s37, s37, s44')
    A('s_lshl_b32 s38, s17, 14'); A('s_add_u32 s38, s38, 0x%x' % PMF)
    A('buffer_store_dwordx4 v[%d:%d], v%d, s[4:7], s37 offen %s' % (RD, RD + 3, vL16, stf))
    A('s_mov_b64 exec, s[48:49]')
    A('buffer_store_dwordx2 v[%d:%d], v%d, s[4:7], s38 offen %s' % (RD + 4, RD + 5, vPM, stf))
    A('s_mov_b64 exec, -1')
    A.label(SKIP)
    A('s_mov_b32 s25, s34'); A('s_mov_b32 s34, s35'); A('s_mov_b32 s35, s36'); A('s_mov_b32 s36, s25')
    A('s_add_u32 s17, s17, 1')
    A('s_cmp_lt_u32 s17, s18'); A('s_cbranch_scc1 %s' % LOOP)
    A('s_waitcnt vmcnt(0)')
    if flag:
        A('s_barrier')
        signal(A, 's17', 0)

def gen_q_kernel():
    A = Asm()
    common_entry(A, 'q_kernel', 256)
    A('s_load_dwordx2 s[8:9], s[0:1], 16')
    A('s_waitcnt lgkmcnt(0)')
    srd(A, 4, 12, 13, WS_BYTES)
    A('s_lshr_b32 s26, s2, 3')
    A('s_and_b32 s17, s2, 7'); A('s_lshl_b32 s17, s17, 3'); A('s_add_u32 s18, s17, 8')
    gen_qrole(A)
    A.label('Lq_kernel_end')
    A('s_endpgm')
    return A, ('q_kernel', (256, 1, 1), 256, 147456, 512, 64, 256)

def stats_out(A, vals, vaddr, soff, t1, t2, tmp, stf=''):
    A('v_add_f32 v%d, v%d, v%d' % (t1, vals[0], vals[1]))
    A('v_mul_f32 v%d, v%d, v%d' % (t2, vals[0], vals[0]))
    A('v_fmac_f32 v%d, v%d, v%d' % (t2, vals[1], vals[1]))
    for v in vals[2:]:
        A('v_add_f32 v%d, v%d, v%d' % (t1, t1, v))
        A('v_fmac_f32 v%d, v%d, v%d' % (t2, v, v))
    xlane(A, 'v_add_f32', t1, tmp); xlane(A, 'v_add_f32', t2, tmp)
    A('s_mov_b64 exec, 0xffff')
    A('buffer_store_dwordx2 v[%d:%d], v%d, s[4:7], %s offen %s' % (t1, t2, vaddr, soff, stf))
    A('s_mov_b64 exec, -1')

def gen_c2_task(A, ldf='', stf='', dep=None):
    vL16 = 1
    ZA = 2
    ACC = 12
    BUF = [76, 116, 156]
    A('v_lshlrev_b32 v%d, 4, v0' % vL16)
    A('v_and_b32 v10, 15, v0'); A('v_lshrrev_b32 v11, 4, v0')
    A('s_lshl_b32 s20, s17, 5'); A('s_lshl_b32 s21, s14, 3'); A('s_add_u32 s20, s20, s21')
    A('s_mul_i32 s22, s20, 40'); A('s_lshl_b32 s23, s18, 3'); A('s_add_u32 s22, s22, s23'); A('s_lshl_b32 s22, s22, 10'); A('s_add_u32 s22, s22, 0x%x' % UF)
    A('s_lshl_b32 s24, s20, 11'); A('s_add_u32 s24, s24, 0x%x' % PFR)
    A('s_lshl_b32 s25, s20, 9'); A('s_add_u32 s25, s25, 0x%x' % PMF)
    A('s_lshl_b32 s27, s17, 19'); A('s_lshl_b32 s28, s14, 17'); A('s_add_u32 s27, s27, s28'); A('s_add_u32 s27, s27, 0x%x' % EXP)
    def ld(k):
        b = BUF[k % 3]; out = []
        if k < 8:
            out.append('s_add_u32 s29, s22, 4096')
            for ct in range(8):
                out.append('buffer_load_dwordx4 v[%d:%d], v%d, s[4:7], s%d offen offset:%d %s' % (b + 4 * ct, b + 4 * ct + 3, vL16, 22 if ct < 4 else 29, 1024 * (ct % 4), ldf))
            for mt in range(2):
                out.append('buffer_load_dwordx4 v[%d:%d], v%d, s[4:7], s24 offen offset:%d %s' % (b + 32 + 4 * mt, b + 35 + 4 * mt, vL16, 1024 * mt, ldf))
            out.append('s_add_u32 s22, s22, 40960'); out.append('s_add_u32 s24, s24, 2048')
        else:
            for ct in range(8):
                out.append('buffer_load_dwordx4 v[%d:%d], v%d, s[4:7], s27 offen offset:%d %s' % (b + 4 * ct, b + 4 * ct + 3, ZA + ct, 1536 * (k - 8), ldf))
            for mt in range(2):
                out.append('buffer_load_dwordx4 v[%d:%d], v%d, s[4:7], s25 offen offset:%d %s' % (b + 32 + 4 * mt, b + 35 + 4 * mt, vL16, 2048 * (k - 8) + 1024 * mt, ldf))
        return out
    if dep: dep()
    for k in range(2):
        for x in ld(k): A(x)
    t0, t1, t2, t3 = 196, 197, 198, 199
    for ct in range(8):
        A('s_lshl_b32 s29, s18, 4'); A('s_add_u32 s29, s29, %d' % ((ct >> 1) * 4))
        A('v_lshrrev_b32 v%d, 2, v10' % t0); A('v_add_u32 v%d, s29, v%d' % (t0, t0))
        A('v_mul_u32_u24 v%d, 0x3334, v%d' % (t1, t0)); A('v_lshrrev_b32 v%d, 16, v%d' % (t1, t1))
        A('v_mul_u32_u24 v%d, 5, v%d' % (t2, t1)); A('v_sub_u32 v%d, v%d, v%d' % (t2, t0, t2))
        A('v_cmp_lt_u32 vcc, 2, v%d' % t2)
        A('v_cndmask_b32 v%d, 0, 1, vcc' % t3)
        A('v_lshl_add_u32 v%d, v%d, 1, v%d' % (t1, t1, t3))
        A('v_mul_u32_u24 v%d, 3, v%d' % (t3, t3)); A('v_sub_u32 v%d, v%d, v%d' % (t2, t2, t3))
        A('v_lshlrev_b32 v%d, 12, v%d' % (ZA + ct, t1))
        A('v_lshl_add_u32 v%d, v%d, 7, v%d' % (ZA + ct, t2, ZA + ct))
        A('v_and_b32 v%d, 3, v10' % t3); A('v_lshl_add_u32 v%d, v%d, 4, v%d' % (ZA + ct, t3, ZA + ct))
        A('v_mul_u32_u24 v%d, 384, v11' % t3); A('v_add_u32 v%d, v%d, v%d' % (ZA + ct, ZA + ct, t3))
        if ct & 1: A('v_add_u32 v%d, 64, v%d' % (ZA + ct, ZA + ct))
    for k in range(10):
        if k + 2 < 10:
            for x in ld(k + 2): A(x)
            A('s_waitcnt vmcnt(20)')
        else:
            A('s_waitcnt vmcnt(%d)' % (10 * (9 - k)))
        b = BUF[k % 3]
        for ct in range(8):
            for mt in range(2):
                d = ACC + (ct * 2 + mt) * 4
                A('v_mfma_f32_16x16x32_bf16 v[%d:%d], v[%d:%d], v[%d:%d], %s' % (d, d + 3, b + 4 * ct, b + 4 * ct + 3, b + 32 + 4 * mt, b + 35 + 4 * mt, '0' if k == 0 else 'v[%d:%d]' % (d, d + 3)))
    XR = 200
    A('s_lshl_b32 s29, s18, 2'); A('s_add_u32 s29, s29, s14')
    A('v_mul_u32_u24 v%d, 1280, v10' % t0); A('v_lshl_add_u32 v%d, v11, 3, v%d' % (t0, t0))
    A('s_mul_i32 s30, s17, %d' % (32 * 1280)); A('s_lshl_b32 s31, s29, 6'); A('s_add_u32 s30, s30, s31'); A('s_add_u32 s31, s30, %d' % (16 * 1280))
    for mt in range(2):
        for a in range(2):
            A('buffer_load_dwordx2 v[%d:%d], v%d, s[8:11], s%d offen offset:%d' % (XR + 4 * mt + 2 * a, XR + 4 * mt + 2 * a + 1, t0, 30 + mt, 32 * a))
    A('s_lshl_b32 s32, s14, 14')
    A('v_add_u32 v%d, s32, v%d' % (t1, vL16))
    for j in range(16):
        A('ds_write_b128 v%d, v[%d:%d] offset:%d' % (t1, ACC + 4 * j, ACC + 4 * j + 3, 1024 * j))
    A('s_waitcnt lgkmcnt(0)')
    A('s_barrier')
    A('s_lshl_b32 s32, s14, 12')
    A('v_add_u32 v%d, s32, v%d' % (t1, vL16))
    RD = 76
    for j in range(4):
        for ws in range(4):
            r = RD + (j * 4 + ws) * 4
            A('ds_read_b128 v[%d:%d], v%d offset:%d' % (r, r + 3, t1, ws * 16384 + j * 1024))
    for j in range(4):
        A('s_waitcnt lgkmcnt(%d)' % (12 - 4 * j))
        a = RD + j * 16
        for h2 in range(2):
            A('v_pk_add_f32 v[%d:%d], v[%d:%d], v[%d:%d]' % (a + 2 * h2, a + 2 * h2 + 1, a + 2 * h2, a + 2 * h2 + 1, a + 4 + 2 * h2, a + 5 + 2 * h2))
            A('v_pk_add_f32 v[%d:%d], v[%d:%d], v[%d:%d]' % (a + 8 + 2 * h2, a + 9 + 2 * h2, a + 8 + 2 * h2, a + 9 + 2 * h2, a + 12 + 2 * h2, a + 13 + 2 * h2))
        for h2 in range(2):
            A('v_pk_add_f32 v[%d:%d], v[%d:%d], v[%d:%d]' % (a + 2 * h2, a + 2 * h2 + 1, a + 2 * h2, a + 2 * h2 + 1, a + 8 + 2 * h2, a + 9 + 2 * h2))
    A('s_waitcnt vmcnt(0)')
    A('v_mul_u32_u24 v%d, 160, v10' % t2)
    HP = 12
    for mt in range(2):
        for a in range(2):
            for h2 in range(2):
                src = RD + (a * 2 + mt) * 16 + 2 * h2; xr = XR + 4 * mt + 2 * a + h2; f = 20 + 4 * a + 2 * h2
                A('v_cvt_pk_bf16_f32 v28, v%d, v%d' % (src, src + 1))
                A('v_lshlrev_b32 v29, 16, v28'); A('v_and_b32 v28, 0xffff0000, v28')
                A('v_lshlrev_b32 v30, 16, v%d' % xr); A('v_and_b32 v31, 0xffff0000, v%d' % xr)
                A('v_add_f32 v29, v29, v30'); A('v_add_f32 v28, v28, v31')
                pk = HP + 4 * mt + 2 * a + h2
                A('v_cvt_pk_bf16_f32 v%d, v29, v28' % pk)
                A('v_lshlrev_b32 v%d, 16, v%d' % (f, pk)); A('v_and_b32 v%d, 0xffff0000, v%d' % (f + 1, pk))
        A('s_lshl_b32 s30, s17, 1'); A('s_add_u32 s30, s30, %d' % mt)
        A('s_mul_i32 s31, s30, 20'); A('s_add_u32 s31, s31, s29'); A('s_lshl_b32 s31, s31, 10'); A('s_add_u32 s31, s31, 0x%x' % HF)
        A('buffer_store_dwordx4 v[%d:%d], v%d, s[4:7], s31 offen %s' % (HP + 4 * mt, HP + 4 * mt + 3, vL16, stf))
        A('s_mul_i32 s30, s30, 2560'); A('s_lshl_b32 s31, s29, 3'); A('s_add_u32 s30, s30, s31'); A('s_add_u32 s30, s30, 0x%x' % ST1)
        stats_out(A, list(range(20, 28)), t2, 's30', 32 + 2 * mt, 33 + 2 * mt, 28, stf)

def gen_c2_kernel():
    A = Asm()
    common_entry(A, 'c2_kernel', 320)
    A('s_load_dwordx2 s[40:41], s[0:1], 0')
    A('s_waitcnt lgkmcnt(0)')
    srd(A, 4, 12, 13, WS_BYTES); srd(A, 8, 40, 41, 2048 * 1280)
    A('s_mul_i32 s17, s2, 0x3334'); A('s_lshr_b32 s17, s17, 16'); A('s_mul_i32 s18, s17, 5'); A('s_sub_u32 s18, s2, s18')
    gen_c2_task(A)
    A.label('Lc2_kernel_end')
    A('s_endpgm')
    return A, ('c2_kernel', (320, 1, 1), 256, 65536, 208, 64, 208)
```

```python
from dsl import *
from layout import *
import struct
def f32bits(x): return struct.unpack('<I', struct.pack('<f', x))[0]

def srd(A, d, lo, hi, nbytes):
    A('s_mov_b32 s%d, s%d' % (d, lo)); A('s_and_b32 s%d, s%d, 0xffff' % (d + 1, hi))
    A('s_mov_b32 s%d, 0x%x' % (d + 2, nbytes)); A('s_mov_b32 s%d, 0x20000' % (d + 3))

def rnd_bf16(A, v, tmp=None):
    A('v_cvt_pk_bf16_f32 v%d, v%d, v%d' % (v, v, v))
    A('v_lshlrev_b32 v%d, 16, v%d' % (v, v))

N_LN, N_PK, N_INIT = 128, 170, 96
N_B = 0
PREP_GRID = N_B + N_LN + N_PK + N_INIT + 2

def gen_prep():
    A = Asm()
    A.raw(kernel_header('prep_kernel'))
    A('s_cmp_ge_u32 s2, %d' % PREP_GRID); A('s_cbranch_scc1 Lprep_end')
    A('s_load_dwordx4 s[8:11], s[0:1], 0')
    A('s_load_dwordx8 s[16:23], s[0:1], 64')
    A('s_load_dwordx2 s[12:13], s[0:1], 112')
    A('v_lshrrev_b32 v1, 6, v0'); A('v_readfirstlane_b32 s14, v1')
    A('v_and_b32 v2, 63, v0')
    A('s_waitcnt lgkmcnt(0)')
    srd(A, 4, 12, 13, WS_BYTES)
    A('s_cmp_lt_u32 s2, %d' % N_LN); A('s_cbranch_scc1 Lprep_ln')
    A('s_cmp_lt_u32 s2, %d' % (N_LN + N_PK)); A('s_cbranch_scc1 Lprep_pk')
    A('s_cmp_lt_u32 s2, %d' % (N_LN + N_PK + N_INIT)); A('s_cbranch_scc1 Lprep_init')
    A('s_cmp_eq_u32 s2, %d' % (N_LN + N_PK + N_INIT)); A('s_cbranch_scc1 Lprep_mem')
    A('s_mov_b64 exec, 1')
    A('s_lshl_b32 s26, s14, 10')
    A('s_add_u32 s27, s26, 0x%x' % (E2 + 0x100000)); A('v_mov_b32 v3, s27'); A('v_add_u32 v4, 0x2000, v3')
    A('s_mov_b32 s24, -1'); A('s_mov_b32 s25, -1')
    A('s_mov_b32 s26, 0')
    A.label('Lprep_cal')
    for vr, sb in ((3, 24), (4, 25)):
        A('buffer_store_dword v2, v%d, s[4:7], 0 offen sc1' % vr)
        A('s_waitcnt vmcnt(0)')
        A('s_memtime s[28:29]')
        A('s_waitcnt lgkmcnt(0)')
        A('buffer_load_dword v5, v%d, s[4:7], 0 offen sc1' % vr)
        A('s_waitcnt vmcnt(0)')
        A('s_memtime s[30:31]')
        A('s_waitcnt lgkmcnt(0)')
        A('s_sub_u32 s27, s30, s28')
        A('s_min_u32 s%d, s%d, s27' % (sb, sb))
    A('s_add_u32 s26, s26, 1'); A('s_cmp_lt_u32 s26, 3'); A('s_cbranch_scc1 Lprep_cal')
    A('v_mov_b32 v6, s24'); A('v_mov_b32 v7, s25'); A('s_lshl_b32 s26, s14, 3'); A('v_mov_b32 v5, s26')
    A('ds_write_b64 v5, v[6:7]')
    A('s_waitcnt lgkmcnt(0)')
    A('s_barrier')
    A('s_cmp_lg_u32 s14, 0'); A('s_cbranch_scc1 Lprep_end')
    A('v_mov_b32 v5, 0'); A('ds_read_b128 v[8:11], v5'); A('ds_read_b128 v[12:15], v5 offset:16')
    A('s_waitcnt lgkmcnt(0)')
    A('v_min_u32 v8, v8, v10'); A('v_min3_u32 v8, v8, v12, v14'); A('v_min_u32 v9, v9, v11'); A('v_min3_u32 v9, v9, v13, v15')
    A('v_readfirstlane_b32 s24, v8'); A('v_readfirstlane_b32 s25, v9')
    A('s_cmp_lt_u32 s25, s24'); A('s_cselect_b32 s26, 8192, 0')
    A('s_getreg_b32 s27, hwreg(HW_REG_XCC_ID)'); A('s_and_b32 s27, s27, 4'); A('s_lshl_b32 s27, s27, 11')
    A('s_xor_b32 s26, s26, s27')
    A('v_mov_b32 v5, s26'); A('v_mov_b32 v3, 0x%x' % CTL)
    A('buffer_store_dword v5, v3, s[4:7], 0 offen')
    A('s_branch Lprep_end')
    A.label('Lprep_mem')
    srd(A, 24, 10, 11, 10240)
    for k in range(5):
        A('v_add_u32 v3, %d, v0' % (256 * k))
        A('v_mul_u32_u24 v4, 0x199a, v3'); A('v_lshrrev_b32 v4, 20, v4')
        A('v_mul_u32_u24 v5, 160, v4'); A('v_sub_u32 v5, v3, v5')
        A('v_lshlrev_b32 v6, 3, v3')
        A('buffer_load_dwordx2 v[8:9], v6, s[24:27], 0 offen')
        A('v_lshrrev_b32 v6, 3, v5'); A('v_lshlrev_b32 v7, 9, v6')
        A('v_and_b32 v6, 3, v5'); A('v_lshl_add_u32 v7, v6, 7, v7')
        A('v_lshl_add_u32 v7, v4, 4, v7')
        A('v_bfe_u32 v6, v5, 2, 1'); A('v_lshl_add_u32 v7, v6, 3, v7')
        A('s_waitcnt vmcnt(0)')
        for G in range(4):
            A('s_mov_b32 s28, 0x%x' % (MEMF + G * 10240))
            A('buffer_store_dwordx2 v[8:9], v7, s[4:7], s28 offen')
    A('s_branch Lprep_end')
    A.label('Lprep_init')
    A('s_sub_u32 s24, s2, %d' % (N_LN + N_PK))
    A('s_lshl_b32 s25, s24, 14')
    A('s_add_u32 s26, s25, 0x%x' % E1)
    A('s_cmp_ge_u32 s24, 20'); A('s_cselect_b32 s27, 0x%x, 0' % ((MEMF + MEM_SLOT - 20 * 16384 - E1) & 0xffffffff)); A('s_add_u32 s26, s26, s27')
    A('s_cmp_ge_u32 s24, 28'); A('s_cselect_b32 s27, 0x%x, 0' % ((E2 - 28 * 16384 - (MEMF + MEM_SLOT - 20 * 16384)) & 0xffffffff)); A('s_add_u32 s26, s26, s27')
    A('v_mov_b32 v4, -1')
    A('s_cmp_ge_u32 s24, 92'); A('s_cselect_b32 s27, 0x%x, 0' % ((CTL + 0x1000 - 92 * 16384 - (E2 - 28 * 16384)) & 0xffffffff)); A('s_add_u32 s26, s26, s27')
    A('s_cselect_b32 s28, 0, -1' if False else 's_cmp_ge_u32 s24, 92'); A('s_cselect_b32 s28, 0, -1')
    A('v_mov_b32 v4, s28'); A('v_mov_b32 v5, s28'); A('v_mov_b32 v6, s28'); A('v_mov_b32 v7, s28')
    A('v_lshlrev_b32 v3, 4, v0')
    for k in range(4):
        A('buffer_store_dwordx4 v[4:7], v3, s[4:7], s26 offen')
        if k < 3: A('s_add_u32 s26, s26, 4096')
    A('s_branch Lprep_end')
    A.label('Lprep_pk')
    A('s_sub_u32 s24, s2, %d' % N_LN); A('s_lshl_b32 s24, s24, 2'); A('s_add_u32 s24, s24, s14')
    A('s_mov_b32 s26, s16'); A('s_mov_b32 s27, s17'); A('s_mov_b32 s28, 5'); A('s_mov_b32 s29, 1280'); A('s_mov_b32 s30, 20'); A('s_mov_b32 s31, 0x%x' % W1F)
    for lo, p, ncb, rb, KS, dst in ((100, 18, 5, 1280, 20, W2F), (200, 20, 12, 3072, 20, W3F), (440, 22, 5, 1280, 48, W4F)):
        L = A.uniq('Lpk')
        A('s_cmp_lt_u32 s24, %d' % lo); A('s_cbranch_scc1 Lprep_pk_go')
        A('s_mov_b32 s26, s%d' % p); A('s_mov_b32 s27, s%d' % (p + 1)); A('s_mov_b32 s28, %d' % ncb); A('s_mov_b32 s29, %d' % rb)
        A('s_mov_b32 s30, %d' % KS); A('s_mov_b32 s31, 0x%x' % dst); A('s_mov_b32 s25, %d' % lo)
    A.label('Lprep_pk_go')
    A('s_cmp_lt_u32 s24, 100'); A('s_cselect_b32 s25, 0, s25')
    A('s_sub_u32 s24, s24, s25')
    A('s_movk_i32 s32, 0x1556'); A('s_cmp_eq_u32 s28, 5'); A('s_cselect_b32 s32, 0x3334, s32')
    A('s_mul_i32 s33, s24, s32'); A('s_lshr_b32 s33, s33, 16')
    A('s_mul_i32 s34, s33, s28'); A('s_sub_u32 s34, s24, s34')
    A('s_mul_i32 s35, s33, s29'); A('s_lshl_b32 s35, s35, 5'); A('s_lshl_b32 s36, s34, 8'); A('s_add_u32 s35, s35, s36')
    A('s_add_u32 s26, s26, s35'); A('s_addc_u32 s27, s27, 0')
    A('v_lshrrev_b32 v3, 4, v2'); A('v_mul_lo_u32 v3, v3, s29'); A('v_and_b32 v4, 15, v2'); A('v_lshl_add_u32 v3, v4, 4, v3')
    A('s_lshl_b32 s37, s14, 13')
    A('s_lshl_b32 s38, s29, 2')
    for k in range(8):
        A('s_add_u32 m0, s37, %d' % (1024 * k))
        A('global_load_lds_dwordx4 v3, s[26:27]')
        if k < 7: A('v_add_u32 v3, s38, v3')
    A('v_lshrrev_b32 v5, 4, v2'); A('v_bfe_u32 v6, v2, 2, 2'); A('v_lshl_add_u32 v5, v5, 2, v6'); A('v_lshlrev_b32 v5, 8, v5')
    A('v_and_b32 v6, 3, v2'); A('v_lshl_add_u32 v5, v6, 3, v5'); A('v_add_u32 v5, s37, v5')
    A('s_lshl_b32 s35, s34, 3'); A('s_mul_i32 s35, s35, s30'); A('s_add_u32 s35, s35, s33'); A('s_lshl_b32 s35, s35, 10'); A('s_add_u32 s35, s35, s31')
    A('s_lshl_b32 s36, s30, 10')
    A('v_lshlrev_b32 v7, 4, v2')
    A('s_waitcnt vmcnt(0)')
    for nt in range(8):
        for a in range(2):
            A('ds_read_b64_tr_b16 v[%d:%d], v5 offset:%d' % (8 + 4 * nt + 2 * a, 9 + 4 * nt + 2 * a, a * 4096 + nt * 32))
    for nt in range(8):
        A('s_waitcnt lgkmcnt(%d)' % (14 - 2 * nt))
        A('buffer_store_dwordx4 v[%d:%d], v7, s[4:7], s35 offen' % (8 + 4 * nt, 11 + 4 * nt))
        if nt < 7: A('s_add_u32 s35, s35, s36')
    A('s_branch Lprep_end')
    A.label('Lprep_ln')
    srd(A, 24, 8, 9, 2048 * 1280)
    A('v_lshrrev_b32 v3, 4, v0')
    A('v_and_b32 v4, 15, v0')
    A('v_mul_u32_u24 v5, 1280, v3'); A('v_lshl_add_u32 v5, v4, 4, v5')
    A('s_mul_i32 s28, s2, %d' % (16 * 1280))
    X = 8
    F = 28
    for k in range(5):
        A('buffer_load_dwordx4 v[%d:%d], v5, s[24:27], s28 offen offset:%d' % (X + 4 * k, X + 4 * k + 3, 256 * k))
    A('v_lshrrev_b32 v6, 2, v4'); A('v_lshlrev_b32 v6, 10, v6')
    A('v_and_b32 v7, 1, v4'); A('v_lshl_add_u32 v6, v7, 9, v6')
    A('v_lshl_add_u32 v6, v3, 4, v6')
    A('v_bfe_u32 v7, v4, 1, 1'); A('v_lshl_add_u32 v6, v7, 3, v6')
    A('s_mul_i32 s29, s2, 20480'); A('s_add_u32 s29, s29, 0x%x' % XNF)
    A('s_waitcnt vmcnt(0)')
    for k in range(20):
        A('v_lshlrev_b32 v%d, 16, v%d' % (F + 2 * k, X + k))
        A('v_and_b32 v%d, 0xffff0000, v%d' % (F + 2 * k + 1, X + k))
    def rowsum(acc):
        for sh in (8, 4, 2, 1):
            A('v_add_f32_dpp v%d, v%d, v%d row_ror:%d row_mask:0xf bank_mask:0xf' % (acc, acc, acc, sh))
    A('v_pk_add_f32 v[68:69], v[%d:%d], v[%d:%d]' % (F, F + 1, F + 2, F + 3))
    for k in range(2, 20):
        A('v_pk_add_f32 v[68:69], v[68:69], v[%d:%d]' % (F + 2 * k, F + 2 * k + 1))
    A('v_add_f32 v68, v68, v69')
    rowsum(68)
    A('v_mul_f32 v68, 0x%08x, v68' % f32bits(1.0 / 640))
    A('v_mov_b32 v70, 0')
    for k in range(40):
        A('v_sub_f32 v71, v%d, v68' % (F + k))
        A('v_fmac_f32 v70, v71, v71')
    rowsum(70)
    A('v_mul_f32 v70, 0x%08x, v70' % f32bits(1.0 / 640))
    rnd_bf16(A, 68); rnd_bf16(A, 70)
    A('v_add_f32 v70, 0x%08x, v70' % f32bits(1e-5)); rnd_bf16(A, 70)
    A('v_sqrt_f32 v70, v70'); rnd_bf16(A, 70)
    A('v_rcp_f32 v70, v70')
    for k in range(20):
        A('v_sub_f32 v%d, v%d, v68' % (F + 2 * k, F + 2 * k))
        A('v_sub_f32 v%d, v%d, v68' % (F + 2 * k + 1, F + 2 * k + 1))
        A('v_cvt_pk_bf16_f32 v72, v%d, v%d' % (F + 2 * k, F + 2 * k + 1))
        A('v_lshlrev_b32 v73, 16, v72'); A('v_and_b32 v74, 0xffff0000, v72')
        A('v_mul_f32 v73, v73, v70'); A('v_mul_f32 v74, v74, v70')
        A('v_cvt_pk_bf16_f32 v%d, v73, v74' % (X + k))
    for k in range(5):
        A('buffer_store_dwordx2 v[%d:%d], v6, s[4:7], s29 offen' % (X + 4 * k, X + 4 * k + 1))
        A('buffer_store_dwordx2 v[%d:%d], v6, s[4:7], s29 offen offset:256' % (X + 4 * k + 2, X + 4 * k + 3))
        if k < 4: A('s_add_u32 s29, s29, 4096')
    A.label('Lprep_end')
    A('s_endpgm')
    return A, ('prep_kernel', (PREP_GRID, 1, 1), 256, 32768, 96, 48, 96)

def build(parts, path):
    hdr = ''
    seen = {}
    for A, (name, grid, block, lds, vg, sg, ac) in parts:
        hdr += '; @launch kernel=%s grid=(%d,%d,%d) block=(%d,1,1) lds=%d\n' % (name, grid[0], grid[1], grid[2], block, lds)
    out = hdr + '.amdgcn_target "amdgcn-amd-amdhsa--gfx950"\n.text\n'
    desc = '.section .rodata,"a"\n'
    for A, (name, grid, block, lds, vg, sg, ac) in parts:
        if name in seen: continue
        seen[name] = 1
        out += A.text()
        desc += kernel_desc(name, vg, sg, ac)
    open(path, 'w').write(out + desc)

if __name__ == '__main__':
    build([gen_prep()], 'prep.s')
```

```python
from dsl import *
from layout import *
from gen_roles import wait_prog, trace, TRACE
from gen_rec8 import check_regs, tight_poll, nan_guard, emit_ool, OOL, f32bits
import gen_rec8
import math
NSTEP = 64
OPT = gen_rec8.OPT
lstore = gen_rec8.lstore

def gen_rec(A, stamp=False):
    upf = OPT.get('upf', '')
    QKP, MEMS, OUTP, EXPL = 0, 12288, 22528, 25600
    vT, vT2 = 1, 2
    (vL16, vGI, vQW, vE1W, vE1R, vKX, vU0, vU1, vOW, vE2, vMW, vKM, vZ0, vZ2, vEXP, vVW, vVP, vVR, vFLG) = range(3, 22)
    SEL0, SEL1, SEL2, SENT = 244, 248, 240, 252
    MF, DQK, DV = 24, 44, 68
    R0 = [80, 84, 88, 92]; R1 = [96, 100, 44, 48]
    XP, KX, UFr = 104, 110, 116
    E1R = 80; SD = 44; PX = 56; PXR = 80; PM = 60; ZT = 62; DO = 68
    MBB = [56, 60, 100, 132]
    SS = 64
    WQK = 136
    FINE = OPT['fine'].split(',') if OPT.get('fine') else None
    SB = 72
    def st(i):
        if stamp and (FINE is None or i == 0): A('s_memtime s[%d:%d]' % (SB + 2 * i, SB + 1 + 2 * i))
    def fs(name):
        if stamp and FINE and name in FINE:
            i = 1 + FINE.index(name); A('s_memtime s[%d:%d]' % (SB + 2 * i, SB + 1 + 2 * i))
    vN, vG, vI = 44, 45, 46
    t0, t1, t2, t3, t4 = 47, 48, 49, 50, 51
    A('v_and_b32 v%d, 15, v0' % vN); A('v_lshrrev_b32 v%d, 4, v0' % vG); A('v_and_b32 v%d, 7, v0' % vI)
    A('s_lshr_b32 s18, s16, 2'); A('s_and_b32 s19, s16, 3')
    A('s_lshl_b32 s26, s15, 3'); A('s_add_u32 s26, s26, s18')
    A('s_mov_b32 s20, 0x00ff00ff'); A('s_mov_b32 s21, 0x00ff00ff')
    A('s_mov_b32 s22, 0xff00ff00'); A('s_mov_b32 s23, 0xff00ff00')
    A('s_and_b32 s18, s16, 1')
    A('s_mov_b32 s24, -1'); A('s_cmp_eq_u32 s18, 0'); A('s_cselect_b32 s25, 0xffff, 0')
    A('s_mov_b32 s38, 0'); A('s_mov_b32 s39, 0x00ff00ff')
    A('s_mov_b32 s40, 0x00ff00ff'); A('s_mov_b32 s41, 0')
    if not OPT.get('fused'):
        A('s_mov_b32 s30, 0'); A('s_mov_b32 s31, 0x80000')
    A('s_mov_b32 s48, 0x%08x' % f32bits((192 ** -0.5) * math.log2(math.e)))
    A('v_lshlrev_b32 v%d, 4, v0' % vL16)
    A('s_mul_i32 s27, s14, 30720')
    for k in range(3):
        A('v_add_u32 v%d, %d, v0' % (t0, 64 * k))
        A('v_mul_u32_u24 v%d, 0x2aab, v%d' % (t1, t0)); A('v_lshrrev_b32 v%d, 16, v%d' % (t1, t1))
        A('v_mul_u32_u24 v%d, 6, v%d' % (t2, t1)); A('v_sub_u32 v%d, v%d, v%d' % (t2, t0, t2))
        A('v_mul_u32_u24 v%d, 12288, v%d' % (t1, t1)); A('v_lshl_add_u32 v%d, v%d, 4, v%d' % (70 + k, t2, t1))
    A('s_mul_i32 s34, s14, %d' % (160 * 12288)); A('s_mul_i32 s35, s26, 384'); A('s_add_u32 s34, s34, s35')
    A('s_mul_i32 s35, s19, 96'); A('s_add_u32 s34, s34, s35')
    def wdma(mat, buf):
        b = 64 + 2 * mat
        A('s_add_u32 s32, s%d, s34' % b); A('s_addc_u32 s33, s%d, 0' % (b + 1))
        for grp in range(5):
            for k in range(3):
                A('s_add_u32 m0, s27, %d' % (buf * 15360 + (grp * 3 + k) * 1024))
                A('global_load_lds_dwordx4 v%d, s[32:33]' % (70 + k))
            if grp < 4:
                A('s_add_u32 s32, s32, %d' % (32 * 12288)); A('s_addc_u32 s33, s33, 0')
    wdma(0, 0); wdma(1, 1)
    A('s_lshr_b32 s28, s16, 1'); A('s_mul_i32 s28, s28, 5'); A('s_mul_i32 s29, s18, 3'); A('s_add_u32 s28, s28, s29')
    A('s_sub_u32 s45, 2, s18'); A('s_add_u32 s45, s45, s28')
    A('s_lshl_b32 s29, s15, 3'); A('s_lshl_b32 s35, s14, 1'); A('s_add_u32 s29, s29, s35')
    def col_parts(vx, dst):
        A('v_lshrrev_b32 v%d, 3, v%d' % (t3, vx)); A('v_add_u32 v%d, s28, v%d' % (t3, t3)); A('v_min_u32 v%d, s45, v%d' % (t3, t3))
        A('v_lshrrev_b32 v%d, 2, v%d' % (t1, t3)); A('v_lshlrev_b32 v%d, 1, v%d' % (t1, t1))
        A('v_bfe_u32 v%d, v%d, 2, 1' % (t2, vx)); A('v_add_u32 v%d, v%d, v%d' % (t1, t1, t2))
        A('v_and_b32 v%d, 3, v%d' % (t3, t3)); A('v_and_b32 v%d, 3, v%d' % (t2, vx)); A('v_lshl_add_u32 v%d, v%d, 2, v%d' % (t2, t3, t2))
        A('v_lshlrev_b32 v%d, 10, v%d' % (dst, t1)); A('v_lshl_add_u32 v%d, v%d, 4, v%d' % (dst, t2, dst))
        A('v_lshl_add_u32 v%d, v%d, 8, v%d' % (dst, vG, dst))
        A('s_mul_i32 s35, s29, 40960'); A('v_add_u32 v%d, s35, v%d' % (dst, dst))
    col_parts(vN, vU0)
    A('v_add_u32 v%d, 16, v%d' % (t0, vI)); col_parts(t0, vU1)
    A('v_lshrrev_b32 v%d, 3, v%d' % (t4, vN)); A('v_mul_u32_u24 v%d, 40960, v%d' % (t3, t4))
    A('v_add_u32 v74, v%d, v%d' % (vU1, t3)); A('v_add_u32 v73, 40960, v%d' % vU0)
    if OPT.get('bwait'):
        A('s_lshl_b32 s35, s15, 7'); A('s_add_u32 s35, s35, 0x%x' % BCNT); A('v_mov_b32 v76, s35')
        if TRACE[0]:
            A('s_mov_b64 exec, 1'); trace(A, '100', 78, 79); A('s_mov_b64 exec, -1')
        wait_prog(A, 76, 77, '32')
        if TRACE[0]:
            A('s_mov_b64 exec, 1'); trace(A, '101', 78, 79); A('s_mov_b64 exec, -1')
    A('s_mul_i32 s37, s14, 5')
    for kk in range(20):
        A('s_add_u32 s35, s37, %d' % kk)
        A('s_cmp_ge_u32 s35, 20'); A('s_cselect_b32 s36, 20, 0'); A('s_sub_u32 s35, s35, s36')
        A('s_mul_i32 s35, s35, %d' % SEG_UF); A('s_add_u32 s35, s35, %d' % BF)
        for T, va in ((0, vU0), (1, 73), (2, 74)):
            r = T * 80 + kk * 4
            A('buffer_load_dwordx4 a[%d:%d], v%d, s[4:7], s35 offen %s' % (r, r + 3, va, upf))
    A('v_lshlrev_b32 v%d, 4, v%d' % (t1, vI)); A('v_lshl_add_u32 v%d, v%d, 7, v%d' % (vGI, vG, t1))
    A('s_mul_i32 s46, s14, 2560'); A('s_mul_i32 s35, s15, 10240'); A('s_add_u32 s46, s46, s35')
    A('s_mul_i32 s35, s14, 768'); A('s_add_u32 s36, s35, %d' % OUTP); A('v_add_u32 v%d, s36, v%d' % (vOW, vGI))
    A('s_mul_i32 s36, s14, 3072'); A('v_add_u32 v%d, s36, v%d' % (vQW, vL16))
    A('v_lshrrev_b32 v%d, 3, v%d' % (t4, vN))
    A('s_add_u32 s36, s35, %d' % EXPL)
    A('v_lshlrev_b32 v%d, 4, v%d' % (vZ0, vN)); A('v_and_b32 v%d, 1, v%d' % (t2, vG)); A('v_lshl_add_u32 v%d, v%d, 3, v%d' % (vZ0, t2, vZ0))
    A('v_lshrrev_b32 v%d, 1, v%d' % (t3, vG)); A('v_lshl_add_u32 v%d, v%d, 2, v%d' % (vZ0, t3, vZ0)); A('v_add_u32 v%d, s36, v%d' % (vZ0, vZ0))
    A('v_lshl_add_u32 v%d, v%d, 8, v%d' % (vZ2, t4, vZ0)); A('v_add_u32 v%d, 256, v%d' % (vZ2, vZ2))
    A('v_lshl_add_u32 v%d, v%d, 3, v%d' % (vE1W, t2, t1)); A('v_lshl_add_u32 v%d, v%d, 7, v%d' % (vE1W, t3, vE1W))
    A('s_sub_u32 s35, s14, 1'); A('s_lshl_b32 s35, s35, 8'); A('s_cmp_eq_u32 s14, 0'); A('s_cselect_b32 s35, 384, s35')
    A('s_cmp_eq_u32 s14, 3'); A('s_cselect_b32 s35, 0, s35')
    A('s_mul_i32 s36, s16, 640'); A('s_add_u32 s35, s35, s36'); A('s_mul_i32 s36, s15, %d' % E1_G); A('s_add_u32 s35, s35, s36')
    A('v_add_u32 v%d, s35, v%d' % (vE1W, vE1W))
    A('v_lshl_add_u32 v%d, v%d, 2, v%d' % (t3, t4, vG)); A('v_mul_u32_u24 v%d, 640, v%d' % (t3, t3)); A('v_add_u32 v%d, v%d, v%d' % (vE1R, t3, t1))
    A('s_mul_i32 s35, s14, 5120'); A('s_add_u32 s35, s35, s36'); A('v_add_u32 v%d, s35, v%d' % (vE1R, vE1R))
    A('v_lshlrev_b32 v%d, 3, v%d' % (t2, vI)); A('v_lshl_add_u32 v%d, v%d, 6, v%d' % (t2, vG, t2))
    A('v_add_u32 v%d, %d, v%d' % (vKM, EXPL + 3072, t2))
    A('s_lshl_b32 s35, s15, 5'); A('s_add_u32 s35, s35, s16'); A('s_mul_i32 s36, s35, 768')
    A('v_lshl_add_u32 v%d, v%d, 8, v%d' % (vVP, t4, t2)); A('v_add_u32 v%d, s36, v%d' % (vVP, vVP))
    A('s_lshl_b32 s36, s35, 12'); A('v_add_u32 v%d, s36, v%d' % (vEXP, vL16))
    A('s_lshl_b32 s36, s35, 2'); A('s_add_u32 s36, s36, 0x%x' % PROG_R); A('v_mov_b32 v%d, s36' % vFLG)
    A('v_mul_u32_u24 v%d, 3072, v%d' % (vVR, t4)); A('v_add_u32 v%d, v%d, v%d' % (vVR, vVR, t2))
    A('s_mul_i32 s35, s15, %d' % (32 * 768)); A('s_mul_i32 s36, s14, 6144'); A('s_add_u32 s35, s35, s36'); A('v_add_u32 v%d, s35, v%d' % (vVR, vVR))
    A('s_sub_u32 s35, s14, 1'); A('s_and_b32 s35, s35, 1'); A('s_mul_i32 s35, s35, 384')
    A('s_mul_i32 s36, s26, 12'); A('s_add_u32 s35, s35, s36'); A('s_mul_i32 s37, s19, 3'); A('s_add_u32 s35, s35, s37'); A('s_lshl_b32 s35, s35, 9')
    A('v_lshlrev_b32 v%d, 3, v0' % vKX); A('v_add_u32 v%d, s35, v%d' % (vKX, vKX))
    A('s_lshr_b32 s35, s16, 1'); A('s_lshl_b32 s35, s35, 14'); A('s_lshl_b32 s36, s18, 12'); A('s_add_u32 s35, s35, s36'); A('s_add_u32 s35, s35, s44')
    A('v_add_u32 v%d, s35, v%d' % (vE2, vL16))
    A('v_add_u32 v%d, s28, v%d' % (t3, vG)); A('v_min_u32 v%d, s45, v%d' % (t3, t3)); A('v_lshl_add_u32 v%d, v%d, 7, v%d' % (vMW, t3, t1))
    A('v_lshl_add_u32 v%d, v%d, 3, v%d' % (vMW, t4, vMW)); A('s_mul_i32 s35, s15, 10240'); A('v_add_u32 v%d, s35, v%d' % (vMW, vMW))
    for jj in range(4):
        for S, mlo in ((SEL0, 2 * jj), (SEL1, 2 * jj + 8), (SEL2, 4 * (0, 2, 1, 3)[jj])):
            A('v_mov_b32 v%d, 0' % t3)
            A('v_cmp_eq_u32 vcc, %d, v%d' % (mlo, vN)); A('v_mov_b32 v%d, 0x3f80' % t0)
            A('v_cndmask_b32 v%d, v%d, v%d, vcc' % (t3, t3, t0))
            A('v_cmp_eq_u32 vcc, %d, v%d' % (mlo + 1, vN)); A('v_mov_b32 v%d, 0x3f800000' % t0)
            A('v_cndmask_b32 v%d, v%d, v%d, vcc' % (t3, t3, t0))
            A('v_accvgpr_write_b32 a%d, v%d' % (S + jj, t3))
    for r in range(4): A('v_accvgpr_write_b32 a%d, -1' % (SENT + r))
    for q in range(4):
        A('s_add_u32 s35, s14, %d' % q); A('s_and_b32 s35, s35, 3'); A('s_mul_i32 s35, s35, 2560'); A('s_add_u32 s%d, s35, %d' % (8 + q, MEMS))
    A('s_mov_b32 s50, -1'); A('s_mov_b32 s51, 0')
    A('v_lshrrev_b32 v%d, 2, v%d' % (t0, vN)); A('v_lshl_add_u32 v%d, v%d, 2, v%d' % (t0, vG, t0)); A('v_mul_u32_u24 v%d, 96, v%d' % (t0, t0))
    A('v_and_b32 v%d, 3, v%d' % (t2, vN)); A('v_mul_u32_u24 v%d, 24, v%d' % (t2, t2)); A('v_add3_u32 v%d, v%d, v%d, s27' % (t0, t0, t2))
    def wtr(mat, buf):
        for t in range(3):
            for ks in range(5):
                r = (mat * 3 + t) * 20 + ks * 4
                for a in range(2):
                    A('ds_read_b64_tr_b16 v[%d:%d], v%d offset:%d' % (WQK + r + 2 * a, WQK + r + 2 * a + 1, t0, buf * 15360 + (32 * ks + 16 * a) * 96 + 8 * t))
            A('s_waitcnt lgkmcnt(0)')
    A('s_waitcnt vmcnt(60)'); wtr(0, 0); wtr(1, 1)
    A('s_waitcnt vmcnt(0)')
    for r in range(20): A('v_mov_b32 v%d, 0' % (MF + r))
    A('s_barrier')
    def prog_addr(v):
        A('s_lshl_b32 s34, s15, 7'); A('s_add_u32 s34, s34, 0x%x' % PROG_UK)
        A('v_lshrrev_b32 v%d, 2, v%d' % (v, vL16)); A('v_add_u32 v%d, s34, v%d' % (v, v))
    A('s_mov_b32 s17, 0'); A('s_mov_b32 s52, %d' % KF)
    if OPT.get('fused'):
        if TRACE[0]:
            A('s_mov_b64 exec, 1'); trace(A, '102', 80, 81); A('s_mov_b64 exec, -1')
        prog_addr(80); wait_prog(A, 80, 81, '2', '0xffff')
        if TRACE[0]:
            A('s_mov_b64 exec, 1'); trace(A, '103', 80, 81); A('s_mov_b64 exec, -1')
    kxl = ['buffer_load_dwordx2 v[%d:%d], v%d, s[4:7], s52 offen offset:%d %s' % (KX + 2 * t, KX + 2 * t + 1, vKX, 512 * t, upf) for t in range(3)]
    for x in kxl: A(x)
    A('s_add_u32 s55, s46, %d' % MEMF)
    LOOP = A.uniq('Lstep')
    mloads = ['buffer_load_dwordx4 v[%d:%d], v%d, s[4:7], s55 offen offset:%d sc1' % (MF + 4 * k, MF + 4 * k + 3, vGI, 512 * k) for k in range(5)]
    e1loads = ['buffer_load_dwordx4 v[%d:%d], v%d, s[4:7], s56 offen offset:%d sc1' % (E1R + 4 * k, E1R + 4 * k + 3, vE1R, 128 * k) for k in range(5)]
    ul = ['buffer_load_dwordx4 v[%d:%d], v%d, s[4:7], s%d offen %s' % (UFr + (tau * 2 + hb) * 4, UFr + (tau * 2 + hb) * 4 + 3, (vU0, vU1)[tau], 62 + hb, upf) for tau in range(2) for hb in range(2)]
    A.label(LOOP)
    A('s_mov_b64 exec, s[20:21]')
    for ld in mloads: A(ld)
    A('s_mov_b64 exec, -1')
    A('s_and_b32 s53, s17, 3'); A('s_add_u32 s54, s17, 2'); A('s_and_b32 s54, s54, 3')
    A('s_mul_i32 s56, s53, %d' % E1_SLOT); A('s_add_u32 s56, s56, %d' % E1)
    A('s_mul_i32 s57, s54, %d' % E1_SLOT); A('s_add_u32 s57, s57, %d' % E1)
    A('s_lshl_b32 s58, s53, 18'); A('s_add_u32 s58, s58, %d' % E2)
    A('s_lshl_b32 s59, s54, 18'); A('s_add_u32 s59, s59, %d' % E2)
    A('s_add_u32 s60, s17, 1'); A('s_and_b32 s60, s60, 3'); A('s_mul_i32 s60, s60, %d' % MEM_SLOT); A('s_add_u32 s60, s60, %d' % MEMF)
    A('s_add_u32 s61, s17, 3'); A('s_and_b32 s61, s61, 3'); A('s_mul_i32 s61, s61, %d' % MEM_SLOT); A('s_add_u32 s61, s61, %d' % MEMF)
    A('s_mul_i32 s62, s17, %d' % SEG_UF); A('s_add_u32 s62, s62, %d' % UF); A('s_add_u32 s63, s62, 40960')
    A('s_mul_i32 s35, s15, 768'); A('s_add_u32 s36, s35, s58'); A('s_add_u32 s37, s35, s59')
    A('s_lshl_b32 s42, s17, 19'); A('s_add_u32 s42, s42, %d' % EXP)
    A('s_add_u32 s52, s52, %d' % SEG_KF)
    Lma = A.uniq('Lma')
    A.label(Lma)
    tight_poll(A, mloads, [MF + 4 * k + 3 for k in range(5)], 's[20:21]', vT, 'mem')
    st(0)
    if stamp: A('s_memrealtime s[%d:%d]' % (SB + 16, SB + 17))
    main = []
    for t in range(3):
        for ks in range(5):
            for mat in (1, 0):
                tile = mat * 3 + t; d = DQK + 4 * tile; wq = tile * 20 + ks * 4
                main.append('v_mfma_f32_16x16x32_bf16 v[%d:%d], v[%d:%d], v[%d:%d], %s' % (d, d + 3, WQK + wq, WQK + wq + 3, MF + 4 * ks, MF + 4 * ks + 3, '0' if ks == 0 else 'v[%d:%d]' % (d, d + 3)))
    def bm(kk, b):
        return ['v_mfma_f32_16x16x32_bf16 v[%d:%d], v[%d:%d], a[%d:%d], %s' % (DV + 4 * T, DV + 4 * T + 3, b, b + 3, T * 80 + kk * 4, T * 80 + kk * 4 + 3, '0' if kk == 0 else 'v[%d:%d]' % (DV + 4 * T, DV + 4 * T + 3)) for T in range(3)]
    vmf = []
    for kk in range(5): vmf += bm(kk, MF + 4 * kk)
    def merge(dst, src): return ['v_mov_b32_dpp v%d, v%d row_shr:8 row_mask:0xf bank_mask:0xc' % (dst + r, src + r) for r in range(4)]
    def mq(t): return merge(DQK + 4 * t, DQK + 12 + 4 * t)
    def wr(t): return 'ds_write_b128 v%d, v[%d:%d] offset:%d' % (vQW, DQK + 4 * t, DQK + 4 * t + 3, 1024 * t)
    def red(regs, o, pk=False):
        a, b, c_, d_ = regs; out = []
        if pk:
            for h2 in range(2):
                out.append('v_pk_add_f32 v[%d:%d], v[%d:%d], v[%d:%d]' % (a + 2 * h2, a + 2 * h2 + 1, a + 2 * h2, a + 2 * h2 + 1, b + 2 * h2, b + 2 * h2 + 1))
                out.append('v_pk_add_f32 v[%d:%d], v[%d:%d], v[%d:%d]' % (c_ + 2 * h2, c_ + 2 * h2 + 1, c_ + 2 * h2, c_ + 2 * h2 + 1, d_ + 2 * h2, d_ + 2 * h2 + 1))
            for h2 in range(2):
                out.append('v_pk_add_f32 v[%d:%d], v[%d:%d], v[%d:%d]' % (a + 2 * h2, a + 2 * h2 + 1, a + 2 * h2, a + 2 * h2 + 1, c_ + 2 * h2, c_ + 2 * h2 + 1))
        else:
            for r in range(4):
                out.append('v_add_f32 v%d, v%d, v%d' % (a + r, a + r, b + r)); out.append('v_add_f32 v%d, v%d, v%d' % (c_ + r, c_ + r, d_ + r))
            for r in range(4): out.append('v_add_f32 v%d, v%d, v%d' % (a + r, a + r, c_ + r))
        out.append('v_cvt_pk_bf16_f32 v%d, v%d, v%d' % (o, a, a + 1)); out.append('v_cvt_pk_bf16_f32 v%d, v%d, v%d' % (o + 1, a + 2, a + 3))
        return out
    def rd(t, regs): return ['ds_read_b128 v[%d:%d], v%d offset:%d' % (r, r + 3, vL16, QKP + (ws * 3 + t) * 1024) for ws, r in enumerate(regs)]
    for idx in range(13):
        A(main[idx])
        if idx == 1:
            A('s_mov_b32 m0, s8'); A('buffer_load_dwordx4 v%d, s[4:7], s55 offen sc1 lds' % vL16)
        if idx == 2: A('buffer_load_dwordx4 v%d, s[4:7], s55 offen offset:1024 sc1 lds' % vL16)
        if idx == 3:
            A('s_mov_b64 exec, s[50:51]'); A('buffer_load_dwordx4 v%d, s[4:7], s55 offen offset:2048 sc1 lds' % vL16); A('s_mov_b64 exec, -1')
        if idx >= 9: A(ul[idx - 9])
    A('v_cmp_u_f32 vcc, v%d, v%d' % (DQK + 12, DQK + 12))
    nan_guard(A, Lma, mloads, range(MF, MF + 20), 's[20:21]', vT)
    Lr0, Lr3, Lb = A.uniq('Lr0'), A.uniq('Lr3'), A.uniq('Lb')
    def phaseAB(role):
        fill = {}
        m = mq(0)
        for x in m[:2]: A(x)
        fill[13] = m[2:]; fill[14] = [wr(0)]
        fill[18] = ['s_waitcnt lgkmcnt(0)', 's_barrier']
        r0 = rd(0, R0) if role != 3 else ['s_nop 0'] * 4
        fill[19] = r0[:2]; fill[20] = r0[2:]
        m = mq(1)
        fill[21] = ['s_nop 0']; fill[22] = m[:2]; fill[23] = m[2:] + [wr(1)]
        rr0 = red(R0, XP) if role != 3 else []
        fill[24] = ['s_waitcnt lgkmcnt(1)'] + rr0[:3]; fill[25] = rr0[3:6]; fill[26] = rr0[6:9]; fill[27] = rr0[9:12] + ['s_waitcnt lgkmcnt(0)', 's_barrier']
        if role == 3:
            if OPT.get('fused'):
                fill[25] = ['v_mov_b32 v%d, s17' % vT2, 's_mov_b64 exec, 1', 'buffer_store_dword v%d, v%d, s[4:7], 0 offen sc1' % (vT2, vFLG), 's_mov_b64 exec, -1']
        for idx in range(13, 28):
            A(main[idx])
            for f in fill.get(idx, []): A(f)
        st(1)
        V = list(vmf)
        def smf(t):
            a = XP if role == 0 else KX
            return 'v_mfma_f32_16x16x16_bf16 v[%d:%d], v[%d:%d], v[%d:%d], %s' % (SS, SS + 3, a + 2 * t, a + 2 * t + 1, XP + 2 * t, XP + 2 * t + 1, '0' if t == 0 else 'v[%d:%d]' % (SS, SS + 3))
        fs('b0')
        if role != 3:
            r1 = rd(1, R1)
            A(r1[0]); A(r1[1]); A(main[28]); A(rr0[12]); A(rr0[13]); A(r1[2]); A(r1[3]); A(main[29])
            A(V.pop(0)); A('s_nop 1'); A(V.pop(0)); A('s_nop 1'); A(V.pop(0))
            m = mq(2)
            A(m[0]); A(m[1]); A(m[2]); A(m[3]); A(wr(2))
            fs('b1')
            A('s_waitcnt lgkmcnt(1)')
            rr = red(R1, XP + 2)
            for i, x in enumerate(rr[:8]):
                A(x)
                if i % 3 == 2: A(V.pop(0))
            A('s_waitcnt vmcnt(4) lgkmcnt(0)')
            fs('b3')
            A('s_barrier')
            fs('b4')
            for x in rd(2, R0): A(x)
            for i, x in enumerate(rr[8:]):
                A(x)
                if i % 3 == 2: A(V.pop(0))
            A(smf(0)); A(V.pop(0)); A(smf(1))
            A('s_waitcnt lgkmcnt(0)')
            fs('b5')
            for i, x in enumerate(red(R0, XP + 4)):
                A(x)
                if i % 2 == 1 and V: A(V.pop(0))
            assert not V
            A(smf(2))
            A('v_add_u32 v%d, s9, v%d' % (vT2, vGI))
            for k in range(3): A(mrd(5 + k))
            A('s_mov_b64 exec, %s' % ('s[38:39]' if role == 0 else 's[20:21]'))
            A('v_cvt_pk_bf16_f32 v52, v%d, v%d' % (SS, SS + 1)); A('v_cvt_pk_bf16_f32 v53, v%d, v%d' % (SS + 2, SS + 3))
            fs('b6')
            lstore(A, ['buffer_store_dwordx2 v[52:53], v%d, s[4:7], s56 offen' % vE1W,
                       'buffer_store_dwordx2 a[%d:%d], v%d, s[4:7], s57 offen' % (SENT, SENT + 1, vE1W)])
            A('s_mov_b64 exec, -1')
            st(2)
        else:
            A(main[28]); A(main[29])
            A(V.pop(0)); A('s_nop 1'); A(V.pop(0)); A('s_nop 1'); A(V.pop(0))
            for x in mq(2): A(x)
            A(wr(2))
            for _ in range(4): A(V.pop(0))
            A('s_waitcnt vmcnt(4) lgkmcnt(0)')
            A('s_barrier')
            A('v_add_u32 v%d, s9, v%d' % (vT2, vGI))
            for k in range(3): A(mrd(5 + k))
            while V: A(V.pop(0))
            st(2)
    def mrd(kk): return 'ds_read_b128 v[%d:%d], v%d offset:%d' % (MBB[kk % 4], MBB[kk % 4] + 3, vT2, 512 * (kk % 5))
    A.lines.append('    s_cmp_eq_u32 s14, 0'); A.lines.append('    s_cbranch_scc1 %s' % Lr0)
    A.lines.append('    s_cmp_eq_u32 s14, 3'); A.lines.append('    s_cbranch_scc1 %s' % Lr3)
    h0 = list(A.hist)
    phaseAB(1); A('s_branch %s' % Lb)
    A.lines.append(Lr0 + ':'); A.hist = list(h0)
    phaseAB(0); A('s_branch %s' % Lb)
    A.lines.append(Lr3 + ':'); A.hist = list(h0)
    phaseAB(3)
    A.label(Lb)
    E1AT = int(OPT.get('e1at', 12))
    for kk in range(5, 20):
        nk = kk + 3
        if nk < 20:
            if nk % 5 == 0: A('v_add_u32 v%d, s%d, v%d' % (vT2, 8 + nk // 5, vGI))
            A(mrd(nk)); A('s_waitcnt lgkmcnt(3)')
        else:
            A('s_waitcnt lgkmcnt(%d)' % (19 - kk))
        for T, x in enumerate(bm(kk, MBB[kk % 4])):
            A(x)
            j = (kk - E1AT) * 3 + T
            if 0 <= j < 5: A(e1loads[j])
    st(3)
    Lk = A.uniq('Lkm')
    A('s_cmp_lg_u32 s14, 0'); A.lines.append('    s_cbranch_scc1 %s' % Lk)
    A('s_mov_b64 exec, s[22:23]')
    for t in range(3): A('ds_write_b64 v%d, v[%d:%d] offset:%d' % (vKM, XP + 2 * t, XP + 2 * t + 1, 256 * t))
    A('s_mov_b64 exec, -1')
    A.lines.append(Lk + ':')
    Lea = A.uniq('Lea')
    A.label(Lea)
    tight_poll(A, e1loads, [E1R + 4 * k + 3 for k in range(5)], '-1', vT, 'e1')
    fs('d0')
    sm = ['v_mfma_f32_16x16x32_bf16 v[%d:%d], a[%d:%d], v[%d:%d], 0' % (SD, SD + 3, SEL0, SEL0 + 3, E1R, E1R + 3),
          'v_mfma_f32_16x16x32_bf16 v[%d:%d], a[%d:%d], v[%d:%d], 0' % (SD + 4, SD + 7, SEL0, SEL0 + 3, E1R + 8, E1R + 11),
          'v_mfma_f32_16x16x32_bf16 v[%d:%d], a[%d:%d], v[%d:%d], 0' % (SD + 8, SD + 11, SEL2, SEL2 + 3, E1R + 16, E1R + 19),
          'v_mfma_f32_16x16x32_bf16 v[%d:%d], a[%d:%d], v[%d:%d], v[%d:%d]' % (SD, SD + 3, SEL1, SEL1 + 3, E1R + 4, E1R + 7, SD, SD + 3),
          'v_mfma_f32_16x16x32_bf16 v[%d:%d], a[%d:%d], v[%d:%d], v[%d:%d]' % (SD + 4, SD + 7, SEL1, SEL1 + 3, E1R + 12, E1R + 15, SD + 4, SD + 7)]
    zp = []
    for T in range(3):
        zp.append('v_cvt_pk_bf16_f32 v%d, v%d, v%d' % (ZT + T, DV + 4 * T, DV + 4 * T + 1))
        zp.append('v_cvt_pk_bf16_f32 v%d, v%d, v%d' % (100 + T, DV + 4 * T + 2, DV + 4 * T + 3))
    zp += ['v_permlane32_swap_b32 v%d, v%d' % (ZT + T, 100 + T) for T in range(3)]
    zp += ['ds_write_b32 v%d, v%d' % (vZ0, ZT), 'ds_write_b32 v%d, v%d offset:384' % (vZ0, ZT + 1), 'ds_write_b32 v%d, v%d' % (vZ2, ZT + 2),
           'v_mov_b32_dpp v%d, v%d row_ror:8 row_mask:0xf bank_mask:0xf' % (ZT + 3, ZT + 2)]
    for x in sm:
        A(x); A(zp.pop(0)); A(zp.pop(0))
    while zp: A(zp.pop(0))
    A('v_add_f32 v%d, v%d, v%d' % (vT2, SD + 8, SD))
    A('v_max3_f32 v%d, v%d, v%d, v%d' % (vT, SD + 8, SD + 9, SD))
    A('v_max3_f32 v%d, v%d, v%d, v%d' % (vT, vT, SD + 1, SD + 2))
    A('v_cmp_u_f32 vcc, v%d, v%d' % (vT2, SD + 4))
    A('v_max3_f32 v%d, v%d, v%d, v%d' % (vT, vT, SD + 3, SD + 4))
    A('v_max3_f32 v%d, v%d, v%d, v%d' % (vT, vT, SD + 5, SD + 6))
    nan_guard(A, Lea, e1loads, range(E1R, E1R + 20), '-1', vT2)
    st(4)
    A('v_max_f32 v%d, v%d, v%d' % (vT, vT, SD + 7))
    def cross(op):
        out = []
        for sw in ('v_permlane16_swap_b32', 'v_permlane32_swap_b32'):
            out += ['v_mov_b32 v%d, v%d' % (vT2, vT), '%s v%d, v%d' % (sw, vT, vT2), '%s v%d, v%d, v%d' % (op, vT, vT, vT2)]
        return out
    for x in cross('v_max_f32'): A(x)
    fs('d1')
    A('v_mul_f32 v%d, s48, v%d' % (vT, vT))
    for k in range(10):
        A('v_fma_f32 v%d, v%d, s48, -v%d' % (SD + k, SD + k, vT))
        if k >= 1: A('v_exp_f32 v%d, v%d' % (SD + k - 1, SD + k - 1))
    A('v_exp_f32 v%d, v%d' % (SD + 9, SD + 9))
    fs('d2')
    A('v_pk_add_f32 v[100:101], v[%d:%d], v[%d:%d]' % (SD, SD + 1, SD + 2, SD + 3))
    A('v_pk_add_f32 v[102:103], v[%d:%d], v[%d:%d]' % (SD + 4, SD + 5, SD + 6, SD + 7))
    A('v_pk_add_f32 v[100:101], v[100:101], v[102:103]')
    A('v_pk_add_f32 v[100:101], v[100:101], v[%d:%d]' % (SD + 8, SD + 9))
    A('v_add_f32 v%d, v100, v101' % vT)
    for x in cross('v_add_f32'): A(x)
    A('v_rcp_f32 v100, v%d' % vT)
    for k in range(5):
        A('v_pk_mul_f32 v[%d:%d], v[%d:%d], v[100:101] op_sel_hi:[1,0]' % (SD + 2 * k, SD + 2 * k + 1, SD + 2 * k, SD + 2 * k + 1))
    for k in range(4): A('v_cvt_pk_bf16_f32 v%d, v%d, v%d' % (PX + k, SD + 2 * k, SD + 2 * k + 1))
    A('v_cvt_pk_bf16_f32 v%d, v%d, v%d' % (PM, SD + 8, SD + 9))
    fs('d3')
    ror = lambda d, s_: 'v_mov_b32_dpp v%d, v%d row_ror:8 row_mask:0xf bank_mask:0xf' % (d, s_)
    for tau in range(2):
        d = DO + 4 * tau; u = UFr + (tau * 2) * 4
        A('v_mfma_f32_16x16x32_bf16 v[%d:%d], v[%d:%d], v[%d:%d], 0' % (d, d + 3, u, u + 3, PX, PX + 3))
        if tau == 0: A(ror(PM + 1, PM)); A(ror(PXR, PX))
        else: A(ror(PXR + 1, PX + 1)); A(ror(PXR + 2, PX + 2))
    for tau in range(2):
        d = DO + 4 * tau; z = ZT + 2 * tau
        A('v_mfma_f32_16x16x16_bf16 v[%d:%d], v[%d:%d], v[%d:%d], v[%d:%d]' % (d, d + 3, z, z + 1, PM, PM + 1, d, d + 3))
        if tau == 0: A(ror(PXR + 3, PX + 3))
    for tau in range(2):
        d = DO + 4 * tau; u = UFr + (tau * 2 + 1) * 4
        A('v_mfma_f32_16x16x32_bf16 v[%d:%d], v[%d:%d], v[%d:%d], v[%d:%d]' % (d, d + 3, u, u + 3, PXR, PXR + 3, d, d + 3))
    A('s_mov_b64 exec, s[20:21]')
    A('ds_write_b128 v%d, v[%d:%d]' % (vOW, DO, DO + 3))
    A('s_mov_b64 exec, s[40:41]')
    A('ds_write_b128 v%d, v[%d:%d] offset:512' % (vOW, DO + 4, DO + 7))
    A('s_mov_b64 exec, -1')
    A('s_add_u32 s55, s60, s46')
    fs('d4')
    A('s_waitcnt lgkmcnt(0)')
    A('s_barrier')
    fs('d5')
    Lskip, Loth, Lw3b, Lw1 = A.uniq('Lskip'), A.uniq('Loth'), A.uniq('Lw3b'), A.uniq('Lw1')
    A('s_cmp_lg_u32 s14, 0'); A('s_cbranch_scc1 %s' % Loth)
    A('s_cmp_eq_u32 s17, %d' % (NSTEP - 1)); A('s_cbranch_scc1 %s' % Lskip)
    e = 80
    def add4(a, b, o=None):
        o = a if o is None else o
        for h2 in range(2):
            A('v_pk_add_f32 v[%d:%d], v[%d:%d], v[%d:%d]' % (o + 2 * h2, o + 2 * h2 + 1, a + 2 * h2, a + 2 * h2 + 1, b + 2 * h2, b + 2 * h2 + 1))
    for k in range(4): A('ds_read_b128 v[%d:%d], v%d offset:%d' % (e + 4 * k, e + 4 * k + 3, vL16, OUTP + 768 * k))
    A('s_waitcnt lgkmcnt(2)'); add4(e, e + 4)
    A('s_waitcnt lgkmcnt(0)'); add4(e + 8, e + 12); add4(e, e + 8)
    fs('d6')
    A('s_mov_b64 exec, s[24:25]')
    A('buffer_store_dwordx4 v[%d:%d], v%d, s[4:7], s36 offen sc1' % (e, e + 3, vE2))
    A('buffer_store_dwordx4 a[%d:%d], v%d, s[4:7], s37 offen sc1' % (SENT, SENT + 3, vE2))
    lstore(A, ['buffer_store_dwordx2 a[%d:%d], v%d, s[4:7], s61 offen' % (SENT, SENT + 1, vMW)])
    st(5)
    A('s_sleep %s' % OPT.get('sl0', 6))
    E2R = 44
    e2loads = ['buffer_load_dwordx4 v[%d:%d], v%d, s[4:7], s58 offen offset:%d sc1' % (E2R + 4 * k, E2R + 4 * k + 3, vE2, 768 * k) for k in range(4)]
    for ld in e2loads: A(ld)
    L2a = A.uniq('L2a')
    A.label(L2a)
    tight_poll(A, e2loads, [E2R + 4 * k + 3 for k in range(4)], 's[24:25]', vT, 'e2')
    A('s_mov_b64 exec, s[24:25]')
    add4(E2R, E2R + 4, 60); add4(E2R + 8, E2R + 12, 64); add4(60, 64)
    A('v_add_f32 v%d, v60, v61' % vT); A('v_add_f32 v%d, v62, v63' % vT2)
    A('v_cvt_pk_bf16_f32 v60, v60, v61')
    A('v_cmp_u_f32 vcc, v%d, v%d' % (vT, vT2))
    A('v_cvt_pk_bf16_f32 v61, v62, v63')
    nan_guard(A, L2a, e2loads, range(E2R, E2R + 16), 's[24:25]', vT)
    A('s_mov_b64 exec, s[24:25]')
    lstore(A, ['buffer_store_dwordx2 v[60:61], v%d, s[4:7], s60 offen' % vMW])
    st(6)
    A('s_mov_b64 exec, -1')
    A('s_branch %s' % Lskip)
    A.label(Loth)
    A('s_cmp_eq_u32 s14, 3'); A('s_cbranch_scc1 %s' % Lw3b)
    for x in kxl: A(x)
    if OPT.get('fused'):
        A('s_cmp_eq_u32 s14, 1'); A('s_cbranch_scc1 %s' % Lskip)
        A('s_add_u32 s35, s17, 3'); A('s_min_u32 s35, s35, 64')
        prog_addr(80); wait_prog(A, 80, 81, 's35', '0xffff')
    A('s_branch %s' % Lskip)
    A.label(Lw3b)
    for k in range(4): A('ds_read_b128 v[%d:%d], v%d offset:%d' % (80 + 4 * k, 83 + 4 * k, vL16, EXPL + 1024 * k))
    A('s_waitcnt lgkmcnt(0)')
    for k in range(4): A('buffer_store_dwordx4 v[%d:%d], v%d, s[4:7], s42 offen offset:%d sc1' % (80 + 4 * k, 83 + 4 * k, vEXP, 1024 * k))
    if TRACE[0]:
        A('s_mov_b64 exec, 1'); A('s_add_u32 s35, s17, 1'); trace(A, 's35', 100, 101); A('s_mov_b64 exec, -1')
    A.label(Lskip)
    st(7)
    A('s_barrier')
    if OPT.get('slg'): A('s_sleep %s' % OPT['slg'])
    if stamp:
        A('s_waitcnt lgkmcnt(0)')
        for stp in (40, 41):
            Ls = A.uniq('Lst')
            A('s_cmp_lg_u32 s17, %d' % stp); A('s_cbranch_scc1 %s' % Ls)
            for i in range(9): A('v_writelane_b32 v22, s%d, %d' % (SB + 2 * i, 16 * (stp - 40) + i))
            A.label(Ls)
    A('s_add_u32 s17, s17, 1')
    A('s_cmp_lt_u32 s17, %d' % NSTEP)
    A('s_cbranch_scc1 %s' % LOOP)
    if OPT.get('fused'):
        Lf = A.uniq('Lfin')
        A('s_cmp_lg_u32 s14, 3'); A('s_cbranch_scc1 %s' % Lf)
        A('v_mov_b32 v%d, s17' % vT2)
        A('s_waitcnt vmcnt(0)')
        A('s_mov_b64 exec, 1')
        A('buffer_store_dword v%d, v%d, s[4:7], 0 offen sc1' % (vT2, vFLG))
        A('s_mov_b64 exec, -1')
        A.label(Lf)
    if stamp:
        A('v_writelane_b32 v22, s30, 9')
        A('s_lshl_b32 s35, s15, 5'); A('s_add_u32 s35, s35, s16'); A('s_lshl_b32 s35, s35, 2'); A('s_add_u32 s35, s35, s14')
        A('s_lshl_b32 s35, s35, 7'); A('s_add_u32 s35, s35, 0xF000000')
        A('v_lshrrev_b32 v60, 2, v%d' % vL16)
        A('s_mov_b32 s32, -1'); A('s_mov_b32 s33, 0'); A('s_mov_b64 exec, s[32:33]')
        A('buffer_store_dword v22, v60, s[4:7], s35 offen')
        A('s_mov_b64 exec, -1')

def gen_rec_kernel(stamp=False):
    A = Asm()
    A.raw(kernel_header('rec_kernel'))
    A('s_cmp_ge_u32 s2, 256'); A('s_cbranch_scc1 Lrec_end')
    A('s_load_dwordx8 s[64:71], s[0:1], 16')
    A('s_load_dwordx4 s[32:35], s[0:1], 104')
    A('s_getreg_b32 s15, hwreg(HW_REG_XCC_ID)'); A('s_and_b32 s15, s15, 15')
    A('s_cmp_ge_u32 s15, 4'); A('s_cbranch_scc1 Lrec_end')
    A('v_lshrrev_b32 v1, 6, v0'); A('v_readfirstlane_b32 s14, v1'); A('v_and_b32 v0, 63, v0')
    A('v_mov_b32 v22, 0')
    A('s_waitcnt lgkmcnt(0)')
    A('s_mov_b32 s4, s34'); A('s_and_b32 s5, s35, 0xffff'); A('s_mov_b32 s6, 0x%x' % WS_BYTES); A('s_mov_b32 s7, 0x20000')
    A('s_cmp_lg_u32 s14, 0'); A('s_cbranch_scc1 Lrec_w')
    A('s_lshl_b32 s16, s15, 2'); A('v_mov_b32 v1, s16'); A('v_mov_b32 v2, 1')
    A('s_mov_b64 exec, 1')
    A('global_atomic_add v3, v1, v2, s[32:33] sc0')
    A('s_waitcnt vmcnt(0)')
    A('v_mov_b32 v1, 0'); A('ds_write_b32 v1, v3')
    A('s_mov_b64 exec, -1')
    A('s_waitcnt lgkmcnt(0)')
    A.label('Lrec_w')
    A('s_barrier')
    A('v_mov_b32 v1, 0'); A('ds_read_b32 v3, v1'); A('s_waitcnt lgkmcnt(0)')
    A('v_readfirstlane_b32 s16, v3')
    A('s_barrier')
    A('s_cmp_ge_u32 s16, 32'); A('s_cbranch_scc1 Lrec_end')
    A('s_mov_b32 s44, %d' % (8192 * int(OPT.get('par', 0))))
    gen_rec(A, stamp)
    A.label('Lrec_end')
    A('s_endpgm')
    emit_ool(A)
    return A

if __name__ == '__main__':
    import sys
    name = 'rec.s'
    for a in sys.argv[1:]:
        if a.endswith('.s'): name = a
        else:
            k, _, v = a.partition('='); OPT[k] = v if _ else True
    A = gen_rec_kernel(stamp=not OPT.get('nostamp'))
    out = '; @launch kernel=rec_kernel grid=(256,1,1) block=(256,1,1) lds=131072\n'
    out += '.amdgcn_target "amdgcn-amd-amdhsa--gfx950"\n.text\n' + A.text()
    out += '.section .rodata,"a"\n' + kernel_desc('rec_kernel', 512, 102, 256)
    open(name, 'w').write(out)
```

```python
from dsl import *
from layout import *
from gen_roles import wait_prog, trace, TRACE
import math, struct
def f32bits(x): return struct.unpack('<I', struct.pack('<f', x))[0]
NSTEP = 64
OPT = {}
OOL = []

def check_regs(A, regs, tmp):
    r = list(regs)
    if len(r) == 2:
        A('v_max_u32 v%d, v%d, v%d' % (tmp, r[0], r[1])); r = []
    else:
        A('v_max3_u32 v%d, v%d, v%d, v%d' % (tmp, r[0], r[1], r[2])); r = r[3:]
    while len(r) >= 2:
        A('v_max3_u32 v%d, v%d, v%d, v%d' % (tmp, tmp, r[0], r[1])); r = r[2:]
    if r: A('v_max_u32 v%d, v%d, v%d' % (tmp, tmp, r[0]))
    A('v_cmp_eq_u32 vcc, -1, v%d' % tmp)

def tight_poll(A, loads, keyregs, mask, tmp, tag):
    L = A.uniq('Lq_' + tag); D = A.uniq('Lqd_' + tag)
    if mask != '-1': A('s_mov_b64 exec, %s' % mask)
    A.label(L)
    A('s_waitcnt vmcnt(0)')
    check_regs(A, keyregs, tmp)
    A.lines.append('    s_cbranch_vccz %s' % D)
    A('s_mov_b64 exec, vcc')
    for ld in loads: A(ld)
    A('s_add_u32 s30, s30, 1')
    A('s_cmp_lt_u32 s30, s31')
    A('s_cbranch_scc1 %s' % L)
    A('s_waitcnt vmcnt(0)')
    A.lines.append(D + ':')
    A.hist = []
    A('s_mov_b64 exec, -1')

def nan_guard(A, back, loads, regs, mask, tmp):
    Lr, Lc = A.uniq('Lng'), A.uniq('Lnc')
    A.lines.append('    s_cbranch_vccnz %s' % Lr)
    A.lines.append(Lc + ':')
    def ool():
        G = A.uniq('Lgive')
        A.label(Lr)
        A('s_nop 15')
        A('s_mov_b64 exec, %s' % mask)
        check_regs(A, regs, tmp)
        A('s_cbranch_vccz %s' % G)
        A('s_add_u32 s30, s30, 1'); A('s_cmp_ge_u32 s30, s31'); A('s_cbranch_scc1 %s' % G)
        A('s_mov_b64 exec, vcc')
        for ld in loads: A(ld)
        A('s_mov_b64 exec, -1')
        A('s_branch %s' % back)
        A.label(G)
        A('s_mov_b64 exec, -1')
        A('s_branch %s' % Lc)
    OOL.append(ool)

def lstore(A, instrs):
    if not OPT.get('fused'):
        for x in instrs: A(x)
        return
    L1, L2 = A.uniq('Lls'), A.uniq('Lle')
    A('s_cmp_lg_u32 s3, 0')
    A.lines.append('    s_cbranch_scc1 %s' % L1)
    for x in instrs: A(x)
    A.lines.append(L2 + ':')
    def ool():
        A.label(L1); A('s_nop 4')
        for x in instrs: A(x + ' sc1')
        A('s_branch %s' % L2)
    OOL.append(ool)

def emit_ool(A):
    A.hist = []
    while OOL: OOL.pop(0)()

def gen_rec(A, stamp=False):
    upf = OPT.get('upf', '')
    MEMS, QKP, OUTP, EXPL, T2W = 0, 20480, 32768, 38912, 81920
    vT, vT2 = 1, 2
    vL16, vGI, vE1R, vE1M, vU0, vU1, vZ0, vZ1 = 3, 4, 5, 6, 7, 8, 9, 10
    vX1, vX2, vX3, vX4 = 11, 12, 13, 14
    vZERO = 15
    SEL0, SEL1, SEL2, SENT, UFr = 16, 20, 24, 28, 32
    MF = 40
    DQK = 60; R0 = [84, 88, 92, 96]; R1 = [100, 104, 108, 112]; XP = 116; KX = 122; SS = 60
    MBB = [60, 64, 68, 72]; T2B = [76, 80]; DB = 84
    E1R = 40; SD = 60; PP = 68; PM = 72; ZR = 74; DO = 80; E2R = 40
    FINE = OPT['fine'].split(',') if OPT.get('fine') else None
    def st(i):
        if stamp and (FINE is None or i == 0): A('s_memtime s[%d:%d]' % (64 + 2 * i, 65 + 2 * i))
    def fs(name):
        if stamp and FINE and name in FINE:
            i = 1 + FINE.index(name); A('s_memtime s[%d:%d]' % (64 + 2 * i, 65 + 2 * i))
    vN, vG, vI = 60, 61, 62
    t0, t1, t2, t3, t4 = 63, 64, 65, 66, 67
    A('v_and_b32 v%d, 15, v0' % vN); A('v_lshrrev_b32 v%d, 4, v0' % vG); A('v_and_b32 v%d, 7, v0' % vI)
    A('s_and_b32 s12, s14, 3'); A('s_lshr_b32 s13, s14, 2')
    A('s_lshr_b32 s18, s16, 2'); A('s_and_b32 s19, s16, 3')
    A('s_lshl_b32 s26, s15, 3'); A('s_add_u32 s26, s26, s18')
    A('s_mov_b32 s20, 0x00ff00ff'); A('s_mov_b32 s21, 0x00ff00ff')
    A('s_mov_b32 s22, 0xff00ff00'); A('s_mov_b32 s23, 0xff00ff00')
    A('s_and_b32 s18, s16, 1')
    A('s_mov_b32 s24, -1'); A('s_cmp_eq_u32 s18, 0'); A('s_cselect_b32 s25, 0xffff, 0')
    A('s_mov_b32 s38, 0'); A('s_mov_b32 s39, 0x00ff00ff')
    A('s_mov_b32 s40, 0x00ff00ff'); A('s_mov_b32 s41, 0')
    A('s_mov_b32 s50, -1'); A('s_mov_b32 s51, 0')
    if not OPT.get('fused'):
        A('s_mov_b32 s30, 0'); A('s_mov_b32 s31, 0x80000')
    A('s_mov_b32 s48, 0x%08x' % f32bits((192 ** -0.5) * math.log2(math.e)))
    A('v_lshlrev_b32 v%d, 4, v0' % vL16)
    A('v_mov_b32 v%d, 0' % vZERO)
    for r in range(4): A('v_mov_b32 v%d, -1' % (SENT + r))
    A('s_lshr_b32 s28, s16, 1'); A('s_mul_i32 s28, s28, 5'); A('s_mul_i32 s29, s18, 3'); A('s_add_u32 s28, s28, s29')
    A('s_sub_u32 s45, 2, s18'); A('s_add_u32 s45, s45, s28')
    A('s_lshl_b32 s27, s12, 1'); A('s_add_u32 s27, s27, s13')
    def col_parts(vx, dst):
        A('v_lshrrev_b32 v%d, 3, v%d' % (t3, vx)); A('v_add_u32 v%d, s28, v%d' % (t3, t3)); A('v_min_u32 v%d, s45, v%d' % (t3, t3))
        A('v_lshrrev_b32 v%d, 2, v%d' % (t1, t3)); A('v_lshlrev_b32 v%d, 1, v%d' % (t1, t1))
        A('v_bfe_u32 v%d, v%d, 2, 1' % (t2, vx)); A('v_add_u32 v%d, v%d, v%d' % (t1, t1, t2))
        A('v_and_b32 v%d, 3, v%d' % (t3, t3)); A('v_and_b32 v%d, 3, v%d' % (t2, vx))
        A('v_lshl_add_u32 v%d, v%d, 2, v%d' % (t2, t3, t2))
        A('v_lshlrev_b32 v%d, 10, v%d' % (dst, t1)); A('v_lshl_add_u32 v%d, v%d, 4, v%d' % (dst, t2, dst))
        A('v_lshl_add_u32 v%d, v%d, 8, v%d' % (dst, vG, dst))
    b0, b1 = 68, 69
    col_parts(vN, b0)
    A('v_add_u32 v%d, 16, v%d' % (t0, vI)); col_parts(t0, b1)
    A('s_lshl_b32 s29, s15, 3'); A('s_add_u32 s34, s29, s27'); A('s_mul_i32 s35, s34, 40960')
    A('v_add_u32 v%d, s35, v%d' % (vU0, b0)); A('v_add_u32 v%d, s35, v%d' % (vU1, b1))
    A('v_lshlrev_b32 v%d, 4, v%d' % (t1, vI)); A('v_lshl_add_u32 v%d, v%d, 7, v%d' % (t2, vG, t1))
    A('s_mul_i32 s35, s14, 768'); A('s_add_u32 s35, s35, %d' % OUTP)
    A('v_add_u32 v%d, s35, v%d' % (vGI, t2))
    A('s_mul_i32 s36, s12, 2560'); A('s_mul_i32 s37, s15, 10240'); A('s_add_u32 s36, s36, s37'); A('s_sub_u32 s46, s36, s35')
    A('v_mul_u32_u24 v%d, 640, v%d' % (vE1M, vG)); A('v_add_u32 v%d, v%d, v%d' % (vE1M, vE1M, t1))
    A('s_mul_i32 s35, s27, 2560'); A('s_mul_i32 s36, s15, %d' % E1_G); A('s_add_u32 s35, s35, s36')
    A('v_add_u32 v%d, s35, v%d' % (vE1M, vE1M))
    A('v_lshrrev_b32 v%d, 3, v%d' % (t3, vN)); A('v_lshl_add_u32 v%d, v%d, 8, v%d' % (vE1R, t3, vE1M))
    A('s_mul_i32 s35, s27, 384'); A('s_add_u32 s35, s35, %d' % EXPL)
    A('v_lshlrev_b32 v%d, 4, v%d' % (vZ0, vN)); A('v_lshl_add_u32 v%d, v%d, 2, v%d' % (vZ0, vG, vZ0)); A('v_add_u32 v%d, s35, v%d' % (vZ0, vZ0))
    A('v_lshl_add_u32 v%d, v%d, 2, v%d' % (vZ1, vG, t1)); A('v_add_u32 v%d, s35, v%d' % (vZ1, vZ1)); A('v_add_u32 v%d, 256, v%d' % (vZ1, vZ1))
    for jj in range(4):
        for S, mlo in ((SEL0, 2 * jj), (SEL1, 2 * jj + 8), (SEL2, 4 * jj)):
            A('v_mov_b32 v%d, 0' % (S + jj))
            A('v_cmp_eq_u32 vcc, %d, v%d' % (mlo, vN)); A('v_mov_b32 v%d, 0x3f80' % t0)
            A('v_cndmask_b32 v%d, v%d, v%d, vcc' % (S + jj, S + jj, t0))
            A('v_cmp_eq_u32 vcc, %d, v%d' % (mlo + 1, vN)); A('v_mov_b32 v%d, 0x3f800000' % t0)
            A('v_cndmask_b32 v%d, v%d, v%d, vcc' % (S + jj, S + jj, t0))
    LsB, LsJ = A.uniq('LsB'), A.uniq('LsJ')
    A('s_cmp_eq_u32 s13, 1'); A('s_cbranch_scc1 %s' % LsB)
    A('s_setprio 3')
    A('s_mul_i32 s47, s12, 20480')
    for k in range(3):
        A('v_add_u32 v%d, %d, v0' % (t0, 64 * k))
        A('v_mul_u32_u24 v%d, 0x2aab, v%d' % (t3, t0)); A('v_lshrrev_b32 v%d, 16, v%d' % (t3, t3))
        A('v_mul_u32_u24 v%d, 6, v%d' % (t2, t3)); A('v_sub_u32 v%d, v%d, v%d' % (t2, t0, t2))
        A('v_mul_u32_u24 v%d, 12288, v%d' % (t3, t3)); A('v_lshl_add_u32 v%d, v%d, 4, v%d' % (70 + k, t2, t3))
    A('s_mul_i32 s34, s12, %d' % (160 * 12288)); A('s_mul_i32 s35, s26, 384'); A('s_add_u32 s34, s34, s35')
    A('s_mul_i32 s35, s19, 96'); A('s_add_u32 s34, s34, s35')
    A('v_lshrrev_b32 v%d, 2, v%d' % (t0, vN)); A('v_lshl_add_u32 v%d, v%d, 2, v%d' % (t0, vG, t0)); A('v_mul_u32_u24 v%d, 96, v%d' % (t0, t0))
    A('v_and_b32 v%d, 3, v%d' % (t2, vN)); A('v_mul_u32_u24 v%d, 24, v%d' % (t2, t2)); A('v_add3_u32 v%d, v%d, v%d, s47' % (t0, t0, t2))
    for mat in range(2):
        b = 8 + 2 * mat
        A('s_add_u32 s32, s%d, s34' % b); A('s_addc_u32 s33, s%d, 0' % (b + 1))
        for grp in range(5):
            for k in range(3):
                A('s_add_u32 m0, s47, %d' % ((grp * 3 + k) * 1024))
                A('global_load_lds_dwordx4 v%d, s[32:33]' % (70 + k))
            if grp < 4:
                A('s_add_u32 s32, s32, %d' % (32 * 12288)); A('s_addc_u32 s33, s33, 0')
        A('s_waitcnt vmcnt(0)')
        for t in range(3):
            for ks in range(5):
                r = (mat * 3 + t) * 20 + ks * 4
                for a in range(2):
                    A('ds_read_b64_tr_b16 a[%d:%d], v%d offset:%d' % (r + 2 * a, r + 2 * a + 1, t0, (32 * ks + 16 * a) * 96 + 8 * t))
            A('s_waitcnt lgkmcnt(0)')
    A('s_mul_i32 s35, s12, 3072'); A('s_add_u32 s35, s35, %d' % QKP); A('v_add_u32 v%d, s35, v%d' % (vX1, vL16))
    A('v_and_b32 v%d, 1, v%d' % (t3, vG)); A('v_lshl_add_u32 v%d, v%d, 3, v%d' % (vX2, t3, t1))
    A('v_lshrrev_b32 v%d, 1, v%d' % (t3, vG)); A('v_lshl_add_u32 v%d, v%d, 7, v%d' % (vX2, t3, vX2))
    A('s_sub_u32 s35, s12, 1'); A('s_lshl_b32 s35, s35, 8')
    A('s_cmp_eq_u32 s12, 0'); A('s_cselect_b32 s35, 384, s35')
    A('s_mul_i32 s36, s16, 640'); A('s_add_u32 s35, s35, s36')
    A('s_mul_i32 s36, s15, %d' % E1_G); A('s_add_u32 s35, s35, s36')
    A('v_add_u32 v%d, s35, v%d' % (vX2, vX2))
    A('s_sub_u32 s35, s12, 1'); A('s_and_b32 s35, s35, 1'); A('s_mul_i32 s35, s35, 384')
    A('s_mul_i32 s36, s26, 12'); A('s_add_u32 s35, s35, s36'); A('s_mul_i32 s37, s19, 3'); A('s_add_u32 s35, s35, s37'); A('s_lshl_b32 s35, s35, 9')
    A('v_lshlrev_b32 v%d, 3, v0' % vX3); A('v_add_u32 v%d, s35, v%d' % (vX3, vX3))
    A('v_mov_b32 v%d, 0' % vX4)
    L3, L0 = A.uniq('Ls3'), A.uniq('Ls0')
    A('s_cmp_lg_u32 s12, 3'); A('s_cbranch_scc1 %s' % L3)
    A('v_lshlrev_b32 v%d, 3, v%d' % (vX2, vI)); A('v_lshl_add_u32 v%d, v%d, 6, v%d' % (vX2, vG, vX2)); A('v_add_u32 v%d, %d, v%d' % (vX2, EXPL + 3072, vX2))
    A.label(L3)
    A('s_cmp_lg_u32 s12, 0'); A('s_cbranch_scc1 %s' % L0)
    A('s_lshr_b32 s35, s16, 1'); A('s_lshl_b32 s35, s35, 14'); A('s_lshl_b32 s36, s18, 12'); A('s_add_u32 s35, s35, s36'); A('s_add_u32 s35, s35, s44')
    A('v_add_u32 v%d, s35, v%d' % (vX3, vL16))
    A('v_add_u32 v%d, s28, v%d' % (t3, vG)); A('v_min_u32 v%d, s45, v%d' % (t3, t3)); A('v_lshlrev_b32 v%d, 7, v%d' % (vX4, t3))
    A('v_add_u32 v%d, v%d, v%d' % (vX4, vX4, t1))
    A('v_bfe_u32 v%d, v0, 3, 1' % t3); A('v_lshl_add_u32 v%d, v%d, 3, v%d' % (vX4, t3, vX4))
    A('s_mul_i32 s35, s15, 10240'); A('v_add_u32 v%d, s35, v%d' % (vX4, vX4))
    A.label(L0)
    A('s_branch %s' % LsJ)
    A.label(LsB)
    if OPT.get('bwait'):
        A('s_lshl_b32 s35, s15, 7'); A('s_add_u32 s35, s35, 0x%x' % BCNT); A('v_mov_b32 v74, s35')
        wait_prog(A, 74, 75, '32')
    A('s_lshl_b32 s34, s12, 1'); A('s_add_u32 s34, s34, s29'); A('s_mul_i32 s35, s34, 40960')
    A('v_add_u32 v70, s35, v%d' % b0); A('v_add_u32 v71, 40960, v70')
    A('v_lshrrev_b32 v%d, 3, v%d' % (t3, vN)); A('v_mul_u32_u24 v%d, 40960, v%d' % (t4, t3))
    A('v_add3_u32 v72, v%d, v%d, s35' % (b1, t4))
    A('s_mul_i32 s34, s12, 5'); A('s_mul_i32 s47, s12, 20480'); A('s_add_u32 s47, s47, %d' % T2W)
    def wbreg(T, kk):
        r = T * 80 + kk * 4
        return ('a[%d:%d]' % (r, r + 3)) if r < 128 else ('v[%d:%d]' % (r - 32, r - 29))
    for kk in range(20):
        A('s_add_u32 s35, s34, %d' % kk)
        A('s_cmp_ge_u32 s35, 20'); A('s_cselect_b32 s36, 20, 0'); A('s_sub_u32 s35, s35, s36')
        A('s_mul_i32 s35, s35, %d' % SEG_UF); A('s_add_u32 s35, s35, %d' % BF)
        for T in range(2):
            A('buffer_load_dwordx4 %s, v%d, s[4:7], s35 offen %s' % (wbreg(T, kk), 70 + T, upf))
        A('s_add_u32 m0, s47, %d' % (1024 * kk))
        A('buffer_load_dwordx4 v72, s[4:7], s35 offen lds %s' % upf)
    A('s_mul_i32 s35, s12, 5120'); A('v_add_u32 v%d, s35, v%d' % (vX1, vL16))
    A('v_add_u32 v%d, s47, v%d' % (vX2, vL16))
    A('s_mul_i32 s35, s12, 768'); A('s_add_u32 s35, s35, %d' % EXPL)
    A('v_lshlrev_b32 v%d, 4, v%d' % (vX3, vN)); A('v_lshl_add_u32 v%d, v%d, 3, v%d' % (vX3, vG, vX3)); A('v_add_u32 v%d, s35, v%d' % (vX3, vX3))
    A('v_lshl_add_u32 v%d, v%d, 8, v%d' % (vX4, t3, vX3)); A('v_add_u32 v%d, 256, v%d' % (vX4, vX4))
    for q in range(4):
        A('s_add_u32 s35, s12, %d' % q); A('s_and_b32 s35, s35, 3'); A('s_mul_i32 s%d, s35, 5120' % (8 + q))
    A('s_waitcnt vmcnt(0)')
    A.label(LsJ)
    for r in range(20): A('v_mov_b32 v%d, 0' % (MF + r))
    A('s_barrier')
    A('s_mov_b32 s17, 0')
    A('s_mov_b32 s52, %d' % KF)
    def prog_addr(v):
        A('s_lshl_b32 s34, s15, 7'); A('s_add_u32 s34, s34, 0x%x' % PROG_UK)
        A('v_lshrrev_b32 v%d, 2, v%d' % (v, vL16)); A('v_add_u32 v%d, s34, v%d' % (v, v))
    if OPT.get('fused'):
        if TRACE[0]:
            A('s_mov_b64 exec, 1'); trace(A, '102', 60, 61); A('s_mov_b64 exec, -1')
        prog_addr(60); wait_prog(A, 60, 61, '2', '0xffff')
        if TRACE[0]:
            A('s_mov_b64 exec, 1'); trace(A, '103', 60, 61); A('s_mov_b64 exec, -1')
    kxl = ['buffer_load_dwordx2 v[%d:%d], v%d, s[4:7], s52 offen offset:%d %s' % (KX + 2 * t, KX + 2 * t + 1, vX3, 512 * t, upf) for t in range(3)]
    Lk = A.uniq('Lk')
    A('s_sub_u32 s35, s14, 1'); A('s_cmp_gt_u32 s35, 1'); A('s_cbranch_scc1 %s' % Lk)
    for x in kxl: A(x)
    A.label(Lk)
    A('s_add_u32 s55, s46, %d' % MEMF)
    LOOP, LB, LD = A.uniq('Lstep'), A.uniq('LstepB'), A.uniq('LstepD')
    mloads = ['buffer_load_dwordx4 v[%d:%d], v%d, s[4:7], s55 offen offset:%d sc1' % (MF + 4 * k, MF + 4 * k + 3, vGI, 512 * k) for k in range(5)]
    e1loads = ['buffer_load_dwordx4 v[%d:%d], v%d, s[4:7], s56 offen sc1' % (E1R, E1R + 3, vE1R),
               'buffer_load_dwordx4 v[%d:%d], v%d, s[4:7], s56 offen offset:128 sc1' % (E1R + 4, E1R + 7, vE1R),
               'buffer_load_dwordx4 v[%d:%d], v%d, s[4:7], s56 offen offset:512 sc1' % (E1R + 8, E1R + 11, vE1M)]
    uloads = ['buffer_load_dwordx4 v[%d:%d], v%d, s[4:7], s62 offen %s' % (UFr + 4 * tau, UFr + 4 * tau + 3, (vU0, vU1)[tau], upf) for tau in range(2)]
    def scalars():
        A('s_and_b32 s53, s17, 3'); A('s_add_u32 s54, s17, 2'); A('s_and_b32 s54, s54, 3')
        A('s_mul_i32 s56, s53, %d' % E1_SLOT); A('s_add_u32 s56, s56, %d' % E1)
        A('s_mul_i32 s57, s54, %d' % E1_SLOT); A('s_add_u32 s57, s57, %d' % E1)
        A('s_lshl_b32 s58, s53, 18'); A('s_add_u32 s58, s58, %d' % E2)
        A('s_lshl_b32 s59, s54, 18'); A('s_add_u32 s59, s59, %d' % E2)
        A('s_add_u32 s60, s17, 1'); A('s_and_b32 s60, s60, 3'); A('s_mul_i32 s60, s60, %d' % MEM_SLOT); A('s_add_u32 s60, s60, %d' % MEMF)
        A('s_add_u32 s61, s17, 3'); A('s_and_b32 s61, s61, 3'); A('s_mul_i32 s61, s61, %d' % MEM_SLOT); A('s_add_u32 s61, s61, %d' % MEMF)
        A('s_mul_i32 s62, s17, %d' % SEG_UF); A('s_add_u32 s62, s62, %d' % UF)
        A('s_mul_i32 s35, s15, 768'); A('s_add_u32 s36, s35, s58'); A('s_add_u32 s37, s35, s59')
        A('s_lshl_b32 s42, s17, 19'); A('s_add_u32 s42, s42, %d' % EXP)
        A('s_add_u32 s52, s52, %d' % SEG_KF)
    A.label(LOOP)
    A('s_cmp_eq_u32 s13, 1'); A('s_cbranch_scc1 %s' % LB)
    A('s_setprio 3')
    A('s_mov_b64 exec, s[20:21]')
    for ld in mloads: A(ld)
    A('s_mov_b64 exec, -1')
    scalars()
    Lma = A.uniq('Lma')
    A.label(Lma)
    tight_poll(A, mloads, [MF + 4 * k + 3 for k in range(5)], 's[20:21]', vT, 'mem')
    st(0)
    if stamp: A('s_memrealtime s[80:81]')
    order = [(1, 0), (0, 0), (1, 1), (0, 1), (1, 2), (0, 2)]
    main = []
    for (mat, t) in order:
        tile = mat * 3 + t; d = DQK + 4 * tile
        for ks in range(5):
            wq = tile * 20 + ks * 4
            main.append('v_mfma_f32_16x16x32_bf16 v[%d:%d], a[%d:%d], v[%d:%d], %s' % (d, d + 3, wq, wq + 3, MF + 4 * ks, MF + 4 * ks + 3, '0' if ks == 0 else 'v[%d:%d]' % (d, d + 3)))
    def merge(t):
        return ['v_mov_b32_dpp v%d, v%d row_shr:8 row_mask:0xf bank_mask:0xc' % (DQK + 4 * t + r, DQK + 12 + 4 * t + r) for r in range(4)]
    def wr(t): return ['ds_write_b128 v%d, v[%d:%d] offset:%d' % (vX1, DQK + 4 * t, DQK + 4 * t + 3, 1024 * t)]
    def red(t, regs):
        a, b, c_, d_ = regs; out = []
        for h2 in range(2):
            out.append('v_pk_add_f32 v[%d:%d], v[%d:%d], v[%d:%d]' % (a + 2 * h2, a + 2 * h2 + 1, a + 2 * h2, a + 2 * h2 + 1, b + 2 * h2, b + 2 * h2 + 1))
            out.append('v_pk_add_f32 v[%d:%d], v[%d:%d], v[%d:%d]' % (c_ + 2 * h2, c_ + 2 * h2 + 1, c_ + 2 * h2, c_ + 2 * h2 + 1, d_ + 2 * h2, d_ + 2 * h2 + 1))
        for h2 in range(2):
            out.append('v_pk_add_f32 v[%d:%d], v[%d:%d], v[%d:%d]' % (a + 2 * h2, a + 2 * h2 + 1, a + 2 * h2, a + 2 * h2 + 1, c_ + 2 * h2, c_ + 2 * h2 + 1))
        out.append('v_cvt_pk_bf16_f32 v%d, v%d, v%d' % (XP + 2 * t, a, a + 1))
        out.append('v_cvt_pk_bf16_f32 v%d, v%d, v%d' % (XP + 2 * t + 1, a + 2, a + 3))
        return out
    def rd(t, regs):
        return ['ds_read_b128 v[%d:%d], v%d offset:%d' % (r, r + 3, vL16, QKP + (ws * 3 + t) * 1024) for ws, r in enumerate(regs)]
    for idx in range(13): A(main[idx])
    A('v_cmp_u_f32 vcc, v%d, v%d' % (DQK + 12, DQK + 12))
    nan_guard(A, Lma, mloads, range(MF, MF + 20), 's[20:21]', vT)
    fill = {}
    m = merge(0)
    fill[13] = ['s_nop 1'] + m[:2]; fill[14] = m[2:] + wr(0)
    r0 = rd(0, R0)
    fill[18] = ['s_waitcnt lgkmcnt(0)', 's_barrier']
    fill[19] = r0[:2]; fill[20] = r0[2:]
    m = merge(1)
    fill[22] = ['s_nop 0'] + m[:2]; fill[23] = m[2:] + wr(1)
    rr0 = red(0, R0)
    fill[24] = ['s_waitcnt lgkmcnt(1)'] + rr0[:2]; fill[25] = rr0[2:4]; fill[26] = rr0[4:6]; fill[27] = rr0[6:8] + ['s_waitcnt lgkmcnt(0)', 's_barrier']
    for idx in range(13, 28):
        A(main[idx])
        for f in fill.get(idx, []): A(f)
    st(1)
    Lr0, Lr3, Lb = A.uniq('Lr0'), A.uniq('Lr3'), A.uniq('Lb')
    def phaseB(role):
        r1 = rd(1, R1)
        fs('b0')
        A(main[28]); A(r1[0]); A(r1[1]); A(main[29]); A(r1[2]); A(r1[3])
        def smf(t):
            a = XP if role == 0 else KX
            return 'v_mfma_f32_16x16x16_bf16 v[%d:%d], v[%d:%d], v[%d:%d], %s' % (SS, SS + 3, a + 2 * t, a + 2 * t + 1, XP + 2 * t, XP + 2 * t + 1, '0' if t == 0 else 'v[%d:%d]' % (SS, SS + 3))
        if role != 3: A(smf(0))
        for x in merge(2) + wr(2): A(x)
        fs('b1')
        A('s_waitcnt lgkmcnt(1)' if not FINE else 's_waitcnt lgkmcnt(0)')
        fs('b2')
        for x in red(1, R1): A(x)
        A('s_waitcnt lgkmcnt(0)')
        fs('b3')
        A('s_barrier')
        fs('b4')
        for x in rd(2, R0): A(x)
        if role != 3: A(smf(1))
        A('s_waitcnt lgkmcnt(0)')
        fs('b5')
        for x in red(2, R0): A(x)
        if role != 3:
            A(smf(2))
            A('s_mov_b64 exec, %s' % ('s[38:39]' if role == 0 else 's[20:21]'))
            A('v_cvt_pk_bf16_f32 v64, v%d, v%d' % (SS, SS + 1))
            A('v_cvt_pk_bf16_f32 v65, v%d, v%d' % (SS + 2, SS + 3))
            fs('b6')
            lstore(A, ['buffer_store_dwordx2 v[64:65], v%d, s[4:7], s56 offen' % vX2,
                       'buffer_store_dwordx2 v[%d:%d], v%d, s[4:7], s57 offen' % (SENT, SENT + 1, vX2)])
            A('s_mov_b64 exec, -1')
            if role == 1:
                for x in kxl: A(x)
        else:
            A('s_mov_b64 exec, s[22:23]')
            for t in range(3):
                A('ds_write_b64 v%d, v[%d:%d] offset:%d' % (vX2, XP + 2 * t, XP + 2 * t + 1, 256 * t))
            A('s_mov_b64 exec, -1')
    A.lines.append('    s_cmp_eq_u32 s12, 0'); A.lines.append('    s_cbranch_scc1 %s' % Lr0)
    A.lines.append('    s_cmp_eq_u32 s12, 3'); A.lines.append('    s_cbranch_scc1 %s' % Lr3)
    h0 = list(A.hist)
    phaseB(1); A('s_branch %s' % Lb)
    A.lines.append(Lr0 + ':'); A.hist = list(h0)
    phaseB(0); A('s_branch %s' % Lb)
    A.lines.append(Lr3 + ':'); A.hist = list(h0)
    phaseB(3)
    A.label(Lb)
    st(2)
    for x in uloads: A(x)
    A('s_setprio 0')
    A('s_sleep %s' % OPT.get('sle1', 5))
    for x in e1loads: A(x)
    A('s_branch %s' % LD)
    A.label(LB)
    A('s_mov_b64 exec, s[20:21]')
    for ld in mloads: A(ld)
    A('s_mov_b64 exec, -1')
    scalars()
    def bm(kk, b, t2):
        out = []
        for T in range(3):
            d = DB + 4 * T
            w = wbreg(T, kk) if T < 2 else 'v[%d:%d]' % (t2, t2 + 3)
            out.append('v_mfma_f32_16x16x32_bf16 v[%d:%d], v[%d:%d], %s, %s' % (d, d + 3, b, b + 3, w, '0' if kk == 0 else 'v[%d:%d]' % (d, d + 3)))
        return out
    def t2rd(kk): return 'ds_read_b128 v[%d:%d], v%d offset:%d' % (T2B[kk % 2], T2B[kk % 2] + 3, vX2, 1024 * kk)
    tight_poll(A, mloads, list(range(MF, MF + 20)), 's[20:21]', vT, 'memb')
    st(0)
    if stamp: A('s_memrealtime s[80:81]')
    for k in range(5): A('ds_write_b128 v%d, v[%d:%d] offset:%d' % (vX1, MF + 4 * k, MF + 4 * k + 3, 1024 * k))
    A(t2rd(0)); A(t2rd(1))
    A('v_add_u32 v%d, s9, v%d' % (vT2, vL16))
    A('s_waitcnt lgkmcnt(0)')
    A('s_barrier')
    A('s_barrier')
    A('s_barrier')
    st(2)
    NPRE = 0
    def step_kk(kk, lds_mem):
        b = MBB[kk % 4] if lds_mem else MF + 4 * kk
        x = bm(kk, b, T2B[kk % 2])
        A(x[0]); A(x[1]); A(x[2])
    def mrd(kk): return 'ds_read_b128 v[%d:%d], v%d offset:%d' % (MBB[kk % 4], MBB[kk % 4] + 3, vT2, 1024 * (kk % 5))
    out = []
    def iss(tag, ins): A(ins); out.append(tag)
    iss(('m', 5), mrd(5)); iss(('m', 6), mrd(6))
    for x in uloads: A(x)
    if OPT.get('fused'):
        Lnf = A.uniq('Lnf')
        A('s_cmp_lg_u32 s14, 7'); A('s_cbranch_scc1 %s' % Lnf)
        A('s_lshl_b32 s35, s15, 5'); A('s_add_u32 s35, s35, s16'); A('s_lshl_b32 s35, s35, 2'); A('s_add_u32 s35, s35, 0x%x' % PROG_R)
        A('v_mov_b32 v%d, s35' % (DB + 1)); A('v_mov_b32 v%d, s17' % DB)
        A('s_mov_b64 exec, 1')
        A('buffer_store_dword v%d, v%d, s[4:7], 0 offen sc1' % (DB, DB + 1))
        A('s_mov_b64 exec, -1')
        A.label(Lnf)
    E1AT = int(OPT.get('e1at', 13))
    for kk in range(NPRE, 20):
        need_ = [i for i, tg in enumerate(out) if tg in (('m', kk), ('t', kk))]
        if need_:
            A('s_waitcnt lgkmcnt(%d)' % (len(out) - 1 - max(need_)))
            del out[:max(need_) + 1]
        step_kk(kk, kk >= 5)
        if kk + 2 < 20:
            iss(('t', kk + 2), t2rd(kk + 2))
            if kk + 2 >= 7:
                if (kk + 2) % 5 == 0: A('v_add_u32 v%d, s%d, v%d' % (vT2, 8 + (kk + 2) // 5, vL16))
                iss(('m', kk + 2), mrd(kk + 2))
        if kk == E1AT:
            for x in e1loads: A(x)
    st(3)
    for T in range(3):
        A('v_cvt_pk_bf16_f32 v%d, v%d, v%d' % (60 + 2 * T, DB + 4 * T, DB + 4 * T + 1))
        A('v_cvt_pk_bf16_f32 v%d, v%d, v%d' % (61 + 2 * T, DB + 4 * T + 2, DB + 4 * T + 3))
    A('s_mov_b64 exec, s[50:51]')
    A('ds_write_b64 v%d, v[60:61]' % vX3)
    A('ds_write_b64 v%d, v[62:63] offset:384' % vX3)
    A('ds_write_b64 v%d, v[64:65]' % vX4)
    A('s_mov_b64 exec, -1')
    A.label(LD)
    tight_poll(A, e1loads, [E1R + 3, E1R + 7, E1R + 11], '-1', vT, 'e1')
    fs('d0')
    A('v_mfma_f32_16x16x32_bf16 v[%d:%d], v[%d:%d], v[%d:%d], 0' % (SD + 4, SD + 7, SEL2, SEL2 + 3, E1R + 8, E1R + 11))
    A('v_mfma_f32_16x16x32_bf16 v[%d:%d], v[%d:%d], v[%d:%d], 0' % (SD, SD + 3, SEL0, SEL0 + 3, E1R, E1R + 3))
    A('v_mfma_f32_16x16x32_bf16 v[%d:%d], v[%d:%d], v[%d:%d], v[%d:%d]' % (SD, SD + 3, SEL1, SEL1 + 3, E1R + 4, E1R + 7, SD, SD + 3))
    A('v_cndmask_b32 v%d, v%d, v%d, s[22:23]' % (SD + 4, SD + 4, SD + 5))
    A('v_max3_f32 v%d, v%d, v%d, v%d' % (vT, SD + 4, SD, SD + 1))
    A('v_cmp_u_f32 vcc, v%d, v%d' % (SD + 4, SD))
    A('v_max3_f32 v%d, v%d, v%d, v%d' % (vT, vT, SD + 2, SD + 3))
    nan_guard(A, LD, e1loads, range(E1R, E1R + 12), '-1', vT2)
    st(4)
    def cross(op):
        A('%s_dpp v%d, v%d, v%d row_ror:8 row_mask:0xf bank_mask:0xf' % (op, vT, vT, vT))
        for sw in ('v_permlane16_swap_b32', 'v_permlane32_swap_b32'):
            A('v_mov_b32 v%d, v%d' % (vT2, vT)); A('%s v%d, v%d' % (sw, vT, vT2)); A('%s v%d, v%d, v%d' % (op, vT, vT, vT2))
    cross('v_max_f32')
    fs('d1')
    A('v_mul_f32 v%d, s48, v%d' % (vT, vT))
    for k in range(5):
        A('v_fma_f32 v%d, v%d, s48, -v%d' % (SD + k, SD + k, vT))
        if k >= 1: A('v_exp_f32 v%d, v%d' % (SD + k - 1, SD + k - 1))
    A('v_exp_f32 v%d, v%d' % (SD + 4, SD + 4))
    A('s_waitcnt lgkmcnt(0)')
    A('s_barrier')
    A('ds_read_b32 v%d, v%d' % (ZR, vZ0)); A('ds_read_b32 v%d, v%d' % (ZR + 2, vZ1))
    fs('d2')
    A('v_pk_add_f32 v[%d:%d], v[%d:%d], v[%d:%d]' % (SD + 6, SD + 7, SD, SD + 1, SD + 2, SD + 3))
    A('v_add3_f32 v%d, v%d, v%d, v%d' % (vT, SD + 6, SD + 7, SD + 4) if False else 'v_add_f32 v%d, v%d, v%d' % (vT, SD + 6, SD + 4))
    A('v_add_f32 v%d, v%d, v%d' % (vT, vT, SD + 7))
    cross('v_add_f32')
    A('v_rcp_f32 v%d, v%d' % (SD + 6, vT))
    A('v_mov_b32 v%d, 0' % (PM + 1)); A('v_mov_b32 v%d, 0' % (ZR + 1)); A('v_mov_b32 v%d, 0' % (ZR + 3))
    for k in range(2):
        A('v_pk_mul_f32 v[%d:%d], v[%d:%d], v[%d:%d] op_sel_hi:[1,0]' % (SD + 2 * k, SD + 2 * k + 1, SD + 2 * k, SD + 2 * k + 1, SD + 6, SD + 7))
    A('v_mul_f32 v%d, v%d, v%d' % (SD + 4, SD + 4, SD + 6))
    A('v_cvt_pk_bf16_f32 v%d, v%d, v%d' % (PP, SD, SD + 1)); A('v_cvt_pk_bf16_f32 v%d, v%d, v%d' % (PP + 1, SD + 2, SD + 3))
    A('v_mov_b32_dpp v%d, v%d row_ror:8 row_mask:0xf bank_mask:0xf' % (SD + 5, SD + 4))
    A('v_mov_b32_dpp v%d, v%d row_ror:8 row_mask:0xf bank_mask:0xf' % (PP + 2, PP))
    A('v_mov_b32_dpp v%d, v%d row_ror:8 row_mask:0xf bank_mask:0xf' % (PP + 3, PP + 1))
    A('v_cvt_pk_bf16_f32 v%d, v%d, v%d' % (PM, SD + 4, SD + 5))
    fs('d3')
    for tau in range(2):
        d = DO + 4 * tau; u = UFr + 4 * tau
        A('v_mfma_f32_16x16x32_bf16 v[%d:%d], v[%d:%d], v[%d:%d], 0' % (d, d + 3, u, u + 3, PP, PP + 3))
    A('s_waitcnt lgkmcnt(0)')
    for tau in range(2):
        d = DO + 4 * tau; z = ZR + 2 * tau
        A('v_mfma_f32_16x16x16_bf16 v[%d:%d], v[%d:%d], v[%d:%d], v[%d:%d]' % (d, d + 3, z, z + 1, PM, PM + 1, d, d + 3))
    A('s_mov_b64 exec, s[20:21]')
    A('ds_write_b128 v%d, v[%d:%d]' % (vGI, DO, DO + 3))
    A('s_mov_b64 exec, s[40:41]')
    A('ds_write_b128 v%d, v[%d:%d] offset:512' % (vGI, DO + 4, DO + 7))
    A('s_mov_b64 exec, -1')
    A('s_add_u32 s55, s60, s46')
    fs('d4')
    A('s_waitcnt lgkmcnt(0)')
    A('s_barrier')
    fs('d5')
    Lskip, Loth, Lw7, Lw6 = A.uniq('Lskip'), A.uniq('Loth'), A.uniq('Lw7'), A.uniq('Lw6')
    A('s_cmp_lg_u32 s14, 0'); A('s_cbranch_scc1 %s' % Loth)
    e = 60
    for k in range(8):
        A('ds_read_b128 v[%d:%d], v%d offset:%d' % (e + 4 * k, e + 4 * k + 3, vL16, OUTP + 768 * k))
    def add4(a, b, o=None):
        o = a if o is None else o
        for h2 in range(2):
            A('v_pk_add_f32 v[%d:%d], v[%d:%d], v[%d:%d]' % (o + 2 * h2, o + 2 * h2 + 1, a + 2 * h2, a + 2 * h2 + 1, b + 2 * h2, b + 2 * h2 + 1))
    A('s_waitcnt lgkmcnt(6)'); add4(e, e + 4)
    A('s_waitcnt lgkmcnt(4)'); add4(e + 8, e + 12); add4(e, e + 8)
    A('s_waitcnt lgkmcnt(2)'); add4(e + 16, e + 20)
    A('s_waitcnt lgkmcnt(0)'); add4(e + 24, e + 28); add4(e + 16, e + 24); add4(e, e + 16)
    fs('d6')
    A('s_mov_b64 exec, s[24:25]')
    A('buffer_store_dwordx4 v[%d:%d], v%d, s[4:7], s36 offen sc1' % (e, e + 3, vX3))
    A('buffer_store_dwordx4 v[%d:%d], v%d, s[4:7], s37 offen sc1' % (SENT, SENT + 3, vX3))
    lstore(A, ['buffer_store_dwordx2 v[%d:%d], v%d, s[4:7], s61 offen' % (SENT, SENT + 1, vX4)])
    st(5)
    A('s_sleep %s' % OPT.get('sl0', 6))
    E2R = 64
    e2loads = ['buffer_load_dwordx4 v[%d:%d], v%d, s[4:7], s58 offen offset:%d sc1' % (E2R + 4 * k, E2R + 4 * k + 3, vX3, 768 * k) for k in range(4)]
    for ld in e2loads: A(ld)
    L2a = A.uniq('L2a')
    A.label(L2a)
    tight_poll(A, e2loads, [E2R + 4 * k + 3 for k in range(4)], 's[24:25]', vT, 'e2')
    A('s_mov_b64 exec, s[24:25]')
    add4(E2R, E2R + 4, 80); add4(E2R + 8, E2R + 12, 84); add4(80, 84)
    A('v_add_f32 v%d, v80, v81' % vT); A('v_add_f32 v%d, v82, v83' % vT2)
    A('v_cvt_pk_bf16_f32 v80, v80, v81')
    A('v_cmp_u_f32 vcc, v%d, v%d' % (vT, vT2))
    A('v_cvt_pk_bf16_f32 v81, v82, v83')
    nan_guard(A, L2a, e2loads, range(E2R, E2R + 16), 's[24:25]', vT)
    A('s_mov_b64 exec, s[24:25]')
    lstore(A, ['buffer_store_dwordx2 v[80:81], v%d, s[4:7], s60 offen' % vX4])
    st(6)
    A('s_mov_b64 exec, -1')
    A('s_branch %s' % Lskip)
    A.label(Loth)
    A('s_cmp_eq_u32 s14, 7'); A('s_cbranch_scc1 %s' % Lw7)
    A('s_cmp_eq_u32 s14, 6'); A('s_cbranch_scc1 %s' % Lw6)
    A('s_branch %s' % Lskip)
    A.label(Lw6)
    if OPT.get('fused'):
        A('s_add_u32 s35, s17, 3'); A('s_min_u32 s35, s35, 64')
        prog_addr(60); wait_prog(A, 60, 61, 's35', '0xffff')
    A('s_branch %s' % Lskip)
    A.label(Lw7)
    for k in range(4):
        A('ds_read_b128 v[%d:%d], v%d offset:%d' % (60 + 4 * k, 63 + 4 * k, vL16, EXPL + 1024 * k))
    A('s_lshl_b32 s35, s15, 5'); A('s_add_u32 s35, s35, s16'); A('s_lshl_b32 s34, s35, 12'); A('s_add_u32 s42, s42, s34')
    A('s_waitcnt lgkmcnt(0)')
    for k in range(4):
        A('buffer_store_dwordx4 v[%d:%d], v%d, s[4:7], s42 offen offset:%d sc1' % (60 + 4 * k, 63 + 4 * k, vL16, 1024 * k))
    if TRACE[0]:
        A('s_mov_b64 exec, 1'); A('s_add_u32 s35, s17, 1'); trace(A, 's35', 76, 77); A('s_mov_b64 exec, -1')
    A.label(Lskip)
    st(7)
    A('s_barrier')
    if OPT.get('slg'): A('s_sleep %s' % OPT['slg'])
    if stamp:
        A('s_waitcnt lgkmcnt(0)')
        for stp, base in ((40, 84), (41, 93)):
            Ls = A.uniq('Lst')
            A('s_cmp_lg_u32 s17, %d' % stp); A('s_cbranch_scc1 %s' % Ls)
            for i in range(9): A('s_mov_b32 s%d, s%d' % (base + i, 64 + 2 * i))
            A.label(Ls)
    A('s_add_u32 s17, s17, 1')
    A('s_cmp_lt_u32 s17, %d' % NSTEP)
    A('s_cbranch_scc1 %s' % LOOP)
    A('s_setprio 0')
    if OPT.get('fused'):
        Lf = A.uniq('Lfin')
        A('s_cmp_lg_u32 s14, 7'); A('s_cbranch_scc1 %s' % Lf)
        A('s_lshl_b32 s35, s15, 5'); A('s_add_u32 s35, s35, s16'); A('s_lshl_b32 s35, s35, 2'); A('s_add_u32 s35, s35, 0x%x' % PROG_R)
        A('v_mov_b32 v61, s35'); A('v_mov_b32 v60, s17')
        A('s_waitcnt vmcnt(0)')
        A('s_mov_b64 exec, 1')
        A('buffer_store_dword v60, v61, s[4:7], 0 offen sc1')
        A('s_mov_b64 exec, -1')
        A.label(Lf)
    if stamp:
        A('s_lshl_b32 s35, s15, 5'); A('s_add_u32 s35, s35, s16'); A('s_lshl_b32 s35, s35, 3'); A('s_add_u32 s35, s35, s14')
        A('s_lshl_b32 s35, s35, 7'); A('s_add_u32 s35, s35, 0xF000000')
        A('v_mov_b32 v60, s35'); A('s_mov_b64 exec, 1')
        for stp in range(2):
            for i in range(9):
                A('v_mov_b32 v61, s%d' % (84 + 9 * stp + i))
                A('buffer_store_dword v61, v60, s[4:7], 0 offen offset:%d' % (64 * stp + 4 * i))
            A('v_mov_b32 v61, s30'); A('buffer_store_dword v61, v60, s[4:7], 0 offen offset:%d' % (64 * stp + 36))
        A('s_mov_b64 exec, -1')

def gen_rec_kernel(stamp=False):
    A = Asm()
    A.raw(kernel_header('rec_kernel'))
    A('s_cmp_ge_u32 s2, 256'); A('s_cbranch_scc1 Lrec_end')
    A('s_load_dwordx4 s[8:11], s[0:1], 16')
    A('s_load_dwordx4 s[32:35], s[0:1], 104')
    A('s_getreg_b32 s15, hwreg(HW_REG_XCC_ID)'); A('s_and_b32 s15, s15, 15')
    A('s_cmp_ge_u32 s15, 4'); A('s_cbranch_scc1 Lrec_end')
    A('v_lshrrev_b32 v1, 6, v0'); A('v_readfirstlane_b32 s14, v1'); A('v_and_b32 v0, 63, v0')
    A('s_waitcnt lgkmcnt(0)')
    A('s_mov_b32 s4, s34'); A('s_and_b32 s5, s35, 0xffff'); A('s_mov_b32 s6, 0x%x' % WS_BYTES); A('s_mov_b32 s7, 0x20000')
    A('s_cmp_lg_u32 s14, 0'); A('s_cbranch_scc1 Lrec_w')
    A('s_lshl_b32 s16, s15, 2'); A('v_mov_b32 v1, s16'); A('v_mov_b32 v2, 1')
    A('s_mov_b64 exec, 1')
    A('global_atomic_add v3, v1, v2, s[32:33] sc0')
    A('s_waitcnt vmcnt(0)')
    A('v_mov_b32 v1, 0'); A('ds_write_b32 v1, v3')
    A('s_mov_b64 exec, -1')
    A('s_waitcnt lgkmcnt(0)')
    A.label('Lrec_w')
    A('s_barrier')
    A('v_mov_b32 v1, 0'); A('ds_read_b32 v3, v1'); A('s_waitcnt lgkmcnt(0)')
    A('v_readfirstlane_b32 s16, v3')
    A('s_barrier')
    A('s_cmp_ge_u32 s16, 32'); A('s_cbranch_scc1 Lrec_end')
    A('s_mov_b32 s44, %d' % (8192 * int(OPT.get('par', 0))))
    gen_rec(A, stamp)
    A.label('Lrec_end')
    A('s_endpgm')
    emit_ool(A)
    return A

if __name__ == '__main__':
    import sys
    name = 'rec.s'
    for a in sys.argv[1:]:
        if a.endswith('.s'): name = a
        else:
            k, _, v = a.partition('='); OPT[k] = v if _ else True
    A = gen_rec_kernel(stamp=not OPT.get('nostamp'))
    out = '; @launch kernel=rec_kernel grid=(256,1,1) block=(512,1,1) lds=163840\n'
    out += '.amdgcn_target "amdgcn-amd-amdhsa--gfx950"\n.text\n' + A.text()
    out += '.section .rodata,"a"\n' + kernel_desc('rec_kernel', 256, 102, 128)
    open(name, 'w').write(out)
```

```python
from dsl import *
from layout import *
from gen_prep import srd, f32bits, build, gen_prep

def load_w_proj(A, sW, tmpv=40):
    t0, t1, t2 = tmpv, tmpv + 1, tmpv + 2
    ad = tmpv + 3
    A('s_mul_i32 s27, s14, 30720')
    for k in range(3):
        A('v_add_u32 v%d, %d, v0' % (t0, 64 * k))
        A('v_mul_u32_u24 v%d, 0x2aab, v%d' % (t1, t0)); A('v_lshrrev_b32 v%d, 16, v%d' % (t1, t1))
        A('v_mul_u32_u24 v%d, 6, v%d' % (t2, t1)); A('v_sub_u32 v%d, v%d, v%d' % (t2, t0, t2))
        A('v_mul_u32_u24 v%d, 12288, v%d' % (t1, t1))
        A('v_lshl_add_u32 v%d, v%d, 4, v%d' % (ad + k, t2, t1))
    A('s_mul_i32 s28, s26, 384'); A('s_mul_i32 s29, s14, 96'); A('s_add_u32 s28, s28, s29')
    A('s_add_u32 s32, s%d, s28' % sW); A('s_addc_u32 s33, s%d, 0' % (sW + 1))
    A('v_lshrrev_b32 v%d, 4, v0' % t0); A('v_bfe_u32 v%d, v0, 2, 2' % t1)
    A('v_lshl_add_u32 v%d, v%d, 2, v%d' % (t0, t0, t1)); A('v_mul_u32_u24 v%d, 96, v%d' % (t0, t0))
    A('v_and_b32 v%d, 3, v0' % t1); A('v_mul_u32_u24 v%d, 24, v%d' % (t1, t1))
    A('v_add3_u32 v%d, v%d, v%d, s27' % (t0, t0, t1))
    def dma(buf):
        for grp in range(5):
            for k in range(3):
                A('s_add_u32 m0, s27, %d' % (buf * 15360 + (grp * 3 + k) * 1024))
                A('global_load_lds_dwordx4 v%d, s[32:33]' % (ad + k))
            A('s_add_u32 s32, s32, %d' % (32 * 12288)); A('s_addc_u32 s33, s33, 0')
    def trr(q, buf):
        for t in range(3):
            for ks in range(5):
                r = (t * 20 + q * 5 + ks) * 4
                for a in range(2):
                    A('ds_read_b64_tr_b16 a[%d:%d], v%d offset:%d' % (r + 2 * a, r + 2 * a + 1, t0, buf * 15360 + (32 * ks + 16 * a) * 96 + 8 * t))
            A('s_waitcnt lgkmcnt(0)')
    dma(0); dma(1)
    A('s_waitcnt vmcnt(15)'); trr(0, 0); dma(0)
    A('s_waitcnt vmcnt(15)'); trr(1, 1); dma(1)
    A('s_waitcnt vmcnt(15)'); trr(2, 0)
    A('s_waitcnt vmcnt(0)'); trr(3, 1)

TRACE = [False]
def trace(A, sidx, va, vb):
    A('s_memrealtime s[96:97]'); A('s_memtime s[100:101]')
    A('s_lshl_b32 s99, s98, 7'); A('s_add_u32 s99, s99, %s' % sidx); A('s_lshl_b32 s99, s99, 2'); A('s_add_u32 s99, s99, 0xF000000')
    A('s_waitcnt lgkmcnt(0)')
    A('v_mov_b32 v%d, s96' % va); A('v_mov_b32 v%d, s99' % vb)
    A('buffer_store_dword v%d, v%d, s[4:7], 0 offen' % (va, vb))
    A('s_nop 1'); A('v_mov_b32 v%d, s100' % va); A('v_add_u32 v%d, 0x100000, v%d' % (vb, vb))
    A('buffer_store_dword v%d, v%d, s[4:7], 0 offen' % (va, vb))

def signal(A, sval, add, wave0=True):
    L = A.uniq('Lsig')
    if wave0:
        A('s_cmp_lg_u32 s14, 0'); A('s_cbranch_scc1 %s' % L)
    A('s_add_u32 s46, %s, %d' % (sval, add) if add >= 0 else 's_sub_u32 s46, %s, %d' % (sval, -add))
    A('v_mov_b32 v4, s46'); A('v_mov_b32 v5, s47')
    A('s_mov_b64 exec, 1')
    A('buffer_store_dword v4, v5, s[4:7], 0 offen sc1')
    if TRACE[0]: trace(A, 's46', 4, 5)
    A('s_mov_b64 exec, -1')
    A.label(L)

def wait_prog(A, vaddr, vval, sneed, mask='-1'):
    L, D = A.uniq('Lwp'), A.uniq('Lwpd')
    if mask != '-1': A('s_mov_b64 exec, %s' % mask)
    A.label(L)
    A('buffer_load_dword v%d, v%d, s[4:7], 0 offen sc1' % (vval, vaddr))
    A('s_waitcnt vmcnt(0)')
    A('v_cmp_gt_u32 vcc, %s, v%d' % (sneed, vval))
    A('s_cbranch_vccz %s' % D)
    A('s_sleep 2')
    A('s_add_u32 s30, s30, 1')
    A('s_cmp_lt_u32 s30, s31')
    A('s_cbranch_scc1 %s' % L)
    A.label(D)
    if mask != '-1': A('s_mov_b64 exec, -1')

def dma_seg(A, sseg, slot_sgpr, vL16, defer):
    A('s_mul_i32 s23, %s, 40960' % sseg); A('s_add_u32 s23, s23, s22')
    A('s_add_u32 s24, %s, s22' % slot_sgpr)
    groups = []
    for k in range(10):
        g = []
        if k % 4 == 0:
            if k: g += ['s_add_u32 s23, s23, 4096', 's_add_u32 s24, s24, 4096']
            g += ['s_mov_b32 m0, s24', 's_nop 0']
        g.append('buffer_load_dwordx4 v%d, s[4:7], s23 offen offset:%d lds' % (vL16, 1024 * (k % 4)))
        groups.append(g)
    if defer: return groups
    for g in groups:
        for x in g: A(x)

def gen_prole(A, stf='', flag=False):
    load_w_proj(A, 8)
    A('s_barrier')
    vL16, vO = 1, 2
    XB = [8, 12, 16, 20]
    ACC = [24, 48]
    PK = 72
    A('v_lshlrev_b32 v%d, 4, v0' % vL16)
    A('v_lshlrev_b32 v%d, 3, v0' % vO)
    A('s_mul_i32 s20, s26, 12'); A('s_mul_i32 s21, s14, 3'); A('s_add_u32 s20, s20, s21'); A('s_lshl_b32 s20, s20, 9')
    A('s_add_u32 s19, s19, s20')
    A('s_mul_i32 s22, s14, 10240')
    def dma(sseg, slot_sgpr, defer=False):
        return dma_seg(A, sseg, slot_sgpr, vL16, defer)
    A('s_mov_b32 s34, 0'); A('s_mov_b32 s35, 40960'); A('s_mov_b32 s36, 81920')
    dma('s17', 's34')
    A('s_add_u32 s25, s17, 1'); dma('s25', 's35')
    LOOP, END = A.uniq('Lp_loop'), A.uniq('Lp_end')
    def epilogue(acc):
        out = []
        for mt in range(2):
            for t in range(3):
                d = acc + (mt * 3 + t) * 4; pk = PK + (mt * 3 + t) * 2
                out.append('v_cvt_pk_bf16_f32 v%d, v%d, v%d' % (pk, d, d + 1))
                out.append('v_cvt_pk_bf16_f32 v%d, v%d, v%d' % (pk + 1, d + 2, d + 3))
                out.append('buffer_store_dwordx2 v[%d:%d], v%d, s[4:7], s%d offen offset:%d %s' % (pk, pk + 1, vO, 37 + mt, 512 * t, stf))
        return out
    def body(par, first, wait=16):
        acc = ACC[par]; prev = ACC[1 - par]
        A('s_waitcnt vmcnt(%d)' % (10 if first else 0))
        A('s_barrier')
        if flag and not first: signal(A, 's17', -1)
        A('s_add_u32 s25, s17, 2'); dg = dma('s25', 's36', True)
        A('s_sub_u32 s25, s17, 1'); A('s_mul_i32 s37, s25, %d' % SEG_KF); A('s_add_u32 s37, s37, s19'); A('s_add_u32 s38, s37, %d' % (SEG_KF // 2))
        A('v_add_u32 v3, s34, v%d' % vL16)
        ep = [] if first else epilogue(prev)
        seq = [(ks, mt) for ks in range(20) for mt in range(2)]
        for i in range(3):
            ks, mt = seq[i]
            A('ds_read_b128 v[%d:%d], v3 offset:%d' % (XB[i % 4], XB[i % 4] + 3, (mt * 20 + ks) * 1024))
        for i, (ks, mt) in enumerate(seq):
            if i + 3 < 40:
                k2, m2 = seq[i + 3]; b = XB[(i + 3) % 4]
                A('ds_read_b128 v[%d:%d], v3 offset:%d' % (b, b + 3, (m2 * 20 + k2) * 1024))
                A('s_waitcnt lgkmcnt(3)')
            else:
                A('s_waitcnt lgkmcnt(%d)' % (39 - i))
            b = XB[i % 4]
            for t in range(3):
                d = acc + (mt * 3 + t) * 4; w = (t * 20 + ks) * 4
                A('v_mfma_f32_16x16x32_bf16 v[%d:%d], a[%d:%d], v[%d:%d], %s' % (d, d + 3, w, w + 3, b, b + 3, '0' if ks == 0 else 'v[%d:%d]' % (d, d + 3)))
            if i >= 4 and ep: A(ep.pop(0))
            if i < 10:
                for x in dg.pop(0): A(x)
        assert not ep
        A('s_mov_b32 s25, s34'); A('s_mov_b32 s34, s35'); A('s_mov_b32 s35, s36'); A('s_mov_b32 s36, s25')
        A('s_add_u32 s17, s17, 1')
    E0, E1_ = A.uniq('Lp_e0'), A.uniq('Lp_e1')
    body(0, True, 10)
    A('s_cmp_ge_u32 s17, s18'); A('s_cbranch_scc1 %s' % E0)
    body(1, False, 10)
    A('s_cmp_ge_u32 s17, s18'); A('s_cbranch_scc1 %s' % E1_)
    A.label(LOOP)
    body(0, False)
    A('s_cmp_ge_u32 s17, s18'); A('s_cbranch_scc1 %s' % E0)
    body(1, False)
    A('s_cmp_lt_u32 s17, s18'); A('s_cbranch_scc1 %s' % LOOP)
    A('s_branch %s' % E1_)
    for lab, par in ((E0, 0), (E1_, 1)):
        A.label(lab)
        A('s_sub_u32 s25, s17, 1'); A('s_mul_i32 s37, s25, %d' % SEG_KF); A('s_add_u32 s37, s37, s19'); A('s_add_u32 s38, s37, %d' % (SEG_KF // 2))
        for x in epilogue(ACC[par]): A(x)
        A('s_branch %s' % END)
    A.label(END)
    A('s_waitcnt vmcnt(0)')
    if flag:
        A('s_barrier')
        signal(A, 's17', 0)

def load_w_u(A, sW, tmpv=40, scol='s14'):
    t0, t1, t2 = tmpv, tmpv + 1, tmpv + 2
    ad = tmpv + 3
    A('s_mul_i32 s27, s14, 30720')
    for k in range(5):
        A('v_add_u32 v%d, %d, v0' % (t0, 64 * k))
        A('v_mul_u32_u24 v%d, 0xccd, v%d' % (t1, t0)); A('v_lshrrev_b32 v%d, 16, v%d' % (t1, t1))
        A('v_mul_u32_u24 v%d, 20, v%d' % (t2, t1)); A('v_sub_u32 v%d, v%d, v%d' % (t2, t0, t2))
        A('v_mul_u32_u24 v%d, 1280, v%d' % (t1, t1))
        A('v_lshl_add_u32 v%d, v%d, 4, v%d' % (ad + k, t2, t1))
    A('s_mul_i32 s28, s26, 245760'); A('s_mul_i32 s29, %s, 320' % scol); A('s_add_u32 s28, s28, s29')
    A('s_add_u32 s32, s%d, s28' % sW); A('s_addc_u32 s33, s%d, 0' % (sW + 1))
    A('v_lshrrev_b32 v%d, 4, v0' % t0); A('v_mul_u32_u24 v%d, 12, v%d' % (t0, t0)); A('v_bfe_u32 v%d, v0, 2, 2' % t1)
    A('v_add_u32 v%d, v%d, v%d' % (t0, t0, t1)); A('v_mul_u32_u24 v%d, 320, v%d' % (t0, t0))
    A('v_and_b32 v%d, 3, v0' % t1); A('v_lshlrev_b32 v%d, 3, v%d' % (t1, t1))
    A('v_add3_u32 v%d, v%d, v%d, s27' % (t0, t0, t1))
    for ch in range(2):
        for grp in range(6):
            for k in range(5):
                A('s_add_u32 m0, s27, %d' % ((grp * 5 + k) * 1024))
                A('global_load_lds_dwordx4 v%d, s[32:33]' % (ad + k))
            A('s_add_u32 s32, s32, %d' % (16 * 1280)); A('s_addc_u32 s33, s33, 0')
        A('s_waitcnt vmcnt(0)')
        for nu in range(10):
            for kl in range(3):
                kap = ch * 3 + kl
                r = (nu * 6 + kap) * 4
                for a in range(2):
                    pl = 2 * kap + a; pp, t = pl // 3, pl % 3
                    A('ds_read_b64_tr_b16 a[%d:%d], v%d offset:%d' % (r + 2 * a, r + 2 * a + 1, t0, (48 * pp + 4 * t - 96 * ch) * 320 + 32 * nu))
            A('s_waitcnt lgkmcnt(0)')

def gen_urole_loop(A, mode, ldf='', stf='', scol='s14', flag=False):
    vL16, vA = 1, 2
    VB = [8, 56]
    DD = [104, 112, 120]
    PK = [128, 132, 136]
    A('v_lshlrev_b32 v%d, 4, v0' % vL16)
    if mode == 'U':
        A('v_lshlrev_b32 v%d, 3, v0' % vA)
        A('s_mul_i32 s20, s26, %d' % (12 * 512)); A('s_add_u32 s20, s20, 0x%x' % VF)
    else:
        A('v_and_b32 v3, 15, v0'); A('v_mul_u32_u24 v%d, 12288, v3' % vA)
        A('v_lshrrev_b32 v3, 4, v0'); A('v_mul_u32_u24 v3, 24, v3'); A('v_add_u32 v%d, v%d, v3' % (vA, vA))
        A('s_mul_i32 s20, s26, 384'); A('s_sub_u32 s20, s20, %d' % (64 * 32 * 12288))
    A('s_mul_i32 s21, s26, 40'); A('s_mul_i32 s22, %s, 10' % scol); A('s_add_u32 s21, s21, s22'); A('s_lshl_b32 s21, s21, 10'); A('s_add_u32 s21, s21, 0x%x' % UF)
    def loads(sseg, vb):
        out = []
        if mode == 'U':
            out.append('s_mul_i32 s23, %s, %d' % (sseg, SEG_KF)); out.append('s_add_u32 s23, s23, s20')
            out.append('s_add_u32 s24, s23, 4096'); out.append('s_add_u32 s25, s23, %d' % (SEG_KF // 2)); out.append('s_add_u32 s28, s25, 4096')
            for mt in range(2):
                for pl in range(12):
                    so = (23, 24, 25, 28)[mt * 2 + pl // 8]
                    out.append('buffer_load_dwordx2 v[%d:%d], v%d, s[4:7], s%d offen offset:%d %s' % (vb + mt * 24 + 2 * pl, vb + mt * 24 + 2 * pl + 1, vA, so, 512 * (pl % 8), ldf))
        else:
            out.append('s_mul_i32 s23, %s, %d' % (sseg, 32 * 12288)); out.append('s_add_u32 s23, s23, s20')
            out.append('s_add_u32 s25, s23, %d' % (16 * 12288))
            for mt in range(2):
                for pl in range(12):
                    out.append('buffer_load_dwordx2 v[%d:%d], v%d, s[8:11], s%d offen offset:%d' % (vb + mt * 24 + 2 * pl, vb + mt * 24 + 2 * pl + 1, vA, (23, 25)[mt], 96 * (pl // 3) + 8 * (pl % 3)))
        return out
    if flag:
        A('s_lshl_b32 s40, s26, 7'); A('s_add_u32 s40, s40, 0x%x' % PROG_V); A('v_mov_b32 v6, s40')
        A('s_add_u32 s41, s17, 1')
        wait_prog(A, 6, 7, 's41')
    for x in loads('s17', VB[0]): A(x)
    LOOP, END = A.uniq('Lu_loop'), A.uniq('Lu_end')
    NAFTER = [None]
    def body(par, first):
        vb = VB[par]
        A('s_waitcnt vmcnt(%d)' % (0 if first else NAFTER[0]))
        if flag:
            A('s_barrier')
            if not first: signal(A, 's17', -1)
            A('s_add_u32 s41, s17, 2'); A('s_min_u32 s41, s41, 64')
            L = A.uniq('Lu_have')
            A('v_cmp_gt_u32 vcc, s41, v7'); A('s_cbranch_vccz %s' % L)
            wait_prog(A, 6, 7, 's41')
            A.label(L)
        A('s_add_u32 s29, s17, 1')
        nl = loads('s29', VB[1 - par])
        if flag: nl.append('buffer_load_dword v7, v6, s[4:7], 0 offen sc1')
        A('s_mul_i32 s37, s17, %d' % SEG_UF); A('s_add_u32 s37, s37, s21'); A('s_add_u32 s38, s37, 4096'); A('s_add_u32 s39, s37, 8192')
        pend = []
        cnt = [0]
        def emit(x):
            A(x)
            if x.startswith('buffer_store'): cnt[0] += 1
            if x.startswith('buffer_load'): cnt[0] = 0
        for nu in range(10):
            d = DD[nu % 3]
            k = 0
            for kap in range(6):
                for mt in range(2):
                    w = (nu * 6 + kap) * 4; a = vb + mt * 24 + 4 * kap; dd = d + 4 * mt
                    A('v_mfma_f32_16x16x32_bf16 v[%d:%d], v[%d:%d], a[%d:%d], %s' % (dd, dd + 3, a, a + 3, w, w + 3, '0' if kap == 0 else 'v[%d:%d]' % (dd, dd + 3)))
                    k += 1
                    if k >= 6 and pend: emit(pend.pop(0))
                    elif nl: emit(nl.pop(0))
            while pend: emit(pend.pop(0))
            pk = PK[nu % 3]
            pend = ['v_cvt_pk_bf16_f32 v%d, v%d, v%d' % (pk + j, d + 2 * j, d + 2 * j + 1) for j in range(4)]
            pend.append('buffer_store_dwordx4 v[%d:%d], v%d, s[4:7], s%d offen offset:%d %s' % (pk, pk + 3, vL16, 37 + nu // 4, 1024 * (nu % 4), stf))
        assert not nl
        while pend: emit(pend.pop(0))
        NAFTER[0] = cnt[0]
        A('s_add_u32 s17, s17, 1')
    body(0, True)
    A('s_cmp_ge_u32 s17, s18'); A('s_cbranch_scc1 %s' % END)
    A.label(LOOP)
    body(1, False)
    A('s_cmp_ge_u32 s17, s18'); A('s_cbranch_scc1 %s' % END)
    body(0, False)
    A('s_cmp_lt_u32 s17, s18'); A('s_cbranch_scc1 %s' % LOOP)
    A.label(END)
    A('s_waitcnt vmcnt(0)')
    if flag:
        A('s_barrier')
        signal(A, 's17', 0)

def common_entry(A, name, grid):
    A.raw(kernel_header(name))
    A('s_cmp_ge_u32 s2, %d' % grid); A('s_cbranch_scc1 L%s_end' % name)
    A('s_load_dwordx2 s[12:13], s[0:1], 112')
    A('v_lshrrev_b32 v1, 6, v0'); A('v_readfirstlane_b32 s14, v1'); A('v_and_b32 v0, 63, v0')

def gen_kv_kernel():
    A = Asm()
    common_entry(A, 'kv_kernel', 256)
    A('s_load_dwordx4 s[8:11], s[0:1], 24')
    A('s_waitcnt lgkmcnt(0)')
    srd(A, 4, 12, 13, WS_BYTES)
    A('s_lshr_b32 s26, s2, 2'); A('s_and_b32 s26, s26, 31')
    A('s_and_b32 s17, s2, 3'); A('s_lshl_b32 s17, s17, 4'); A('s_add_u32 s18, s17, 16')
    A('s_mov_b32 s19, 0x%x' % KF)
    A('s_cmp_lt_u32 s2, 128'); A('s_cbranch_scc1 Lkv_go')
    A('s_mov_b32 s8, s10'); A('s_mov_b32 s9, s11'); A('s_mov_b32 s19, 0x%x' % VF)
    A.label('Lkv_go')
    gen_prole(A)
    A.label('Lkv_kernel_end')
    A('s_endpgm')
    return A, ('kv_kernel', (256, 1, 1), 256, 122880, 512, 64, 256)

def gen_u_kernel():
    A = Asm()
    common_entry(A, 'u_kernel', 256)
    A('s_load_dwordx4 s[40:43], s[0:1], 32')
    A('s_waitcnt lgkmcnt(0)')
    srd(A, 4, 12, 13, WS_BYTES)
    srd(A, 8, 40, 41, 640 * 12288)
    A('s_lshr_b32 s26, s2, 3')
    A('s_and_b32 s30, s2, 7')
    load_w_u(A, 42)
    A('s_mul_i32 s17, s30, 11'); A('s_add_u32 s18, s17, 11')
    A('s_cmp_lt_u32 s30, 4'); A('s_cbranch_scc1 Lu_U')
    A('s_mul_i32 s17, s30, 10'); A('s_add_u32 s17, s17, 4'); A('s_add_u32 s18, s17, 10')
    A('s_cmp_lt_u32 s30, 6'); A('s_cbranch_scc1 Lu_U')
    gen_urole_loop(A, 'B')
    A('s_branch Lu_kernel_end')
    A.label('Lu_U')
    gen_urole_loop(A, 'U')
    A.label('Lu_kernel_end')
    A('s_endpgm')
    return A, ('u_kernel', (256, 1, 1), 256, 122880, 512, 64, 256)

if __name__ == '__main__':
    build([gen_prep(), gen_kv_kernel(), gen_u_kernel()], 'stage1.s')
```

```python
from dsl import *
from layout import *
from gen_prep import srd, f32bits, rnd_bf16
from gen_roles import *
from gen_attn import xlane, stats_out
from gen_mlp import gelu_pair
import math

def cnt_addr(kind): return CNT + kind * 72 * 64 + 64

def cnt_signal(A, kind, sseg, allw=False):
    L = A.uniq('Lcs')
    if not allw:
        A('s_cmp_lg_u32 s14, 0'); A('s_cbranch_scc1 %s' % L)
    A('s_lshl_b32 s46, %s, 6' % sseg); A('s_add_u32 s46, s46, 0x%x' % cnt_addr(kind))
    A('v_mov_b32 v4, s46'); A('v_mov_b32 v5, 1'); A('s_mov_b64 exec, 1')
    A('buffer_atomic_add v5, v4, s[4:7], 0 offen')
    if TRACE[0]:
        A('s_mov_b32 s98, %d' % (256 + kind)); A('s_nop 0'); trace(A, sseg, 4, 5)
    A('s_mov_b64 exec, -1')
    A.label(L)

def gen_srole(A, kind):
    KS = 48 if kind == 4 else 20
    Asrc = {1: HF, 2: TF, 3: X1F, 4: U2F}[kind]
    Wsrc = {1: W1F, 2: W2F, 3: W3F, 4: W4F}[kind]
    ln = kind in (1, 3)
    two = kind != 4
    dkind, dneed, dn, doff = {1: (0, 5, 1, 0), 2: (1, 20, 3, -1), 3: (2, 20, 1, 0), 4: (3, 48, 1, 0)}[kind]
    vL16, vN, vG, vFA, vFV = 1, 2, 3, 8, 9
    ACC = 12
    CS = 28
    XB = [36, 40, 44, 48, 52, 56]
    MU, RHO = 60, 62
    IN = [64, 96] if two else [64]
    vST = 124; XT = 125; vX0 = 92 if two else 64
    SH = 10
    PK = 36; t = [44, 45, 46, 47, 48, 49]
    def wreg(a, ks):
        r = (a * KS + ks) * 4
        return ('a[%d:%d]' % (r, r + 3)) if r < 256 else ('v[%d:%d]' % (r - 128, r - 125))
    A('v_lshlrev_b32 v%d, 4, v0' % vL16); A('v_and_b32 v%d, 15, v0' % vN); A('v_lshrrev_b32 v%d, 4, v0' % vG)
    A('s_lshl_b32 s29, s18, 2'); A('s_add_u32 s29, s29, s14')
    A('s_mul_i32 s23, s29, %d' % (2 * KS * 1024)); A('s_add_u32 s23, s23, 0x%x' % Wsrc)
    for i in range(2 * KS):
        A('buffer_load_dwordx4 %s, v%d, s[4:7], s23 offen offset:%d' % (wreg(i // KS, i % KS), vL16, 1024 * (i % 4)))
        if i % 4 == 3: A('s_add_u32 s23, s23, 4096')
    c1 = -2 * math.log2(math.e) * 0.7978845608028654
    A('v_mov_b32 v7, 0x%08x' % f32bits(c1)); A('s_mov_b32 s51, 0x%08x' % f32bits(c1 * 0.044715))
    if kind == 2: A('v_lshlrev_b32 v6, 3, v%d' % vN)
    if kind == 4:
        A('v_mul_u32_u24 v6, 1280, v%d' % vN); A('v_lshl_add_u32 v6, v%d, 3, v6' % vG)
    A('s_waitcnt vmcnt(0)')
    if ln:
        for r in range(4): A('v_mov_b32 v%d, 0x3f803f80' % (XB[0] + r))
        for ks in range(KS):
            for a in range(2):
                d = CS + 4 * a
                A('v_mfma_f32_16x16x32_bf16 v[%d:%d], %s, v[%d:%d], %s' % (d, d + 3, wreg(a, ks), XB[0], XB[0] + 3, '0' if ks == 0 else 'v[%d:%d]' % (d, d + 3)))
    nfr = 2 * KS; per = nfr // 4
    class Rec:
        def __init__(self): self.l = []
        def __call__(self, x): self.l.append(x)
    def flag_setup(sseg, A=A):
        A('v_add_u32 v%d, %s, v0' % (vFA, sseg))
        if doff: A('v_add_u32 v%d, %d, v%d' % (vFA, doff, vFA))
        A('v_cmp_gt_u32 vcc, 64, v%d' % vFA)
        A('s_and_b64 s[48:49], vcc, %d' % ((1 << dn) - 1))
        A('v_lshlrev_b32 v%d, 6, v%d' % (vFA, vFA)); A('v_add_u32 v%d, 0x%x, v%d' % (vFA, cnt_addr(dkind), vFA))
    def loads(sseg, par, A=A):
        lds0 = par * 40960
        if kind != 2:
            A('s_mul_i32 s20, %s, %d' % (sseg, nfr * 1024)); A('s_add_u32 s20, s20, 0x%x' % Asrc)
            A('s_mul_i32 s21, s14, %d' % (per * 1024)); A('s_add_u32 s20, s20, s21'); A('s_add_u32 s21, s21, %d' % lds0)
            for k in range(per):
                if k % 4 == 0:
                    if k: A('s_add_u32 s20, s20, 4096'); A('s_add_u32 s21, s21, 4096')
                    A('s_mov_b32 m0, s21')
                A('buffer_load_dwordx4 v%d, s[4:7], s20 offen offset:%d sc1 lds' % (vL16, 1024 * (k % 4)))
        else:
            A('s_lshl_b32 s20, %s, 5' % sseg); A('s_add_u32 s20, s20, s52')
            A('s_mul_i32 s22, s14, 5120')
            for r in range(2):
                A('v_add_u32 v%d, s20, v%d' % (SH, vN))
                if r: A('v_add_u32 v%d, 16, v%d' % (SH, SH))
                A('v_ashrrev_i32 v%d, 4, v%d' % (SH + 1, SH)); A('v_mul_i32_i24 v%d, 20480, v%d' % (SH + 1, SH + 1))
                A('v_and_b32 v%d, 15, v%d' % (SH, SH)); A('v_lshl_add_u32 v%d, v%d, 4, v%d' % (SH, vG, SH)); A('v_lshl_add_u32 v%d, v%d, 4, v%d' % (SH + 1, SH, SH + 1))
                A('s_add_u32 m0, s22, %d' % (lds0 + r * 20480))
                for k in range(4):
                    A('buffer_load_dwordx4 v%d, s[8:11], s22 offen offset:%d sc1 lds' % (SH + 1, 1024 * k))
                A('s_add_u32 m0, s22, %d' % (lds0 + r * 20480 + 4096)); A('s_add_u32 s21, s22, 4096')
                A('buffer_load_dwordx4 v%d, s[8:11], s21 offen sc1 lds' % (SH + 1))
        base = IN[par]
        if kind in (1, 2, 3):
            STs = ST2 if kind == 3 else ST1
            A('v_mul_u32_u24 v%d, 640, v%d' % (vST, vG)); A('v_lshl_add_u32 v%d, v%d, 3, v%d' % (vST, vN, vST))
            A('s_mul_i32 s25, %s, 5120' % sseg); A('s_add_u32 s25, s25, 0x%x' % STs)
            for r in range(2):
                for k in range(5):
                    A('buffer_load_dwordx2 v[%d:%d], v%d, s[4:7], s25 offen offset:%d sc1' % (base + r * 10 + 2 * k, base + r * 10 + 2 * k + 1, vST, 2560 * r + 128 * k))
        if kind in (2, 4):
            for si, src in enumerate((HF,) if kind == 2 else (HF, X1F)):
                A('s_mul_i32 s25, %s, 40' % sseg); A('s_add_u32 s25, s25, s29'); A('s_lshl_b32 s25, s25, 10'); A('s_add_u32 s25, s25, 0x%x' % src)
                for r in range(2):
                    e = base + 20 + (si * 2 + r) * 4
                    A('buffer_load_dwordx4 v[%d:%d], v%d, s[4:7], s25 offen sc1' % (e, e + 3, vL16))
                    if r == 0: A('s_add_u32 s25, s25, 20480')
    def unpack(src, lo, hi):
        A('v_lshlrev_b32 v%d, 16, v%d' % (lo, src)); A('v_and_b32 v%d, 0xffff0000, v%d' % (hi, src))
    if kind == 2:
        A('s_lshr_b32 s52, s14, 1'); A('s_add_u32 s52, s52, 1')
        A('s_and_b32 s53, s14, 1'); A('s_sub_u32 s54, 0, s52'); A('s_cmp_eq_u32 s53, 0'); A('s_cselect_b32 s52, s54, s52')
    END = A.uniq('Ls_end'); LOOP = A.uniq('Ls_loop')
    A('s_mov_b32 s55, 64')
    flag_setup('s17'); wait_prog(A, vFA, vFV, '%d' % dneed, 's[48:49]')
    loads('s17', 0)
    def next_flag(sseg, A=A):
        A('s_add_u32 s33, %s, s19' % sseg)
        flag_setup('s33', A)
        A('buffer_load_dword v%d, v%d, s[4:7], 0 offen sc1' % (vFV, vFA))
    if two: next_flag('s17')
    A('s_waitcnt vmcnt(0)')
    NST = {1: 2, 2: 4, 3: 2, 4: 4}[kind]
    def stats_stream(base):
        class Rec:
            def __init__(self): self.l = []
            def __call__(self, x): self.l.append(x)
        A = Rec()
        if kind in (1, 2, 3):
            for r in range(2):
                b = base + r * 10
                for k in range(1, 5):
                    A('v_add_f32 v%d, v%d, v%d' % (b, b, b + 2 * k)); A('v_add_f32 v%d, v%d, v%d' % (b + 1, b + 1, b + 2 * k + 1))
                xlane(A, 'v_add_f32', b, XT); xlane(A, 'v_add_f32', b + 1, XT)
                mean, var, m1, s1 = b, b + 1, b + 2, b + 3
                A('v_mul_f32 v%d, 0x%08x, v%d' % (mean, f32bits(1 / 640), mean))
                A('v_mul_f32 v%d, 0x%08x, v%d' % (var, f32bits(1 / 640), var))
                A('v_fma_f32 v%d, -v%d, v%d, v%d' % (var, mean, mean, var))
                A('v_max_f32 v%d, 0, v%d' % (var, var))
                A('v_mov_b32 v%d, v%d' % (m1, mean)); rnd_bf16(A, m1)
                A('v_mov_b32 v%d, v%d' % (s1, var)); rnd_bf16(A, s1)
                A('v_add_f32 v%d, 0x%08x, v%d' % (s1, f32bits(1e-5), s1)); rnd_bf16(A, s1)
                A('v_sqrt_f32 v%d, v%d' % (s1, s1)); rnd_bf16(A, s1)
                A('v_rcp_f32 v%d, v%d' % (RHO + r, s1))
                if kind == 1:
                    m2, s2 = b + 4, b + 5
                    A('v_sub_f32 v%d, v%d, v%d' % (m2, mean, m1)); A('v_mul_f32 v%d, v%d, v%d' % (m2, m2, RHO + r)); rnd_bf16(A, m2)
                    A('v_mul_f32 v%d, v%d, v%d' % (s2, var, RHO + r)); A('v_mul_f32 v%d, v%d, v%d' % (s2, s2, RHO + r)); rnd_bf16(A, s2)
                    A('v_add_f32 v%d, 0x%08x, v%d' % (s2, f32bits(1e-5), s2)); rnd_bf16(A, s2)
                    A('v_sqrt_f32 v%d, v%d' % (s2, s2)); rnd_bf16(A, s2)
                    A('v_rcp_f32 v%d, v%d' % (s2, s2))
                    A('v_fma_f32 v%d, v%d, v%d, v%d' % (MU + r, m2, s1, m1))
                    A('v_mul_f32 v%d, v%d, v%d' % (RHO + r, RHO + r, s2))
                else:
                    A('v_mov_b32 v%d, v%d' % (MU + r, m1))
        return A.l
    def tp(pt):
        if TRACE[0] and kind == 2:
            L = A.uniq('Ltp')
            A('s_or_b32 s99, s18, s14'); A('s_and_b32 s98, s17, 1'); A('s_or_b32 s99, s99, s98'); A('s_cmp_lg_u32 s99, 0'); A('s_cbranch_scc1 %s' % L)
            A('s_lshl_b32 s95, s17, 1'); A('s_add_u32 s95, s95, %d' % pt); A('s_mov_b32 s98, 262')
            A('s_mov_b64 exec, 1'); trace(A, 's95', 126, 127); A('s_mov_b64 exec, -1')
            A.label(L)
    def body(par):
        base = IN[par]
        tp(0)
        A('s_waitcnt vmcnt(%d)' % NST)
        A('s_barrier')
        tp(1)
        A('s_add_u32 s27, s17, s19')
        A('s_mov_b32 s28, 1')
        seq = [(ks, r) for ks in range(KS) for r in range(2)]
        LA = 4
        A('v_add_u32 v%d, %d, v%d' % (vX0, par * 40960, vL16)); A('v_add_u32 v%d, 65536, v%d' % (vX0 + 1, vL16))
        def xrd(i):
            ks, r = seq[i]; b = XB[i % 6]; off = (r * KS + ks) * 1024
            if off < 65536: return 'ds_read_b128 v[%d:%d], v%d offset:%d' % (b, b + 3, vX0, off)
            return 'ds_read_b128 v[%d:%d], v%d offset:%d' % (b, b + 3, vX0 + 1, off - 65536)
        def mloop(pref):
            for i in range(LA): A(xrd(i))
            sst = stats_stream(base)
            pl = []
            if pref:
                R_ = Rec(); loads('s27', 1 - par, R_); next_flag('s27', R_); pl = R_.l
            nvm = 0
            for i, (ks, r) in enumerate(seq):
                if i + LA < len(seq):
                    A(xrd(i + LA)); A('s_waitcnt lgkmcnt(%d)' % LA)
                else:
                    A('s_waitcnt lgkmcnt(%d)' % (len(seq) - 1 - i))
                b = XB[i % 6]
                for a in range(2):
                    d = ACC + (r * 2 + a) * 4
                    A('v_mfma_f32_16x16x32_bf16 v[%d:%d], %s, v[%d:%d], %s' % (d, d + 3, wreg(a, ks), b, b + 3, '0' if ks == 0 else 'v[%d:%d]' % (d, d + 3)))
                    if a == 0:
                        while pl:
                            x = pl.pop(0); A(x)
                            if x.startswith('buffer_'):
                                nvm += 1; break
                    else:
                        for _ in range(3):
                            if sst: A(sst.pop(0))
                if two and i == 12:
                    Ld = A.uniq('Lsd')
                    A('s_cmp_ge_u32 s55, 64'); A('s_cbranch_scc1 %s' % Ld)
                    A('s_waitcnt vmcnt(%d)' % nvm)
                    cnt_signal(A, kind, 's55', True)
                    A('s_mov_b32 s55, 64')
                    A.label(Ld)
            assert not pl
            while sst: A(sst.pop(0))
        if two:
            Lp, Lj = A.uniq('Lsp'), A.uniq('Lsj')
            A('s_cmp_ge_u32 s27, 64'); A('s_cbranch_scc1 %s' % Lp)
            A('v_cmp_gt_u32 vcc, %d, v%d' % (dneed, vFV)); A('s_and_b64 vcc, vcc, s[48:49]'); A('s_cbranch_scc1 %s' % Lp)
            A('s_mov_b32 s28, 0')
            mloop(True)
            A('s_branch %s' % Lj)
            A.label(Lp)
            mloop(False)
            A.label(Lj)
        else:
            mloop(False)
        tp(3)
        EX = base + 20
        for r in range(2):
            for j in range(4):
                d = ACC + r * 8 + 2 * j; pk = PK + 4 * r + j
                if ln:
                    for e in range(2):
                        A('v_fma_f32 v%d, -v%d, v%d, v%d' % (d + e, MU + r, CS + 2 * j + e, d + e))
                        A('v_mul_f32 v%d, v%d, v%d' % (d + e, d + e, RHO + r))
                    A('v_cvt_pk_bf16_f32 v%d, v%d, v%d' % (t[0], d, d + 1)); unpack(t[0], d, d + 1)
                    gelu_pair(A, d, d + 1, t[0], t[1])
                    A('v_cvt_pk_bf16_f32 v%d, v%d, v%d' % (pk, d, d + 1))
                elif kind == 2:
                    A('v_cvt_pk_bf16_f32 v%d, v%d, v%d' % (t[0], d, d + 1)); unpack(t[0], d, d + 1)
                    unpack(EX + 4 * r + j, t[0], t[1])
                    A('v_sub_f32 v%d, v%d, v%d' % (t[0], t[0], MU + r)); A('v_sub_f32 v%d, v%d, v%d' % (t[1], t[1], MU + r))
                    A('v_cvt_pk_bf16_f32 v%d, v%d, v%d' % (t[2], t[0], t[1])); unpack(t[2], t[0], t[1])
                    A('v_mul_f32 v%d, v%d, v%d' % (t[0], t[0], RHO + r)); A('v_mul_f32 v%d, v%d, v%d' % (t[1], t[1], RHO + r))
                    A('v_cvt_pk_bf16_f32 v%d, v%d, v%d' % (t[2], t[0], t[1])); unpack(t[2], t[0], t[1])
                    A('v_add_f32 v%d, v%d, v%d' % (t[0], t[0], d)); A('v_add_f32 v%d, v%d, v%d' % (t[1], t[1], d + 1))
                    A('v_cvt_pk_bf16_f32 v%d, v%d, v%d' % (pk, t[0], t[1])); unpack(pk, d, d + 1)
                else:
                    A('v_cvt_pk_bf16_f32 v%d, v%d, v%d' % (t[0], d, d + 1)); unpack(t[0], d, d + 1)
                    unpack(EX + 4 * (2 + r) + j, t[0], t[1])
                    A('v_add_f32 v%d, v%d, v%d' % (t[0], t[0], d)); A('v_add_f32 v%d, v%d, v%d' % (t[1], t[1], d + 1))
                    A('v_cvt_pk_bf16_f32 v%d, v%d, v%d' % (t[2], t[0], t[1])); unpack(t[2], d, d + 1)
                    unpack(EX + 4 * r + j, t[0], t[1])
                    A('v_add_f32 v%d, v%d, v%d' % (t[0], t[0], d)); A('v_add_f32 v%d, v%d, v%d' % (t[1], t[1], d + 1))
                    A('v_cvt_pk_bf16_f32 v%d, v%d, v%d' % (pk, t[0], t[1]))
            A('s_lshl_b32 s34, s17, 1'); A('s_add_u32 s34, s34, %d' % r)
            if kind == 4:
                A('s_mul_i32 s35, s34, %d' % (16 * 1280)); A('s_lshl_b32 s36, s29, 6'); A('s_add_u32 s35, s35, s36')
                A('buffer_store_dwordx2 v[%d:%d], v6, s[8:11], s35 offen' % (PK + 4 * r, PK + 4 * r + 1))
                A('buffer_store_dwordx2 v[%d:%d], v6, s[8:11], s35 offen offset:32' % (PK + 4 * r + 2, PK + 4 * r + 3))
            else:
                dst, okS = {1: (TF, 20), 2: (X1F, 20), 3: (U2F, 48)}[kind]
                A('s_mul_i32 s35, s34, %d' % okS); A('s_add_u32 s35, s35, s29'); A('s_lshl_b32 s35, s35, 10'); A('s_add_u32 s35, s35, 0x%x' % dst)
                A('buffer_store_dwordx4 v[%d:%d], v%d, s[4:7], s35 offen sc1' % (PK + 4 * r, PK + 4 * r + 3, vL16))
                if kind == 2:
                    A('s_mul_i32 s35, s34, 2560'); A('s_lshl_b32 s36, s29, 7'); A('s_add_u32 s35, s35, s36'); A('s_add_u32 s35, s35, 0x%x' % ST2)
                    stats_out(A, list(range(ACC + r * 8, ACC + r * 8 + 8)), 6, 's35', 50 + 2 * r, 51 + 2 * r, 44, 'sc1')
        Lq = A.uniq('Lsq')
        A('s_mov_b32 s55, s17')
        A('s_mov_b32 s17, s27')
        if two:
            A('s_cmp_eq_u32 s28, 0'); A('s_cbranch_scc1 %s' % Lq)
            A('s_waitcnt vmcnt(0)')
            cnt_signal(A, kind, 's55', True)
            A('s_mov_b32 s55, 64')
        else:
            if TRACE[0]:
                A('s_waitcnt vmcnt(0)'); cnt_signal(A, kind, 's55')
            A('s_barrier')
        A('s_cmp_ge_u32 s17, 64'); A('s_cbranch_scc1 %s' % END)
        flag_setup('s17'); wait_prog(A, vFA, vFV, '%d' % dneed, 's[48:49]')
        loads('s17', (1 - par) if two else 0)
        if two: next_flag('s17')
        A('s_waitcnt vmcnt(0)')
        A.label(Lq)
    A.label(LOOP)
    body(0)
    if two: body(1)
    A('s_branch %s' % LOOP)
    A.label(END)

def gen_c2role(A):
    vL16 = 1; ZA = 2; ACC = 12; PB = 76
    ZB, PMB = 140, 204
    t0, t1, t2, t3 = 220, 221, 222, 223
    XR = 224
    A('v_lshlrev_b32 v%d, 4, v0' % vL16); A('v_and_b32 v10, 15, v0'); A('v_lshrrev_b32 v11, 4, v0')
    for ct in range(8):
        A('s_lshl_b32 s29, s18, 4'); A('s_add_u32 s29, s29, %d' % ((ct >> 1) * 4))
        A('v_lshrrev_b32 v%d, 2, v10' % t0); A('v_add_u32 v%d, s29, v%d' % (t0, t0))
        A('v_mul_u32_u24 v%d, 0x3334, v%d' % (t1, t0)); A('v_lshrrev_b32 v%d, 16, v%d' % (t1, t1))
        A('v_mul_u32_u24 v%d, 5, v%d' % (t2, t1)); A('v_sub_u32 v%d, v%d, v%d' % (t2, t0, t2))
        A('v_cmp_lt_u32 vcc, 2, v%d' % t2); A('v_cndmask_b32 v%d, 0, 1, vcc' % t3)
        A('v_lshl_add_u32 v%d, v%d, 1, v%d' % (t1, t1, t3))
        A('v_mul_u32_u24 v%d, 3, v%d' % (t3, t3)); A('v_sub_u32 v%d, v%d, v%d' % (t2, t2, t3))
        A('v_lshlrev_b32 v%d, 12, v%d' % (ZA + ct, t1)); A('v_lshl_add_u32 v%d, v%d, 7, v%d' % (ZA + ct, t2, ZA + ct))
        A('v_and_b32 v%d, 3, v10' % t3); A('v_lshl_add_u32 v%d, v%d, 4, v%d' % (ZA + ct, t3, ZA + ct))
        A('v_mul_u32_u24 v%d, 384, v11' % t3); A('v_add_u32 v%d, v%d, v%d' % (ZA + ct, ZA + ct, t3))
        if ct & 1: A('v_add_u32 v%d, 64, v%d' % (ZA + ct, ZA + ct))
    A('s_lshl_b32 s29, s18, 2'); A('s_add_u32 s29, s29, s14')
    A('v_mul_u32_u24 v232, 1280, v10'); A('v_lshl_add_u32 v232, v11, 3, v232')
    A('v_lshlrev_b32 v233, 3, v10')
    A('s_lshl_b32 s20, s14, 7'); A('s_add_u32 s20, s20, 0x%x' % PROG_R)
    A('v_lshlrev_b32 v234, 2, v0'); A('v_add_u32 v234, s20, v234')
    A('s_lshl_b32 s20, s14, 5'); A('s_add_u32 s20, s20, 0x%x' % (PROG_Q - 128)); A('v_lshlrev_b32 v%d, 2, v0' % t0); A('v_add_u32 v%d, s20, v%d' % (t0, t0))
    A('v_cmp_lt_u32 vcc, 31, v0'); A('v_cndmask_b32 v234, v234, v%d, vcc' % t0)
    A('s_lshl_b32 s20, s14, 7'); A('s_add_u32 s20, s20, 0x%x' % PROG_UK); A('v_and_b32 v236, 7, v0'); A('v_lshlrev_b32 v236, 2, v236'); A('v_add_u32 v236, s20, v236')
    A('s_mov_b32 s48, -1'); A('s_mov_b32 s49, 0xff')
    LOOP, END = A.uniq('Lc_loop'), A.uniq('Lc_end')
    A.label(LOOP)
    A('s_add_u32 s41, s17, 1')
    wait_prog(A, 236, 235, 's41')
    A('s_lshl_b32 s20, s17, 5'); A('s_lshl_b32 s21, s14, 3'); A('s_add_u32 s20, s20, s21')
    A('s_mul_i32 s22, s20, 40'); A('s_lshl_b32 s23, s18, 3'); A('s_add_u32 s22, s22, s23'); A('s_lshl_b32 s22, s22, 10'); A('s_add_u32 s22, s22, 0x%x' % UF)
    A('s_lshl_b32 s24, s20, 11'); A('s_add_u32 s24, s24, 0x%x' % PFR)
    A('s_lshl_b32 s25, s20, 9'); A('s_add_u32 s25, s25, 0x%x' % PMF)
    A('s_lshl_b32 s27, s17, 19'); A('s_lshl_b32 s28, s14, 17'); A('s_add_u32 s27, s27, s28'); A('s_add_u32 s27, s27, 0x%x' % EXP)
    for k in range(8):
        A('s_add_u32 s23, s22, 4096')
        for ct in range(8):
            r = (k * 8 + ct) * 4
            A('buffer_load_dwordx4 a[%d:%d], v%d, s[4:7], s%d offen offset:%d sc1' % (r, r + 3, vL16, 22 if ct < 4 else 23, 1024 * (ct % 4)))
        A('s_add_u32 s22, s22, 40960')
    A('s_mul_i32 s34, s17, %d' % (32 * 1280)); A('s_lshl_b32 s35, s29, 6'); A('s_add_u32 s34, s34, s35'); A('s_add_u32 s35, s34, %d' % (16 * 1280))
    for mt in range(2):
        for a in range(2):
            A('buffer_load_dwordx2 v[%d:%d], v232, s[8:11], s%d offen offset:%d' % (XR + 4 * mt + 2 * a, XR + 4 * mt + 2 * a + 1, 34 + mt, 32 * a))
    wait_prog(A, 234, 235, 's41', 's[48:49]')
    for j in range(16):
        A('buffer_load_dwordx4 v[%d:%d], v%d, s[4:7], s24 offen offset:%d sc1' % (PB + 4 * j, PB + 4 * j + 3, vL16, 1024 * (j % 4)))
        if j % 4 == 3: A('s_add_u32 s24, s24, 4096')
    for k in range(2):
        for mt in range(2):
            r = PMB + (k * 2 + mt) * 4
            A('buffer_load_dwordx4 v[%d:%d], v%d, s[4:7], s25 offen offset:%d sc1' % (r, r + 3, vL16, 2048 * k + 1024 * mt))
        for ct in range(8):
            r = ZB + (k * 8 + ct) * 4
            A('buffer_load_dwordx4 v[%d:%d], v%d, s[4:7], s27 offen offset:%d sc1' % (r, r + 3, ZA + ct, 1536 * k))
    for k in range(8):
        A('s_waitcnt vmcnt(%d)' % (20 + 14 - 2 * k))
        for ct in range(8):
            for mt in range(2):
                d = ACC + (ct * 2 + mt) * 4; r = (k * 8 + ct) * 4; p = PB + (k * 2 + mt) * 4
                A('v_mfma_f32_16x16x32_bf16 v[%d:%d], a[%d:%d], v[%d:%d], %s' % (d, d + 3, r, r + 3, p, p + 3, '0' if k == 0 else 'v[%d:%d]' % (d, d + 3)))
    for k in range(2):
        A('s_waitcnt vmcnt(%d)' % (10 - 10 * k))
        for ct in range(8):
            for mt in range(2):
                d = ACC + (ct * 2 + mt) * 4; r = ZB + (k * 8 + ct) * 4; p = PMB + (k * 2 + mt) * 4
                A('v_mfma_f32_16x16x32_bf16 v[%d:%d], v[%d:%d], v[%d:%d], v[%d:%d]' % (d, d + 3, r, r + 3, p, p + 3, d, d + 3))
    A('s_lshl_b32 s36, s14, 14'); A('v_add_u32 v%d, s36, v%d' % (t1, vL16))
    for j in range(16):
        A('ds_write_b128 v%d, v[%d:%d] offset:%d' % (t1, ACC + 4 * j, ACC + 4 * j + 3, 1024 * j))
    A('s_waitcnt lgkmcnt(0)')
    A('s_barrier')
    A('s_lshl_b32 s36, s14, 12'); A('v_add_u32 v%d, s36, v%d' % (t1, vL16))
    RD = 76
    for j in range(4):
        for ws in range(4):
            r = RD + (j * 4 + ws) * 4
            A('ds_read_b128 v[%d:%d], v%d offset:%d' % (r, r + 3, t1, ws * 16384 + j * 1024))
    for j in range(4):
        A('s_waitcnt lgkmcnt(%d)' % (12 - 4 * j))
        a = RD + j * 16
        for h2 in range(2):
            A('v_pk_add_f32 v[%d:%d], v[%d:%d], v[%d:%d]' % (a + 2 * h2, a + 2 * h2 + 1, a + 2 * h2, a + 2 * h2 + 1, a + 4 + 2 * h2, a + 5 + 2 * h2))
            A('v_pk_add_f32 v[%d:%d], v[%d:%d], v[%d:%d]' % (a + 8 + 2 * h2, a + 9 + 2 * h2, a + 8 + 2 * h2, a + 9 + 2 * h2, a + 12 + 2 * h2, a + 13 + 2 * h2))
        for h2 in range(2):
            A('v_pk_add_f32 v[%d:%d], v[%d:%d], v[%d:%d]' % (a + 2 * h2, a + 2 * h2 + 1, a + 2 * h2, a + 2 * h2 + 1, a + 8 + 2 * h2, a + 9 + 2 * h2))
    HP = 12
    for mt in range(2):
        for a in range(2):
            for h2 in range(2):
                src = RD + (a * 2 + mt) * 16 + 2 * h2; xr = XR + 4 * mt + 2 * a + h2; f = 20 + 4 * a + 2 * h2
                A('v_cvt_pk_bf16_f32 v28, v%d, v%d' % (src, src + 1))
                A('v_lshlrev_b32 v29, 16, v28'); A('v_and_b32 v28, 0xffff0000, v28')
                A('v_lshlrev_b32 v30, 16, v%d' % xr); A('v_and_b32 v31, 0xffff0000, v%d' % xr)
                A('v_add_f32 v29, v29, v30'); A('v_add_f32 v28, v28, v31')
                pk = HP + 4 * mt + 2 * a + h2
                A('v_cvt_pk_bf16_f32 v%d, v29, v28' % pk)
                A('v_lshlrev_b32 v%d, 16, v%d' % (f, pk)); A('v_and_b32 v%d, 0xffff0000, v%d' % (f + 1, pk))
        A('s_lshl_b32 s34, s17, 1'); A('s_add_u32 s34, s34, %d' % mt)
        A('s_mul_i32 s35, s34, 20'); A('s_add_u32 s35, s35, s29'); A('s_lshl_b32 s35, s35, 10'); A('s_add_u32 s35, s35, 0x%x' % HF)
        A('buffer_store_dwordx4 v[%d:%d], v%d, s[4:7], s35 offen sc1' % (HP + 4 * mt, HP + 4 * mt + 3, vL16))
        A('s_mul_i32 s34, s34, 2560'); A('s_lshl_b32 s35, s29, 7'); A('s_add_u32 s34, s34, s35'); A('s_add_u32 s34, s34, 0x%x' % ST1)
        stats_out(A, list(range(20, 28)), 233, 's34', 32 + 2 * mt, 33 + 2 * mt, 28, 'sc1')
    A('s_waitcnt vmcnt(0)')
    A('s_barrier')
    A('v_mov_b32 v40, v4'); A('v_mov_b32 v41, v5')
    cnt_signal(A, 0, 's17')
    A('v_mov_b32 v4, v40'); A('v_mov_b32 v5, v41')
    A('s_add_u32 s17, s17, s19')
    A('s_cmp_lt_u32 s17, 64'); A('s_cbranch_scc1 %s' % LOOP)
```

```python
XNF  = 0x0000000
KF   = 0x0400000
VF   = 0x1C00000
UF   = 0x3400000
BF   = 0x8400000
PFR  = 0x9D00000
PMF  = 0xA100000
HF   = 0xA200000
TF   = 0xA500000
X1F  = 0xA800000
U2F  = 0xAB00000
ST1  = 0xB100000
ST2  = 0xB180000
CTL  = 0xB200000
E1   = 0xB700000
MEMF = 0xB780000
E2   = 0xB800000
W1F  = 0xBA00000
W2F  = 0xBB00000
W3F  = 0xBC00000
W4F  = 0xBE00000
EXP  = 0xC000000
WS_BYTES = 0x10000000
E1_SLOT = 4 * 32 * 640
E1_G = 32 * 640
MEM_SLOT = 4 * 10240
SEG_KF = 2 * 32 * 12 * 512
SEG_UF = 32 * 40 * 1024
PROG_UK = CTL + 0x1000
PROG_V  = CTL + 0x1400
PROG_R  = CTL + 0x2400
PROG_Q  = CTL + 0x2600
BCNT    = CTL + 0x2800
TQ      = CTL + 0x2a00
CNT     = CTL + 0x3000
E1V  = 0xB600000
E1V_SLOT = 4 * 32 * 768
```

```python
import sys
from gen_mlp import *
import gen_rec10 as REC
from gen_stage import gen_srole, gen_c2role

NTAU = 38
SKEW = {0: 0, 1: 1, 2: 3, 3: 4, 4: 5}
def cnt_addr(kind): return CNT + kind * 64 * 64 + 64

def gen_tasks(A):
    A.label('Lmain_tasks')
    A('v_mbcnt_lo_u32_b32 v0, -1, 0'); A('v_mbcnt_hi_u32_b32 v0, -1, v0')
    A('s_load_dwordx2 s[52:53], s[0:1], 0')
    A('s_load_dwordx2 s[54:55], s[0:1], 96')
    A('s_load_dwordx2 s[56:57], s[0:1], 112')
    A('s_waitcnt vmcnt(0) lgkmcnt(0)')
    A('s_mov_b32 s70, s30')
    A.label('Ltask_next')
    A('s_barrier')
    A('s_cmp_lg_u32 s14, 0'); A('s_cbranch_scc1 Ltask_w')
    A('v_mov_b32 v1, 0x%x' % TQ); A('v_mov_b32 v3, 1')
    A('s_mov_b64 exec, 1')
    A('buffer_atomic_add v3, v1, s[4:7], 0 offen sc0')
    A('s_waitcnt vmcnt(0)')
    A('v_mov_b32 v1, 0'); A('ds_write_b32 v1, v3')
    A('s_mov_b64 exec, -1')
    A('s_waitcnt lgkmcnt(0)')
    A.label('Ltask_w')
    A('s_barrier')
    A('v_mov_b32 v1, 0'); A('ds_read_b32 v3, v1'); A('s_waitcnt lgkmcnt(0)')
    A('v_readfirstlane_b32 s58, v3')
    A('s_barrier')
    A('s_cmp_ge_u32 s58, %d' % (NTAU * 42)); A('s_cbranch_scc1 Lmain_end')
    A('s_mul_i32 s59, s58, 0x619'); A('s_lshr_b32 s59, s59, 16')
    A('s_mul_i32 s60, s59, 42'); A('s_sub_u32 s60, s58, s60')
    bounds = [(0, 10, 0), (10, 15, 1), (15, 20, 2), (20, 32, 3), (32, 42, 4)]
    for lo, hi, kind in bounds[:-1]:
        A('s_cmp_lt_u32 s60, %d' % hi); A('s_cbranch_scc1 Ltask_k%d' % kind)
    def head(lo, kind):
        A('s_sub_u32 s60, s60, %d' % lo)
        A('s_sub_u32 s61, s59, %d' % SKEW[kind])
        A('s_cmp_ge_u32 s61, 32'); A('s_cbranch_scc1 Ltask_next')
    def done(kind):
        A('s_waitcnt vmcnt(0)')
        A('s_barrier')
        L = A.uniq('Ltd')
        A('s_cmp_lg_u32 s14, 0'); A('s_cbranch_scc1 %s' % L)
        A('s_lshl_b32 s62, s61, 6'); A('s_add_u32 s62, s62, 0x%x' % cnt_addr(kind))
        A('v_mov_b32 v1, s62'); A('v_mov_b32 v3, 1'); A('s_mov_b64 exec, 1')
        A('buffer_atomic_add v3, v1, s[4:7], 0 offen')
        if TRACE[0]:
            A('s_mov_b32 s98, %d' % (256 + kind)); trace(A, 's61', 1, 3)
        A('s_mov_b64 exec, -1')
        A.label(L)
        A('s_branch Ltask_next')
    def dep_cnt(kind, need, nb=1, off=0):
        def f():
            A('v_add_u32 v230, s61, v0'); A('v_add_u32 v230, %d, v230' % off)
            A('v_cmp_gt_u32 vcc, 32, v230')
            A('s_and_b64 s[62:63], vcc, %d' % ((1 << nb) - 1))
            A('v_lshlrev_b32 v230, 6, v230'); A('v_add_u32 v230, 0x%x, v230' % cnt_addr(kind))
            A('s_mov_b32 s30, s70'); A('s_mov_b32 s31, 0x100000')
            wait_prog(A, 230, 231, '%d' % need, 's[62:63]')
            A('s_mov_b32 s70, s30')
        return f
    def two():
        A('s_cmp_ge_u32 s60, 5'); A('s_cselect_b32 s62, 1, 0'); A('s_cselect_b32 s63, 5, 0')
        A('s_sub_u32 s18, s60, s63'); A('s_lshl_b32 s17, s61, 1'); A('s_add_u32 s17, s17, s62')
    head(32, 4); two()
    srd(A, 8, 54, 55, 2048 * 1280)
    gen_dtask(A, 4, 'sc1', 'sc1', dep_cnt(3, 12))
    A('s_branch Ltask_next' if not TRACE[0] else 's_nop 0')
    if TRACE[0]: done(4)
    A.label('Ltask_k0')
    head(0, 0); two()
    srd(A, 8, 52, 53, 2048 * 1280)
    def dep_c2():
        A('s_add_u32 s62, s17, 1')
        A('s_mov_b32 s30, s70'); A('s_mov_b32 s31, 0x100000')
        A('v_lshlrev_b32 v230, 2, v0'); A('v_add_u32 v230, 0x%x, v230' % PROG_R)
        wait_prog(A, 230, 231, 's62')
        A('v_add_u32 v230, 256, v230'); wait_prog(A, 230, 231, 's62')
        A('v_and_b32 v230, 31, v0'); A('v_lshlrev_b32 v230, 2, v230'); A('v_add_u32 v230, 0x%x, v230' % PROG_Q)
        wait_prog(A, 230, 231, 's62')
        A('s_mov_b32 s70, s30')
    gen_c2_task(A, 'sc1', 'sc1', dep_c2)
    done(0)
    for lo, kind, dep in ((10, 1, dep_cnt(0, 10)), (15, 2, dep_cnt(1, 5, 3, -1)), (20, 3, dep_cnt(2, 5))):
        A.label('Ltask_k%d' % kind)
        head(lo, kind)
        A('s_mov_b32 s17, s61'); A('s_mov_b32 s18, s60')
        if kind == 2:
            A('s_add_u32 s64, s56, 0x%x' % TF); A('s_addc_u32 s65, s57, 0')
            srd(A, 8, 64, 65, 2048 * 1280)
        gen_dtask(A, kind, 'sc1', 'sc1', dep)
        done(kind)

def gen_phase2(A):
    A.label('Lmain_tasks')
    A('s_load_dwordx2 s[58:59], s[0:1], 0')
    A('s_load_dwordx2 s[60:61], s[0:1], 96')
    A('s_load_dwordx2 s[56:57], s[0:1], 112')
    A('s_waitcnt vmcnt(0) lgkmcnt(0)')
    A('s_barrier')
    def split5(lo):
        A('s_sub_u32 s20, s26, %d' % lo); A('s_mul_i32 s17, s20, 0x3334'); A('s_lshr_b32 s17, s17, 16')
        A('s_mul_i32 s18, s17, 5'); A('s_sub_u32 s18, s20, s18')
    A('s_cmp_eq_u32 s16, 1'); A('s_cbranch_scc1 Lph_v')
    A('s_cmp_eq_u32 s16, 2'); A('s_cbranch_scc1 Lph_u')
    A('s_cmp_ge_u32 s26, 30'); A('s_cbranch_scc1 Lmain_end')
    split5(0); A('s_mov_b32 s19, 6')
    srd(A, 8, 58, 59, 2048 * 1280)
    gen_c2role(A)
    A('s_branch Lmain_end')
    A.label('Lph_v')
    A('s_mov_b32 s19, 2')
    A('s_cmp_ge_u32 s26, 20'); A('s_cbranch_scc1 Lph_v3')
    A('s_cmp_ge_u32 s26, 10'); A('s_cbranch_scc1 Lph_v2')
    split5(0); gen_srole(A, 1); A('s_branch Lmain_end')
    A.label('Lph_v2')
    split5(10)
    A('s_add_u32 s64, s56, 0x%x' % TF); A('s_addc_u32 s65, s57, 0')
    srd(A, 8, 64, 65, 2048 * 1280)
    gen_srole(A, 2); A('s_branch Lmain_end')
    A.label('Lph_v3')
    A('s_sub_u32 s18, s26, 20'); A('s_mov_b32 s17, 0')
    A.label('Lph_d3')
    gen_srole(A, 3); A('s_branch Lmain_end')
    A.label('Lph_u')
    A('s_mov_b32 s19, 2'); A('s_sub_u32 s18, s26, 20'); A('s_mov_b32 s17, 1')
    A('s_cmp_ge_u32 s26, 20'); A('s_cbranch_scc1 Lph_d3')
    split5(0); A('s_mov_b32 s19, 4')
    srd(A, 8, 60, 61, 2048 * 1280)
    gen_srole(A, 4)

def gen_main_kernel(stamp=False, opt=None):
    REC.OPT.clear(); REC.OPT.update({'fused': True, 'upf': 'sc1'}); REC.OPT.update(opt or {})
    A = Asm(); A.nuniq = 50000
    A.raw(kernel_header('main_kernel'))
    A('s_cmp_ge_u32 s2, 256'); A('s_cbranch_scc1 Lmain_end')
    A('s_load_dwordx4 s[32:35], s[0:1], 104')
    A('s_getreg_b32 s15, hwreg(HW_REG_XCC_ID)'); A('s_and_b32 s15, s15, 7')
    A('v_lshrrev_b32 v1, 6, v0'); A('v_readfirstlane_b32 s14, v1'); A('v_and_b32 v0, 63, v0')
    A('s_waitcnt lgkmcnt(0)')
    srd(A, 4, 34, 35, WS_BYTES)
    srd(A, 8, 32, 33, 256)
    A('s_mov_b32 s30, 0'); A('s_mov_b32 s31, 0x100000')
    A('s_cmp_lg_u32 s14, 0'); A('s_cbranch_scc1 Lmain_w')
    A('s_lshl_b32 s16, s15, 2')
    A('v_mov_b32 v1, s16'); A('v_mov_b32 v3, 1')
    A('s_mov_b64 exec, 1')
    A('buffer_atomic_add v3, v1, s[8:11], 0 offen sc0')
    A('s_mov_b64 exec, -1')
    A('v_and_b32 v1, 7, v0'); A('v_lshlrev_b32 v1, 2, v1')
    A.label('Lmain_cen')
    A('buffer_load_dword v2, v1, s[8:11], 0 offen sc1')
    A('s_waitcnt vmcnt(0)')
    A('s_mov_b32 s20, 0'); A('s_mov_b32 s21, 0'); A('s_mov_b32 s22, 0')
    for x in range(8):
        A('v_readlane_b32 s23, v2, %d' % x)
        A('s_add_u32 s20, s20, s23')
        A('s_cmp_gt_u32 s15, %d' % x); A('s_cselect_b32 s24, s23, 0'); A('s_add_u32 s21, s21, s24')
        A('s_cmp_lg_u32 s23, 32'); A('s_cselect_b32 s24, 1, 0'); A('s_or_b32 s22, s22, s24')
    A('s_cmp_ge_u32 s20, 256'); A('s_cbranch_scc1 Lmain_cd')
    A('s_add_u32 s30, s30, 1'); A('s_cmp_lt_u32 s30, s31'); A('s_cbranch_scc1 Lmain_cen')
    A.label('Lmain_cd')
    A('v_readfirstlane_b32 s16, v3')
    A('s_add_u32 s16, s16, s21')
    A('s_lshl_b32 s22, s22, 8'); A('s_or_b32 s16, s16, s22')
    A('v_mov_b32 v1, 0'); A('v_mov_b32 v2, s16')
    A('ds_write_b32 v1, v2')
    A('s_waitcnt lgkmcnt(0)')
    A.label('Lmain_w')
    A('s_barrier')
    A('v_mov_b32 v1, 0')
    A('ds_read_b32 v3, v1')
    A('s_waitcnt lgkmcnt(0)')
    A('v_readfirstlane_b32 s16, v3')
    A('s_barrier')
    A('s_lshr_b32 s3, s16, 8')
    if TRACE[0]:
        A('s_and_b32 s98, s16, 255')
        A('s_mov_b64 exec, 1'); trace(A, '99', 4, 5); A('s_mov_b64 exec, -1')
    if REC.OPT.get('forceslow'): A('s_mov_b32 s3, 1')
    A('s_bfe_u32 s15, s16, 0x30005')
    A('s_and_b32 s16, s16, 31')
    A('s_cmp_ge_u32 s15, 4'); A('s_cbranch_scc1 Lmain_worker')
    A('s_load_dwordx4 s[40:43], s[0:1], 32')
    A('s_lshl_b32 s26, s15, 3'); A('s_lshr_b32 s17, s16, 2'); A('s_add_u32 s26, s26, s17')
    A('s_and_b32 s45, s16, 3')
    A('s_waitcnt lgkmcnt(0)')
    srd(A, 8, 40, 41, 640 * 12288); srd(A, 20, 42, 43, 32 * 245760)
    A('s_mul_i32 s28, s26, 245760'); A('s_mul_i32 s29, s45, 320'); A('s_add_u32 s28, s28, s29')
    A('s_lshl_b32 s29, s14, 6'); A('s_lshl_b32 s27, s14, 10')
    for k in range(15):
        A('v_add_u32 v1, s29, v0'); A('v_add_u32 v1, %d, v1' % (256 * k))
        A('v_mul_u32_u24 v2, 0xccd, v1'); A('v_lshrrev_b32 v2, 16, v2')
        A('v_mul_u32_u24 v3, 20, v2'); A('v_sub_u32 v3, v1, v3')
        A('v_mul_u32_u24 v2, 1280, v2'); A('v_lshl_add_u32 v2, v3, 4, v2')
        A('s_add_u32 m0, s27, %d' % (4096 * k))
        A('buffer_load_dwordx4 v2, s[20:23], s28 offen lds')
    A('v_and_b32 v1, 15, v0'); A('v_mul_u32_u24 v4, 12288, v1'); A('v_lshrrev_b32 v2, 4, v0'); A('v_mul_u32_u24 v3, 24, v2'); A('v_add_u32 v4, v4, v3')
    A('s_mul_i32 s17, s14, %d' % (5 * 32 * 12288)); A('s_mul_i32 s18, s26, 384'); A('s_add_u32 s17, s17, s18')
    def aload(slot):
        for mt in range(2):
            for pp in range(4):
                r = 8 + slot * 48 + mt * 24 + 6 * pp
                A('buffer_load_dwordx4 v[%d:%d], v4, s[8:11], s17 offen offset:%d' % (r, r + 3, 96 * pp))
                A('buffer_load_dwordx2 v[%d:%d], v4, s[8:11], s17 offen offset:%d' % (r + 4, r + 5, 96 * pp + 16))
            A('s_add_u32 s17, s17, %d' % (16 * 12288))
    for sl in range(3): aload(sl)
    A('v_mul_u32_u24 v2, 12, v2'); A('v_bfe_u32 v3, v0, 2, 2'); A('v_add_u32 v2, v2, v3'); A('v_mul_u32_u24 v2, 320, v2')
    A('v_and_b32 v3, 3, v0'); A('v_lshl_add_u32 v2, v3, 3, v2')
    A('v_lshlrev_b32 v5, 4, v0')
    A('s_mul_i32 s18, s14, %d' % (5 * SEG_UF)); A('s_mul_i32 s19, s26, 40'); A('s_mul_i32 s24, s45, 10'); A('s_add_u32 s19, s19, s24'); A('s_lshl_b32 s19, s19, 10')
    A('s_add_u32 s18, s18, s19'); A('s_add_u32 s18, s18, 0x%x' % BF)
    A('s_waitcnt vmcnt(48)')
    A('s_barrier')
    aload(3)
    for nu in range(10):
        for kap in range(6):
            r = (nu * 6 + kap) * 4
            for a in range(2):
                pl = 2 * kap + a
                A('ds_read_b64_tr_b16 a[%d:%d], v2 offset:%d' % (r + 2 * a, r + 2 * a + 1, (48 * (pl // 3) + 4 * (pl % 3)) * 320 + 32 * nu))
        A('s_waitcnt lgkmcnt(0)')
    DD, PK = [200, 208, 216], [224, 228, 232]
    for sg in range(5):
        A('s_waitcnt vmcnt(%d)' % {0: 48, 1: 58, 2: 52, 3: 46, 4: 30}[sg])
        vb = 8 + (sg % 4) * 48
        A('s_add_u32 s24, s18, 4096'); A('s_add_u32 s25, s18, 8192')
        pend = []
        for nu in range(10):
            d = DD[nu % 3]; k = 0
            for kap in range(6):
                for mt in range(2):
                    w = (nu * 6 + kap) * 4; a = vb + mt * 24 + 4 * kap; dd = d + 4 * mt
                    A('v_mfma_f32_16x16x32_bf16 v[%d:%d], v[%d:%d], a[%d:%d], %s' % (dd, dd + 3, a, a + 3, w, w + 3, '0' if kap == 0 else 'v[%d:%d]' % (dd, dd + 3)))
                    k += 1
                    if k >= 6 and pend: A(pend.pop(0))
            pk = PK[nu % 3]
            pend = ['v_cvt_pk_bf16_f32 v%d, v%d, v%d' % (pk + j, d + 2 * j, d + 2 * j + 1) for j in range(4)]
            pend.append('buffer_store_dwordx4 v[%d:%d], v5, s[4:7], s%d offen offset:%d' % (pk, pk + 3, (18, 24, 25)[nu // 4], 1024 * (nu % 4)))
        while pend: A(pend.pop(0))
        if sg == 0: aload(0)
        A('s_add_u32 s18, s18, %d' % SEG_UF)
    A('s_waitcnt vmcnt(0)')
    A('s_cmp_eq_u32 s3, 0'); A('s_cbranch_scc1 Lmain_b1')
    A('buffer_wbl2 sc1'); A('s_waitcnt vmcnt(0)')
    A.label('Lmain_b1')
    A('s_barrier')
    A('s_lshl_b32 s20, s15, 7'); A('s_add_u32 s20, s20, 0x%x' % BCNT); A('v_mov_b32 v6, s20')
    A('s_cmp_lg_u32 s14, 0'); A('s_cbranch_scc1 Lmain_b2')
    A('v_mov_b32 v3, 1'); A('s_mov_b64 exec, 1')
    A('buffer_atomic_add v3, v6, s[4:7], 0 offen')
    A('s_mov_b64 exec, -1')
    A.label('Lmain_b2')
    REC.OPT['bwait'] = True
    A('s_load_dwordx4 s[64:67], s[0:1], 16')
    A('v_mov_b32 v1, 0x%x' % CTL)
    A('buffer_load_dword v1, v1, s[4:7], 0 offen')
    A('s_waitcnt vmcnt(0) lgkmcnt(0)')
    A('v_readfirstlane_b32 s44, v1'); A('s_and_b32 s44, s44, 8192')
    if 'par' in REC.OPT: A('s_mov_b32 s44, %d' % (8192 * int(REC.OPT['par'])))
    REC.gen_rec(A, stamp)
    A('s_branch Lmain_end')
    A.label('Lmain_worker')
    A('s_load_dwordx8 s[48:55], s[0:1], 16')
    A('s_sub_u32 s15, s15, 4')
    A('s_lshl_b32 s26, s15, 3'); A('s_lshr_b32 s17, s16, 2'); A('s_add_u32 s26, s26, s17')
    A('s_lshl_b32 s47, s15, 7'); A('s_lshl_b32 s17, s17, 2'); A('s_add_u32 s47, s47, s17'); A('s_add_u32 s47, s47, 0x%x' % PROG_UK)
    A('s_and_b32 s16, s16, 3')
    A('s_mov_b32 s17, 0'); A('s_mov_b32 s18, 64')
    A('s_waitcnt lgkmcnt(0)')
    A('s_cmp_eq_u32 s16, 2'); A('s_cbranch_scc1 Lmain_u')
    A('s_cmp_eq_u32 s16, 3'); A('s_cbranch_scc1 Lmain_q')
    A('s_mov_b32 s8, s50'); A('s_mov_b32 s9, s51'); A('s_mov_b32 s19, 0x%x' % KF); A('s_add_u32 s47, s47, 32')
    A('s_cmp_eq_u32 s16, 0'); A('s_cbranch_scc1 Lmain_p')
    A('s_mov_b32 s8, s52'); A('s_mov_b32 s9, s53'); A('s_mov_b32 s19, 0x%x' % VF)
    A('s_lshl_b32 s47, s26, 7'); A('s_add_u32 s47, s47, 0x%x' % PROG_V)
    A.label('Lmain_p')
    gen_prole(A, stf='sc1', flag=True)
    A('s_branch Lmain_tasks')
    A.label('Lmain_u')
    load_w_u(A, 54)
    gen_urole_loop(A, 'U', ldf='sc1', stf='sc1', flag=True)
    A('s_branch Lmain_tasks')
    A.label('Lmain_q')
    A('s_mov_b32 s8, s48'); A('s_mov_b32 s9, s49')
    A('s_lshl_b32 s47, s26, 2'); A('s_add_u32 s47, s47, 0x%x' % PROG_Q)
    gen_qrole(A, ldf='sc1', stf='sc1', flag=True)
    A('s_branch Lmain_end')
    gen_phase2(A)
    A.label('Lmain_end')
    A('s_endpgm')
    REC.emit_ool(A)
    return A, ('main_kernel', (256, 1, 1), 256, 147456, 512, 102, 256)

if __name__ == '__main__':
    opt = {}
    name = 'all2.s'
    for a in sys.argv[1:]:
        if a.endswith('.s'): name = a
        else:
            k, _, v = a.partition('='); opt[k] = v if _ else True
    TRACE[0] = bool(opt.get('trace'))
    parts = [gen_prep(), gen_main_kernel(stamp=bool(opt.get('stamp')), opt=opt)]
    build(parts, name)
```

```python
from dsl import *
from layout import *
from gen_prep import srd, f32bits, build, gen_prep, rnd_bf16
from gen_roles import *
import math

def xlane(A, op, v, tmp):
    for sw in ('v_permlane16_swap_b32', 'v_permlane32_swap_b32'):
        A('v_mov_b32 v%d, v%d' % (tmp, v))
        A('%s v%d, v%d' % (sw, v, tmp))
        A('%s v%d, v%d, v%d' % (op, v, v, tmp))

def gen_qrole(A, ldf='', stf='', flag=False):
    load_w_proj(A, 8)
    A('s_barrier')
    vL16, vKX, vKM, vPM = 1, 2, 163, 164
    XB = [8, 12, 16, 20]
    ACC = 24
    QP = 48
    KX = 60
    KM = 72
    SP = 80
    RD = 104
    BX = 152
    T1, T2 = 6, 7
    SPL = 122880
    A('v_lshlrev_b32 v%d, 4, v0' % vL16)
    A('v_and_b32 v40, 15, v0'); A('v_lshrrev_b32 v41, 4, v0')
    A('s_mul_i32 s20, s26, 12'); A('s_mul_i32 s21, s14, 3'); A('s_add_u32 s20, s20, s21'); A('s_lshl_b32 s20, s20, 9')
    A('v_lshlrev_b32 v%d, 3, v0' % vKX); A('v_add_u32 v%d, s20, v%d' % (vKX, vKX))
    A('s_lshl_b32 s20, s26, 2'); A('s_add_u32 s20, s20, s14'); A('s_lshl_b32 s20, s20, 12'); A('s_add_u32 s20, s20, 3072')
    A('v_and_b32 v42, 7, v40'); A('v_lshlrev_b32 v%d, 3, v42' % vKM); A('v_lshl_add_u32 v%d, v41, 6, v%d' % (vKM, vKM)); A('v_add_u32 v%d, s20, v%d' % (vKM, vKM))
    A('s_lshr_b32 s20, s26, 2'); A('s_lshl_b32 s20, s20, 1'); A('s_add_u32 s20, s20, s14'); A('s_lshl_b32 s20, s20, 10')
    A('s_and_b32 s21, s26, 3'); A('s_lshl_b32 s21, s21, 8'); A('s_add_u32 s20, s20, s21')
    A('v_lshlrev_b32 v%d, 4, v40' % vPM); A('v_lshl_add_u32 v%d, v41, 3, v%d' % (vPM, vPM)); A('v_add_u32 v%d, s20, v%d' % (vPM, vPM))
    A('v_mov_b32 v43, 0xf149f2ca')
    A('s_cmp_eq_u32 s14, 0'); A('s_cselect_b64 s[40:41], -1, 0')
    for r in range(4):
        A('v_lshl_add_u32 v42, v41, 2, %d' % r)
        A('v_cmp_gt_u32 vcc, v42, v40')
        A('v_cndmask_b32 v44, 0, v43, vcc')
        A('v_cndmask_b32 v%d, 0, v44, s[40:41]' % (BX + r))
        A('v_cndmask_b32 v%d, v44, v43, s[40:41]' % (BX + 4 + r))
    A('v_cmp_lt_u32 vcc, 1, v41'); A('v_cndmask_b32 v%d, 0, v43, vcc' % (BX + 8))
    A('s_mul_i32 s22, s14, 10240')
    A('s_mul_i32 s42, s14, 6144'); A('s_add_u32 s42, s42, %d' % SPL)
    A('s_mul_i32 s43, s14, 3072'); A('s_add_u32 s43, s43, %d' % SPL)
    A('s_lshl_b32 s44, s26, 1'); A('s_add_u32 s44, s44, s14'); A('s_lshl_b32 s44, s44, 10'); A('s_add_u32 s44, s44, 0x%x' % PFR)
    A('s_mov_b32 s45, 0x%08x' % f32bits(192 ** -0.5)); A('s_mov_b32 s50, 0x%08x' % f32bits(math.log2(math.e)))
    A('s_mov_b32 s48, -1'); A('s_mov_b32 s49, 0')
    if flag:
        A('s_lshl_b32 s20, s26, 2'); A('s_add_u32 s20, s20, s14'); A('s_lshl_b32 s20, s20, 2'); A('s_add_u32 s20, s20, 0x%x' % PROG_R)
        A('v_mov_b32 v161, s20')
    def dma(sseg, slot_sgpr, defer=False):
        return dma_seg(A, sseg, slot_sgpr, vL16, defer)
    A('s_mov_b32 s34, 0'); A('s_mov_b32 s35, 40960'); A('s_mov_b32 s36, 81920')
    dma('s17', 's34')
    A('s_add_u32 s25, s17, 1'); dma('s25', 's35')
    if flag:
        A('s_lshr_b32 s20, s26, 3'); A('s_lshl_b32 s20, s20, 7'); A('s_and_b32 s21, s26, 7'); A('s_lshl_b32 s21, s21, 2'); A('s_add_u32 s20, s20, s21')
        A('s_add_u32 s20, s20, 0x%x' % (PROG_UK + 32)); A('v_mov_b32 v165, s20')
        wait_prog(A, 165, 162, '1')
    A('s_waitcnt vmcnt(10)')
    A('s_barrier')
    class Rec:
        def __init__(self): self.l = []
        def __call__(self, x): self.l.append(x)
    def kxloads():
        A('s_mul_i32 s37, s17, %d' % SEG_KF); A('s_add_u32 s37, s37, 0x%x' % KF); A('s_add_u32 s38, s37, %d' % (SEG_KF // 2))
        for a in range(2):
            for t in range(3):
                r = KX + (a * 3 + t) * 2
                A('buffer_load_dwordx2 v[%d:%d], v%d, s[4:7], s%d offen offset:%d %s' % (r, r + 1, vKX, 37 + a, 512 * t, ldf))
    def kmloads():
        A('s_lshl_b32 s39, s17, 19'); A('s_add_u32 s39, s39, 0x%x' % EXP)
        for t in range(3):
            A('buffer_load_dwordx2 v[%d:%d], v%d, s[4:7], s39 offen offset:%d %s' % (KM + 2 * t, KM + 2 * t + 1, vKM, 256 * t, ldf))
    seq = [(ks, mt) for ks in range(20) for mt in range(2)]
    def mloop(fill):
        if flag: A('buffer_load_dword v162, v161, s[4:7], 0 offen sc1')
        kxloads()
        A('s_mov_b32 s54, 0'); A('s_add_u32 s41, s17, 1')
        A('s_add_u32 s25, s17, 2'); dg = dma('s25', 's36', True)
        A('v_add_u32 v3, s34, v%d' % vL16)
        for i in range(3):
            ks, mt = seq[i]
            A('ds_read_b128 v[%d:%d], v3 offset:%d' % (XB[i % 4], XB[i % 4] + 3, (mt * 20 + ks) * 1024))
        for i, (ks, mt) in enumerate(seq):
            if i + 3 < 40:
                k2, m2 = seq[i + 3]; b = XB[(i + 3) % 4]
                A('ds_read_b128 v[%d:%d], v3 offset:%d' % (b, b + 3, (m2 * 20 + k2) * 1024))
                A('s_waitcnt lgkmcnt(3)')
            else:
                A('s_waitcnt lgkmcnt(%d)' % (39 - i))
            b = XB[i % 4]
            for t in range(3):
                d = ACC + (mt * 3 + t) * 4; w = (t * 20 + ks) * 4
                A('v_mfma_f32_16x16x32_bf16 v[%d:%d], a[%d:%d], v[%d:%d], %s' % (d, d + 3, w, w + 3, b, b + 3, '0' if ks == 0 else 'v[%d:%d]' % (d, d + 3)))
                for _ in range(2):
                    if fill:
                        x = fill.pop(0)
                        if isinstance(x, list):
                            for y in x: A(y)
                        else: A(x)
            if i < 10:
                for x in dg.pop(0): A(x)
            if flag and i in (16, 33):
                Le, Ln = A.uniq('Lqe'), A.uniq('Lqn')
                A('s_cmp_eq_u32 s54, 1'); A('s_cbranch_scc1 %s' % Le)
                A('s_waitcnt vmcnt(%d)' % (16 if i == 16 else 0))
                A('v_cmp_gt_u32 vcc, s41, v162'); A('s_cbranch_vccnz %s' % Ln)
                kmloads(); A('s_mov_b32 s54, 1')
                A.label(Ln)
                A.label(Le)
            if flag and i == 21: A('buffer_load_dword v162, v161, s[4:7], 0 offen sc1')
        while fill:
            x = fill.pop(0)
            for y in (x if isinstance(x, list) else [x]): A(y)
        A('s_mov_b32 s25, s34'); A('s_mov_b32 s34, s35'); A('s_mov_b32 s35, s36'); A('s_mov_b32 s36, s25')
    def sm_reads():
        A('v_add_u32 v3, s43, v%d' % vL16)
        for kt in range(3):
            for ws in range(4):
                r = RD + (kt * 4 + ws) * 4
                A('ds_read_b128 v[%d:%d], v3 offset:%d' % (r, r + 3, ws * 6144 + kt * 1024))
        A('s_lshl_b32 s52, s17, 16'); A('s_add_u32 s52, s52, s44')
        A('s_lshl_b32 s53, s17, 14'); A('s_add_u32 s53, s53, 0x%x' % PMF)
        A('s_waitcnt lgkmcnt(0)')
    def sm_stream():
        R_ = Rec(); S = SP
        for kt in range(3):
            a = RD + kt * 16
            for r in range(4):
                R_('v_add_f32 v%d, v%d, v%d' % (a + r, a + r, a + 4 + r)); R_('v_add_f32 v%d, v%d, v%d' % (a + 8 + r, a + 8 + r, a + 12 + r))
            for r in range(4): R_('v_add_f32 v%d, v%d, v%d' % (a + r, a + r, a + 8 + r))
            for h2 in range(2):
                R_('v_cvt_pk_bf16_f32 v%d, v%d, v%d' % (T1, a + 2 * h2, a + 2 * h2 + 1))
                R_('v_lshlrev_b32 v%d, 16, v%d' % (T2, T1)); R_('v_and_b32 v%d, 0xffff0000, v%d' % (T1, T1))
                R_('v_mul_f32 v%d, s45, v%d' % (T2, T2)); R_('v_mul_f32 v%d, s45, v%d' % (T1, T1))
                R_('v_cvt_pk_bf16_f32 v%d, v%d, v%d' % (T1, T2, T1))
                R_('v_lshlrev_b32 v%d, 16, v%d' % (T2, T1)); R_('v_and_b32 v%d, 0xffff0000, v%d' % (T1, T1))
                b0 = (BX + 4 * kt + 2 * h2) if kt < 2 else BX + 8
                b1 = (BX + 4 * kt + 2 * h2 + 1) if kt < 2 else BX + 8
                R_('v_add_f32 v%d, v%d, v%d' % (S + 4 * kt + 2 * h2, T2, b0)); R_('v_add_f32 v%d, v%d, v%d' % (S + 4 * kt + 2 * h2 + 1, T1, b1))
        R_('v_max3_f32 v%d, v%d, v%d, v%d' % (T1, S, S + 1, S + 2))
        for k in range(3, 11, 2): R_('v_max3_f32 v%d, v%d, v%d, v%d' % (T1, T1, S + k, S + k + 1))
        R_('v_max_f32 v%d, v%d, v%d' % (T1, T1, S + 11))
        xlane(R_, 'v_max_f32', T1, T2)
        for k in range(12):
            R_('v_sub_f32 v%d, v%d, v%d' % (S + k, S + k, T1)); R_('v_mul_f32 v%d, s50, v%d' % (S + k, S + k)); R_('v_exp_f32 v%d, v%d' % (S + k, S + k))
        R_('v_add_f32 v%d, v%d, v%d' % (T1, S, S + 1))
        for k in range(2, 12): R_('v_add_f32 v%d, v%d, v%d' % (T1, T1, S + k))
        xlane(R_, 'v_add_f32', T1, T2)
        R_('v_rcp_f32 v%d, v%d' % (T1, T1))
        for k in range(12): R_('v_mul_f32 v%d, v%d, v%d' % (S + k, S + k, T1))
        for k in range(6): R_('v_cvt_pk_bf16_f32 v%d, v%d, v%d' % (RD + k, S + 2 * k, S + 2 * k + 1))
        R_('buffer_store_dwordx4 v[%d:%d], v%d, s[4:7], s52 offen %s' % (RD, RD + 3, vL16, stf))
        R_.l.append(['s_mov_b64 exec, s[48:49]', 'buffer_store_dwordx2 v[%d:%d], v%d, s[4:7], s53 offen %s' % (RD + 4, RD + 5, vPM, stf), 's_mov_b64 exec, -1'])
        return R_.l
    def smf(kts):
        for t in range(3):
            for mt in range(2):
                for kt in kts:
                    d = SP + (mt * 3 + kt) * 4
                    a = (KX + (kt * 3 + t) * 2) if kt < 2 else (KM + 2 * t)
                    q = QP + (mt * 3 + t) * 2
                    A('v_mfma_f32_16x16x16_bf16 v[%d:%d], v[%d:%d], v[%d:%d], %s' % (d, d + 3, a, a + 1, q, q + 1, '0' if t == 0 else 'v[%d:%d]' % (d, d + 3)))
    def tq(pt):
        if TRACE[0]:
            L = A.uniq('Ltq')
            A('s_cmp_lg_u32 s26, 9'); A('s_cbranch_scc1 %s' % L); A('s_cmp_lg_u32 s14, 0'); A('s_cbranch_scc1 %s' % L)
            A('s_sub_u32 s95, s17, 20'); A('s_cmp_ge_u32 s95, 16'); A('s_cbranch_scc1 %s' % L)
            A('s_lshl_b32 s95, s95, 3'); A('s_add_u32 s95, s95, %d' % pt); A('s_mov_b32 s94, s98'); A('s_mov_b32 s98, 263')
            A('s_mov_b64 exec, 1'); trace(A, 's95', 170, 171); A('s_mov_b64 exec, -1'); A('s_mov_b32 s98, s94')
            A.label(L)
    LOOP, LAST, L23, FIN = A.uniq('Lq_loop'), A.uniq('Lq_last'), A.uniq('Lq_23'), A.uniq('Lq_fin')
    mloop([])
    A.label(LOOP)
    tq(0)
    for j in range(6):
        A('v_cvt_pk_bf16_f32 v%d, v%d, v%d' % (QP + 2 * j, ACC + 4 * j, ACC + 4 * j + 1))
        A('v_cvt_pk_bf16_f32 v%d, v%d, v%d' % (QP + 2 * j + 1, ACC + 4 * j + 2, ACC + 4 * j + 3))
    A('s_waitcnt vmcnt(0)')
    if flag:
        A('s_barrier'); signal(A, 's17', 0)
    tq(1)
    smf((0, 1))
    A('v_add_u32 v3, s42, v%d' % vL16)
    for j in (0, 1, 3, 4): A('ds_write_b128 v3, v[%d:%d] offset:%d' % (SP + 4 * j, SP + 4 * j + 3, 1024 * j))
    tq(2)
    Lh = A.uniq('Lqh')
    if flag:
        A('s_cmp_eq_u32 s54, 1'); A('s_cbranch_scc1 %s' % Lh)
        wait_prog(A, 161, 162, 's41', '1', sleep=3)
    tq(3)
    kmloads()
    A('s_waitcnt vmcnt(0)')
    A.label(Lh)
    tq(4)
    smf((2,))
    for j in (2, 5): A('ds_write_b128 v3, v[%d:%d] offset:%d' % (SP + 4 * j, SP + 4 * j + 3, 1024 * j))
    A('s_waitcnt lgkmcnt(0)')
    A('s_barrier')
    tq(5)
    A('s_add_u32 s25, s17, 1'); A('s_cmp_ge_u32 s25, s18'); A('s_cbranch_scc1 %s' % LAST)
    A('s_cmp_ge_u32 s14, 2'); A('s_cbranch_scc1 %s' % L23)
    sm_reads()
    tq(6)
    A('s_add_u32 s17, s17, 1')
    mloop(sm_stream())
    A('s_branch %s' % LOOP)
    A.label(L23)
    A('s_add_u32 s17, s17, 1')
    mloop([])
    A('s_branch %s' % LOOP)
    A.label(LAST)
    A('s_cmp_ge_u32 s14, 2'); A('s_cbranch_scc1 %s' % FIN)
    sm_reads()
    for x in sm_stream():
        for y in (x if isinstance(x, list) else [x]): A(y)
    A.label(FIN)
    A('s_waitcnt vmcnt(0)')
    A('s_add_u32 s17, s17, 1')
    if flag:
        A('s_barrier')
        signal(A, 's17', 0)

def gen_q_kernel():
    A = Asm()
    common_entry(A, 'q_kernel', 256)
    A('s_load_dwordx2 s[8:9], s[0:1], 16')
    A('s_waitcnt lgkmcnt(0)')
    srd(A, 4, 12, 13, WS_BYTES)
    A('s_lshr_b32 s26, s2, 3')
    A('s_and_b32 s17, s2, 7'); A('s_lshl_b32 s17, s17, 3'); A('s_add_u32 s18, s17, 8')
    gen_qrole(A)
    A.label('Lq_kernel_end')
    A('s_endpgm')
    return A, ('q_kernel', (256, 1, 1), 256, 147456, 512, 64, 256)

def stats_out(A, vals, vaddr, soff, t1, t2, tmp, stf=''):
    A('v_add_f32 v%d, v%d, v%d' % (t1, vals[0], vals[1]))
    A('v_mul_f32 v%d, v%d, v%d' % (t2, vals[0], vals[0]))
    A('v_fmac_f32 v%d, v%d, v%d' % (t2, vals[1], vals[1]))
    for v in vals[2:]:
        A('v_add_f32 v%d, v%d, v%d' % (t1, t1, v))
        A('v_fmac_f32 v%d, v%d, v%d' % (t2, v, v))
    xlane(A, 'v_add_f32', t1, tmp); xlane(A, 'v_add_f32', t2, tmp)
    A('s_mov_b64 exec, 0xffff')
    A('buffer_store_dwordx2 v[%d:%d], v%d, s[4:7], %s offen %s' % (t1, t2, vaddr, soff, stf))
    A('s_mov_b64 exec, -1')

def gen_c2_task(A, ldf='', stf='', dep=None):
    vL16 = 1
    ZA = 2
    ACC = 12
    BUF = [76, 116, 156]
    A('v_lshlrev_b32 v%d, 4, v0' % vL16)
    A('v_and_b32 v10, 15, v0'); A('v_lshrrev_b32 v11, 4, v0')
    A('s_lshl_b32 s20, s17, 5'); A('s_lshl_b32 s21, s14, 3'); A('s_add_u32 s20, s20, s21')
    A('s_mul_i32 s22, s20, 40'); A('s_lshl_b32 s23, s18, 3'); A('s_add_u32 s22, s22, s23'); A('s_lshl_b32 s22, s22, 10'); A('s_add_u32 s22, s22, 0x%x' % UF)
    A('s_lshl_b32 s24, s20, 11'); A('s_add_u32 s24, s24, 0x%x' % PFR)
    A('s_lshl_b32 s25, s20, 9'); A('s_add_u32 s25, s25, 0x%x' % PMF)
    A('s_lshl_b32 s27, s17, 19'); A('s_lshl_b32 s28, s14, 17'); A('s_add_u32 s27, s27, s28'); A('s_add_u32 s27, s27, 0x%x' % EXP)
    def ld(k):
        b = BUF[k % 3]; out = []
        if k < 8:
            out.append('s_add_u32 s29, s22, 4096')
            for ct in range(8):
                out.append('buffer_load_dwordx4 v[%d:%d], v%d, s[4:7], s%d offen offset:%d %s' % (b + 4 * ct, b + 4 * ct + 3, vL16, 22 if ct < 4 else 29, 1024 * (ct % 4), ldf))
            for mt in range(2):
                out.append('buffer_load_dwordx4 v[%d:%d], v%d, s[4:7], s24 offen offset:%d %s' % (b + 32 + 4 * mt, b + 35 + 4 * mt, vL16, 1024 * mt, ldf))
            out.append('s_add_u32 s22, s22, 40960'); out.append('s_add_u32 s24, s24, 2048')
        else:
            for ct in range(8):
                out.append('buffer_load_dwordx4 v[%d:%d], v%d, s[4:7], s27 offen offset:%d %s' % (b + 4 * ct, b + 4 * ct + 3, ZA + ct, 1536 * (k - 8), ldf))
            for mt in range(2):
                out.append('buffer_load_dwordx4 v[%d:%d], v%d, s[4:7], s25 offen offset:%d %s' % (b + 32 + 4 * mt, b + 35 + 4 * mt, vL16, 2048 * (k - 8) + 1024 * mt, ldf))
        return out
    if dep: dep()
    for k in range(2):
        for x in ld(k): A(x)
    t0, t1, t2, t3 = 196, 197, 198, 199
    for ct in range(8):
        A('s_lshl_b32 s29, s18, 4'); A('s_add_u32 s29, s29, %d' % ((ct >> 1) * 4))
        A('v_lshrrev_b32 v%d, 2, v10' % t0); A('v_add_u32 v%d, s29, v%d' % (t0, t0))
        A('v_mul_u32_u24 v%d, 0x3334, v%d' % (t1, t0)); A('v_lshrrev_b32 v%d, 16, v%d' % (t1, t1))
        A('v_mul_u32_u24 v%d, 5, v%d' % (t2, t1)); A('v_sub_u32 v%d, v%d, v%d' % (t2, t0, t2))
        A('v_cmp_lt_u32 vcc, 2, v%d' % t2)
        A('v_cndmask_b32 v%d, 0, 1, vcc' % t3)
        A('v_lshl_add_u32 v%d, v%d, 1, v%d' % (t1, t1, t3))
        A('v_mul_u32_u24 v%d, 3, v%d' % (t3, t3)); A('v_sub_u32 v%d, v%d, v%d' % (t2, t2, t3))
        A('v_lshlrev_b32 v%d, 12, v%d' % (ZA + ct, t1))
        A('v_lshl_add_u32 v%d, v%d, 7, v%d' % (ZA + ct, t2, ZA + ct))
        A('v_and_b32 v%d, 3, v10' % t3); A('v_lshl_add_u32 v%d, v%d, 4, v%d' % (ZA + ct, t3, ZA + ct))
        A('v_mul_u32_u24 v%d, 384, v11' % t3); A('v_add_u32 v%d, v%d, v%d' % (ZA + ct, ZA + ct, t3))
        if ct & 1: A('v_add_u32 v%d, 64, v%d' % (ZA + ct, ZA + ct))
    for k in range(10):
        if k + 2 < 10:
            for x in ld(k + 2): A(x)
            A('s_waitcnt vmcnt(20)')
        else:
            A('s_waitcnt vmcnt(%d)' % (10 * (9 - k)))
        b = BUF[k % 3]
        for ct in range(8):
            for mt in range(2):
                d = ACC + (ct * 2 + mt) * 4
                A('v_mfma_f32_16x16x32_bf16 v[%d:%d], v[%d:%d], v[%d:%d], %s' % (d, d + 3, b + 4 * ct, b + 4 * ct + 3, b + 32 + 4 * mt, b + 35 + 4 * mt, '0' if k == 0 else 'v[%d:%d]' % (d, d + 3)))
    XR = 200
    A('s_lshl_b32 s29, s18, 2'); A('s_add_u32 s29, s29, s14')
    A('v_mul_u32_u24 v%d, 1280, v10' % t0); A('v_lshl_add_u32 v%d, v11, 3, v%d' % (t0, t0))
    A('s_mul_i32 s30, s17, %d' % (32 * 1280)); A('s_lshl_b32 s31, s29, 6'); A('s_add_u32 s30, s30, s31'); A('s_add_u32 s31, s30, %d' % (16 * 1280))
    for mt in range(2):
        for a in range(2):
            A('buffer_load_dwordx2 v[%d:%d], v%d, s[8:11], s%d offen offset:%d' % (XR + 4 * mt + 2 * a, XR + 4 * mt + 2 * a + 1, t0, 30 + mt, 32 * a))
    A('s_lshl_b32 s32, s14, 14')
    A('v_add_u32 v%d, s32, v%d' % (t1, vL16))
    for j in range(16):
        A('ds_write_b128 v%d, v[%d:%d] offset:%d' % (t1, ACC + 4 * j, ACC + 4 * j + 3, 1024 * j))
    A('s_waitcnt lgkmcnt(0)')
    A('s_barrier')
    A('s_lshl_b32 s32, s14, 12')
    A('v_add_u32 v%d, s32, v%d' % (t1, vL16))
    RD = 76
    for j in range(4):
        for ws in range(4):
            r = RD + (j * 4 + ws) * 4
            A('ds_read_b128 v[%d:%d], v%d offset:%d' % (r, r + 3, t1, ws * 16384 + j * 1024))
    for j in range(4):
        A('s_waitcnt lgkmcnt(%d)' % (12 - 4 * j))
        a = RD + j * 16
        for h2 in range(2):
            A('v_pk_add_f32 v[%d:%d], v[%d:%d], v[%d:%d]' % (a + 2 * h2, a + 2 * h2 + 1, a + 2 * h2, a + 2 * h2 + 1, a + 4 + 2 * h2, a + 5 + 2 * h2))
            A('v_pk_add_f32 v[%d:%d], v[%d:%d], v[%d:%d]' % (a + 8 + 2 * h2, a + 9 + 2 * h2, a + 8 + 2 * h2, a + 9 + 2 * h2, a + 12 + 2 * h2, a + 13 + 2 * h2))
        for h2 in range(2):
            A('v_pk_add_f32 v[%d:%d], v[%d:%d], v[%d:%d]' % (a + 2 * h2, a + 2 * h2 + 1, a + 2 * h2, a + 2 * h2 + 1, a + 8 + 2 * h2, a + 9 + 2 * h2))
    A('s_waitcnt vmcnt(0)')
    A('v_mul_u32_u24 v%d, 160, v10' % t2)
    HP = 12
    for mt in range(2):
        for a in range(2):
            for h2 in range(2):
                src = RD + (a * 2 + mt) * 16 + 2 * h2; xr = XR + 4 * mt + 2 * a + h2; f = 20 + 4 * a + 2 * h2
                A('v_cvt_pk_bf16_f32 v28, v%d, v%d' % (src, src + 1))
                A('v_lshlrev_b32 v29, 16, v28'); A('v_and_b32 v28, 0xffff0000, v28')
                A('v_lshlrev_b32 v30, 16, v%d' % xr); A('v_and_b32 v31, 0xffff0000, v%d' % xr)
                A('v_add_f32 v29, v29, v30'); A('v_add_f32 v28, v28, v31')
                pk = HP + 4 * mt + 2 * a + h2
                A('v_cvt_pk_bf16_f32 v%d, v29, v28' % pk)
                A('v_lshlrev_b32 v%d, 16, v%d' % (f, pk)); A('v_and_b32 v%d, 0xffff0000, v%d' % (f + 1, pk))
        A('s_lshl_b32 s30, s17, 1'); A('s_add_u32 s30, s30, %d' % mt)
        A('s_mul_i32 s31, s30, 20'); A('s_add_u32 s31, s31, s29'); A('s_lshl_b32 s31, s31, 10'); A('s_add_u32 s31, s31, 0x%x' % HF)
        A('buffer_store_dwordx4 v[%d:%d], v%d, s[4:7], s31 offen %s' % (HP + 4 * mt, HP + 4 * mt + 3, vL16, stf))
        A('s_mul_i32 s30, s30, 2560'); A('s_lshl_b32 s31, s29, 3'); A('s_add_u32 s30, s30, s31'); A('s_add_u32 s30, s30, 0x%x' % ST1)
        stats_out(A, list(range(20, 28)), t2, 's30', 32 + 2 * mt, 33 + 2 * mt, 28, stf)

def gen_c2_kernel():
    A = Asm()
    common_entry(A, 'c2_kernel', 320)
    A('s_load_dwordx2 s[40:41], s[0:1], 0')
    A('s_waitcnt lgkmcnt(0)')
    srd(A, 4, 12, 13, WS_BYTES); srd(A, 8, 40, 41, 2048 * 1280)
    A('s_mul_i32 s17, s2, 0x3334'); A('s_lshr_b32 s17, s17, 16'); A('s_mul_i32 s18, s17, 5'); A('s_sub_u32 s18, s2, s18')
    gen_c2_task(A)
    A.label('Lc2_kernel_end')
    A('s_endpgm')
    return A, ('c2_kernel', (320, 1, 1), 256, 65536, 208, 64, 208)
```

```python
from dsl import *
from layout import *
import struct
def f32bits(x): return struct.unpack('<I', struct.pack('<f', x))[0]

def srd(A, d, lo, hi, nbytes):
    A('s_mov_b32 s%d, s%d' % (d, lo)); A('s_and_b32 s%d, s%d, 0xffff' % (d + 1, hi))
    A('s_mov_b32 s%d, 0x%x' % (d + 2, nbytes)); A('s_mov_b32 s%d, 0x20000' % (d + 3))

def rnd_bf16(A, v, tmp=None):
    A('v_cvt_pk_bf16_f32 v%d, v%d, v%d' % (v, v, v))
    A('v_lshlrev_b32 v%d, 16, v%d' % (v, v))

N_LN, N_PK, N_INIT = 128, 170, 36
N_B = 0
PREP_GRID = N_B + N_LN + N_PK + N_INIT + 2

def gen_prep():
    A = Asm()
    A.raw(kernel_header('prep_kernel'))
    A('s_cmp_ge_u32 s2, %d' % PREP_GRID); A('s_cbranch_scc1 Lprep_end')
    A('s_load_dwordx4 s[8:11], s[0:1], 0')
    A('s_load_dwordx8 s[16:23], s[0:1], 64')
    A('s_load_dwordx2 s[12:13], s[0:1], 112')
    A('v_lshrrev_b32 v1, 6, v0'); A('v_readfirstlane_b32 s14, v1')
    A('v_and_b32 v2, 63, v0')
    A('s_waitcnt lgkmcnt(0)')
    srd(A, 4, 12, 13, WS_BYTES)
    A('s_cmp_lt_u32 s2, %d' % N_LN); A('s_cbranch_scc1 Lprep_ln')
    A('s_cmp_lt_u32 s2, %d' % (N_LN + N_PK)); A('s_cbranch_scc1 Lprep_pk')
    A('s_cmp_lt_u32 s2, %d' % (N_LN + N_PK + N_INIT)); A('s_cbranch_scc1 Lprep_init')
    A('s_cmp_eq_u32 s2, %d' % (N_LN + N_PK + N_INIT)); A('s_cbranch_scc1 Lprep_mem')
    A('s_mov_b64 exec, 1')
    A('s_lshl_b32 s26, s14, 10')
    A('s_add_u32 s27, s26, 0x%x' % (E2 + 0x100000)); A('v_mov_b32 v3, s27'); A('v_add_u32 v4, 0x2000, v3')
    A('s_mov_b32 s24, -1'); A('s_mov_b32 s25, -1')
    A('s_mov_b32 s26, 0')
    A.label('Lprep_cal')
    for vr, sb in ((3, 24), (4, 25)):
        A('buffer_store_dword v2, v%d, s[4:7], 0 offen sc1' % vr)
        A('s_waitcnt vmcnt(0)')
        A('s_memtime s[28:29]')
        A('s_waitcnt lgkmcnt(0)')
        A('buffer_load_dword v5, v%d, s[4:7], 0 offen sc1' % vr)
        A('s_waitcnt vmcnt(0)')
        A('s_memtime s[30:31]')
        A('s_waitcnt lgkmcnt(0)')
        A('s_sub_u32 s27, s30, s28')
        A('s_min_u32 s%d, s%d, s27' % (sb, sb))
    A('s_add_u32 s26, s26, 1'); A('s_cmp_lt_u32 s26, 3'); A('s_cbranch_scc1 Lprep_cal')
    A('v_mov_b32 v6, s24'); A('v_mov_b32 v7, s25'); A('s_lshl_b32 s26, s14, 3'); A('v_mov_b32 v5, s26')
    A('ds_write_b64 v5, v[6:7]')
    A('s_waitcnt lgkmcnt(0)')
    A('s_barrier')
    A('s_cmp_lg_u32 s14, 0'); A('s_cbranch_scc1 Lprep_end')
    A('v_mov_b32 v5, 0'); A('ds_read_b128 v[8:11], v5'); A('ds_read_b128 v[12:15], v5 offset:16')
    A('s_waitcnt lgkmcnt(0)')
    A('v_min_u32 v8, v8, v10'); A('v_min3_u32 v8, v8, v12, v14'); A('v_min_u32 v9, v9, v11'); A('v_min3_u32 v9, v9, v13, v15')
    A('v_readfirstlane_b32 s24, v8'); A('v_readfirstlane_b32 s25, v9')
    A('s_cmp_lt_u32 s25, s24'); A('s_cselect_b32 s26, 8192, 0')
    A('s_getreg_b32 s27, hwreg(HW_REG_XCC_ID)'); A('s_and_b32 s27, s27, 4'); A('s_lshl_b32 s27, s27, 11')
    A('s_xor_b32 s26, s26, s27')
    A('v_mov_b32 v5, s26'); A('v_mov_b32 v3, 0x%x' % CTL)
    A('buffer_store_dword v5, v3, s[4:7], 0 offen')
    A('s_branch Lprep_end')
    A.label('Lprep_mem')
    srd(A, 24, 10, 11, 10240)
    for k in range(5):
        A('v_add_u32 v3, %d, v0' % (256 * k))
        A('v_mul_u32_u24 v4, 0x199a, v3'); A('v_lshrrev_b32 v4, 20, v4')
        A('v_mul_u32_u24 v5, 160, v4'); A('v_sub_u32 v5, v3, v5')
        A('v_lshlrev_b32 v6, 3, v3')
        A('buffer_load_dwordx2 v[8:9], v6, s[24:27], 0 offen')
        A('v_lshrrev_b32 v6, 3, v5')
        A('v_mul_u32_u24 v7, 0x3334, v6'); A('v_lshrrev_b32 v7, 16, v7')
        A('v_mul_u32_u24 v10, 5, v7'); A('v_sub_u32 v6, v6, v10')
        A('v_lshlrev_b32 v7, 14, v7'); A('v_lshl_add_u32 v7, v6, 10, v7')
        A('v_and_b32 v6, 3, v5'); A('v_lshl_add_u32 v7, v6, 8, v7')
        A('v_lshl_add_u32 v7, v4, 5, v7')
        A('v_bfe_u32 v6, v5, 2, 1'); A('v_lshl_add_u32 v7, v6, 4, v7')
        A('s_waitcnt vmcnt(0)')
        A('s_movk_i32 s29, 0x4080')
        A('v_lshl_or_b32 v12, v8, 16, s29'); A('v_and_b32 v13, 0xffff0000, v8'); A('v_or_b32 v13, s29, v13')
        A('v_lshl_or_b32 v14, v9, 16, s29'); A('v_and_b32 v15, 0xffff0000, v9'); A('v_or_b32 v15, s29, v15')
        for par in range(2):
            A('s_mov_b32 s28, 0x%x' % (E2 + par * 8192))
            A('buffer_store_dwordx4 v[12:15], v7, s[4:7], s28 offen')
    A('s_branch Lprep_end')
    A.label('Lprep_init')
    A('s_sub_u32 s24, s2, %d' % (N_LN + N_PK))
    A('s_lshl_b32 s25, s24, 14')
    A('s_add_u32 s26, s25, 0x%x' % E1); A('s_mov_b32 s28, -1')
    A('s_cmp_lt_u32 s24, 20'); A('s_cbranch_scc1 Lprep_ig')
    A('s_mov_b32 s28, 0')
    A('s_sub_u32 s27, s24, 16'); A('s_lshr_b32 s26, s27, 2'); A('s_lshl_b32 s26, s26, 18'); A('s_and_b32 s27, s27, 3'); A('s_lshl_b32 s27, s27, 14')
    A('s_add_u32 s26, s26, s27'); A('s_add_u32 s26, s26, 0x%x' % E2)
    A('s_cmp_lt_u32 s24, 32'); A('s_cbranch_scc1 Lprep_ig')
    A('s_add_u32 s26, s25, 0x%x' % (CTL + 0x1000 - 32 * 16384))
    A.label('Lprep_ig')
    A('v_mov_b32 v4, s28'); A('v_mov_b32 v5, s28'); A('v_mov_b32 v6, s28'); A('v_mov_b32 v7, s28')
    A('v_lshlrev_b32 v3, 4, v0')
    for k in range(4):
        A('buffer_store_dwordx4 v[4:7], v3, s[4:7], s26 offen')
        if k < 3: A('s_add_u32 s26, s26, 4096')
    A('s_branch Lprep_end')
    A.label('Lprep_pk')
    A('s_sub_u32 s24, s2, %d' % N_LN); A('s_lshl_b32 s24, s24, 2'); A('s_add_u32 s24, s24, s14')
    A('s_mov_b32 s26, s16'); A('s_mov_b32 s27, s17'); A('s_mov_b32 s28, 5'); A('s_mov_b32 s29, 1280'); A('s_mov_b32 s30, 20'); A('s_mov_b32 s31, 0x%x' % W1F)
    for lo, p, ncb, rb, KS, dst in ((100, 18, 5, 1280, 20, W2F), (200, 20, 12, 3072, 20, W3F), (440, 22, 5, 1280, 48, W4F)):
        L = A.uniq('Lpk')
        A('s_cmp_lt_u32 s24, %d' % lo); A('s_cbranch_scc1 Lprep_pk_go')
        A('s_mov_b32 s26, s%d' % p); A('s_mov_b32 s27, s%d' % (p + 1)); A('s_mov_b32 s28, %d' % ncb); A('s_mov_b32 s29, %d' % rb)
        A('s_mov_b32 s30, %d' % KS); A('s_mov_b32 s31, 0x%x' % dst); A('s_mov_b32 s25, %d' % lo)
    A.label('Lprep_pk_go')
    A('s_cmp_lt_u32 s24, 100'); A('s_cselect_b32 s25, 0, s25')
    A('s_sub_u32 s24, s24, s25')
    A('s_movk_i32 s32, 0x1556'); A('s_cmp_eq_u32 s28, 5'); A('s_cselect_b32 s32, 0x3334, s32')
    A('s_mul_i32 s33, s24, s32'); A('s_lshr_b32 s33, s33, 16')
    A('s_mul_i32 s34, s33, s28'); A('s_sub_u32 s34, s24, s34')
    A('s_mul_i32 s35, s33, s29'); A('s_lshl_b32 s35, s35, 5'); A('s_lshl_b32 s36, s34, 8'); A('s_add_u32 s35, s35, s36')
    A('s_add_u32 s26, s26, s35'); A('s_addc_u32 s27, s27, 0')
    A('v_lshrrev_b32 v3, 4, v2'); A('v_mul_lo_u32 v3, v3, s29'); A('v_and_b32 v4, 15, v2'); A('v_lshl_add_u32 v3, v4, 4, v3')
    A('s_lshl_b32 s37, s14, 13')
    A('s_lshl_b32 s38, s29, 2')
    for k in range(8):
        A('s_add_u32 m0, s37, %d' % (1024 * k))
        A('global_load_lds_dwordx4 v3, s[26:27]')
        if k < 7: A('v_add_u32 v3, s38, v3')
    A('v_lshrrev_b32 v5, 4, v2'); A('v_bfe_u32 v6, v2, 2, 2'); A('v_lshl_add_u32 v5, v5, 2, v6'); A('v_lshlrev_b32 v5, 8, v5')
    A('v_and_b32 v6, 3, v2'); A('v_lshl_add_u32 v5, v6, 3, v5'); A('v_add_u32 v5, s37, v5')
    A('s_lshl_b32 s35, s34, 3'); A('s_mul_i32 s35, s35, s30'); A('s_add_u32 s35, s35, s33'); A('s_lshl_b32 s35, s35, 10'); A('s_add_u32 s35, s35, s31')
    A('s_lshl_b32 s36, s30, 10')
    A('v_lshlrev_b32 v7, 4, v2')
    A('s_waitcnt vmcnt(0)')
    for nt in range(8):
        for a in range(2):
            A('ds_read_b64_tr_b16 v[%d:%d], v5 offset:%d' % (8 + 4 * nt + 2 * a, 9 + 4 * nt + 2 * a, a * 4096 + nt * 32))
    for nt in range(8):
        A('s_waitcnt lgkmcnt(%d)' % (14 - 2 * nt))
        A('buffer_store_dwordx4 v[%d:%d], v7, s[4:7], s35 offen' % (8 + 4 * nt, 11 + 4 * nt))
        if nt < 7: A('s_add_u32 s35, s35, s36')
    A('s_branch Lprep_end')
    A.label('Lprep_ln')
    srd(A, 24, 8, 9, 2048 * 1280)
    A('v_lshrrev_b32 v3, 4, v0')
    A('v_and_b32 v4, 15, v0')
    A('v_mul_u32_u24 v5, 1280, v3'); A('v_lshl_add_u32 v5, v4, 4, v5')
    A('s_mul_i32 s28, s2, %d' % (16 * 1280))
    X = 8
    F = 28
    for k in range(5):
        A('buffer_load_dwordx4 v[%d:%d], v5, s[24:27], s28 offen offset:%d' % (X + 4 * k, X + 4 * k + 3, 256 * k))
    A('v_lshrrev_b32 v6, 2, v4'); A('v_lshlrev_b32 v6, 10, v6')
    A('v_and_b32 v7, 1, v4'); A('v_lshl_add_u32 v6, v7, 9, v6')
    A('v_lshl_add_u32 v6, v3, 4, v6')
    A('v_bfe_u32 v7, v4, 1, 1'); A('v_lshl_add_u32 v6, v7, 3, v6')
    A('s_mul_i32 s29, s2, 20480'); A('s_add_u32 s29, s29, 0x%x' % XNF)
    A('s_waitcnt vmcnt(0)')
    for k in range(20):
        A('v_lshlrev_b32 v%d, 16, v%d' % (F + 2 * k, X + k))
        A('v_and_b32 v%d, 0xffff0000, v%d' % (F + 2 * k + 1, X + k))
    def rowsum(acc):
        for sh in (8, 4, 2, 1):
            A('v_add_f32_dpp v%d, v%d, v%d row_ror:%d row_mask:0xf bank_mask:0xf' % (acc, acc, acc, sh))
    A('v_pk_add_f32 v[68:69], v[%d:%d], v[%d:%d]' % (F, F + 1, F + 2, F + 3))
    for k in range(2, 20):
        A('v_pk_add_f32 v[68:69], v[68:69], v[%d:%d]' % (F + 2 * k, F + 2 * k + 1))
    A('v_add_f32 v68, v68, v69')
    rowsum(68)
    A('v_mul_f32 v68, 0x%08x, v68' % f32bits(1.0 / 640))
    A('v_mov_b32 v70, 0')
    for k in range(40):
        A('v_sub_f32 v71, v%d, v68' % (F + k))
        A('v_fmac_f32 v70, v71, v71')
    rowsum(70)
    A('v_mul_f32 v70, 0x%08x, v70' % f32bits(1.0 / 640))
    rnd_bf16(A, 68); rnd_bf16(A, 70)
    A('v_add_f32 v70, 0x%08x, v70' % f32bits(1e-5)); rnd_bf16(A, 70)
    A('v_sqrt_f32 v70, v70'); rnd_bf16(A, 70)
    A('v_rcp_f32 v70, v70')
    for k in range(20):
        A('v_sub_f32 v%d, v%d, v68' % (F + 2 * k, F + 2 * k))
        A('v_sub_f32 v%d, v%d, v68' % (F + 2 * k + 1, F + 2 * k + 1))
        A('v_cvt_pk_bf16_f32 v72, v%d, v%d' % (F + 2 * k, F + 2 * k + 1))
        A('v_lshlrev_b32 v73, 16, v72'); A('v_and_b32 v74, 0xffff0000, v72')
        A('v_mul_f32 v73, v73, v70'); A('v_mul_f32 v74, v74, v70')
        A('v_cvt_pk_bf16_f32 v%d, v73, v74' % (X + k))
    for k in range(5):
        A('buffer_store_dwordx2 v[%d:%d], v6, s[4:7], s29 offen' % (X + 4 * k, X + 4 * k + 1))
        A('buffer_store_dwordx2 v[%d:%d], v6, s[4:7], s29 offen offset:256' % (X + 4 * k + 2, X + 4 * k + 3))
        if k < 4: A('s_add_u32 s29, s29, 4096')
    A.label('Lprep_end')
    A('s_endpgm')
    return A, ('prep_kernel', (PREP_GRID, 1, 1), 256, 32768, 96, 48, 96)

def build(parts, path):
    hdr = ''
    seen = {}
    for A, (name, grid, block, lds, vg, sg, ac) in parts:
        hdr += '; @launch kernel=%s grid=(%d,%d,%d) block=(%d,1,1) lds=%d\n' % (name, grid[0], grid[1], grid[2], block, lds)
    out = hdr + '.amdgcn_target "amdgcn-amd-amdhsa--gfx950"\n.text\n'
    desc = '.section .rodata,"a"\n'
    for A, (name, grid, block, lds, vg, sg, ac) in parts:
        if name in seen: continue
        seen[name] = 1
        out += A.text()
        desc += kernel_desc(name, vg, sg, ac)
    open(path, 'w').write(out + desc)

if __name__ == '__main__':
    build([gen_prep()], 'prep.s')
```

```python
from dsl import *
from layout import *
from gen_roles import wait_prog, trace, TRACE
from gen_rec8 import check_regs, tight_poll, nan_guard, emit_ool, OOL, f32bits
import gen_rec8
import math
NSTEP = 64
OPT = gen_rec8.OPT
lstore = gen_rec8.lstore

def gen_rec(A, stamp=False):
    upf = OPT.get('upf', '')
    QKP, MEMS, OUTP, EXPL = 0, 12288, 32768, 35840
    vT, vT2 = 1, 2
    (vL16, vGI, vQW, vE1W, vE1R, vKX, vU0, vU1, vOW, vE2, vMW, vKM, vZ0, vZ2, vEXP, vVW, vVP, vVR, vFLG) = range(3, 22)
    SEL0, SEL1, SEL2, SENT = 244, 248, 240, 252
    MF, DQK, DV = 24, 44, 68
    R0 = [80, 84, 88, 92]; R1 = [96, 100, 44, 48]
    XP, KX, UFr = 104, 110, 116
    E1R = 80; SD = 44; PX = 56; PXR = 80; PM = 60; ZT = 62; DO = 68
    MBB = [56, 60, 100, 132]
    SS = 64
    vRAW = 23
    MS = [55, 43, 58, 59, 46]
    RW = 80
    WQK = 136
    FINE = OPT['fine'].split(',') if OPT.get('fine') else None
    SB = 72
    def st(i):
        if stamp and (FINE is None or i == 0): A('s_memtime s[%d:%d]' % (SB + 2 * i, SB + 1 + 2 * i))
    def fs(name):
        if stamp and FINE and name in FINE:
            i = 1 + FINE.index(name); A('s_memtime s[%d:%d]' % (SB + 2 * i, SB + 1 + 2 * i))
    vN, vG, vI = 44, 45, 46
    t0, t1, t2, t3, t4 = 47, 48, 49, 50, 51
    A('v_and_b32 v%d, 15, v0' % vN); A('v_lshrrev_b32 v%d, 4, v0' % vG); A('v_and_b32 v%d, 7, v0' % vI)
    A('s_lshr_b32 s18, s16, 2'); A('s_and_b32 s19, s16, 3')
    A('s_lshl_b32 s26, s15, 3'); A('s_add_u32 s26, s26, s18')
    A('s_mov_b32 s20, 0x00ff00ff'); A('s_mov_b32 s21, 0x00ff00ff')
    A('s_mov_b32 s22, 0xff00ff00'); A('s_mov_b32 s23, 0xff00ff00')
    A('s_and_b32 s18, s16, 1')
    A('s_mov_b32 s24, -1'); A('s_cmp_eq_u32 s18, 0'); A('s_cselect_b32 s25, 0xffff, 0')
    A('s_mov_b32 s38, 0'); A('s_mov_b32 s39, 0x00ff00ff')
    A('s_mov_b32 s40, 0x00ff00ff'); A('s_mov_b32 s41, 0')
    if not OPT.get('fused'):
        A('s_mov_b32 s30, 0'); A('s_mov_b32 s31, 0x80000')
    A('s_mov_b32 s48, 0x%08x' % f32bits((192 ** -0.5) * math.log2(math.e)))
    A('v_lshlrev_b32 v%d, 4, v0' % vL16)
    WA = 132
    A('s_mul_i32 s27, s14, %d' % (15360 if OPT.get('brounds') else 30720))
    for k in range(3):
        A('v_add_u32 v%d, %d, v0' % (t0, 64 * k))
        A('v_mul_u32_u24 v%d, 0x2aab, v%d' % (t1, t0)); A('v_lshrrev_b32 v%d, 16, v%d' % (t1, t1))
        A('v_mul_u32_u24 v%d, 6, v%d' % (t2, t1)); A('v_sub_u32 v%d, v%d, v%d' % (t2, t0, t2))
        A('v_mul_u32_u24 v%d, 12288, v%d' % (t1, t1)); A('v_lshl_add_u32 v%d, v%d, 4, v%d' % (WA + k, t2, t1))
    A('s_mul_i32 s34, s14, %d' % (160 * 12288)); A('s_mul_i32 s35, s26, 384'); A('s_add_u32 s34, s34, s35')
    A('s_mul_i32 s35, s19, 96'); A('s_add_u32 s34, s34, s35')
    def wdma(mat, buf):
        b = 64 + 2 * mat
        A('s_add_u32 s32, s%d, s34' % b); A('s_addc_u32 s33, s%d, 0' % (b + 1))
        for grp in range(5):
            for k in range(3):
                A('s_add_u32 m0, s27, %d' % (buf * 15360 + (grp * 3 + k) * 1024))
                A('global_load_lds_dwordx4 v%d, s[32:33]' % (WA + k))
            if grp < 4:
                A('s_add_u32 s32, s32, %d' % (32 * 12288)); A('s_addc_u32 s33, s33, 0')
    wdma(0, 0)
    if not OPT.get('brounds'): wdma(1, 1)
    A('s_lshr_b32 s28, s16, 1'); A('s_mul_i32 s28, s28, 5'); A('s_mul_i32 s29, s18, 3'); A('s_add_u32 s28, s28, s29')
    A('s_sub_u32 s45, 2, s18'); A('s_add_u32 s45, s45, s28')
    A('s_lshl_b32 s29, s15, 3'); A('s_lshl_b32 s35, s14, 1'); A('s_add_u32 s29, s29, s35')
    def col_parts(vx, dst):
        A('v_lshrrev_b32 v%d, 3, v%d' % (t3, vx)); A('v_add_u32 v%d, s28, v%d' % (t3, t3)); A('v_min_u32 v%d, s45, v%d' % (t3, t3))
        A('v_lshrrev_b32 v%d, 2, v%d' % (t1, t3)); A('v_lshlrev_b32 v%d, 1, v%d' % (t1, t1))
        A('v_bfe_u32 v%d, v%d, 2, 1' % (t2, vx)); A('v_add_u32 v%d, v%d, v%d' % (t1, t1, t2))
        A('v_and_b32 v%d, 3, v%d' % (t3, t3)); A('v_and_b32 v%d, 3, v%d' % (t2, vx)); A('v_lshl_add_u32 v%d, v%d, 2, v%d' % (t2, t3, t2))
        A('v_lshlrev_b32 v%d, 10, v%d' % (dst, t1)); A('v_lshl_add_u32 v%d, v%d, 4, v%d' % (dst, t2, dst))
        A('v_lshl_add_u32 v%d, v%d, 8, v%d' % (dst, vG, dst))
        A('s_mul_i32 s35, s29, 40960'); A('v_add_u32 v%d, s35, v%d' % (dst, dst))
    col_parts(vN, vU0)
    A('v_add_u32 v%d, 16, v%d' % (t0, vI)); col_parts(t0, vU1)
    A('v_lshrrev_b32 v%d, 3, v%d' % (t4, vN)); A('v_mul_u32_u24 v%d, 40960, v%d' % (t3, t4))
    A('v_add_u32 v%d, v%d, v%d' % (vVP, vU1, t3)); A('v_add_u32 v%d, 40960, v%d' % (vVW, vU0))
    if OPT.get('bwait'):
        A('s_lshl_b32 s35, s15, 7'); A('s_add_u32 s35, s35, 0x%x' % BCNT); A('v_mov_b32 v76, s35')
        if TRACE[0]:
            A('s_mov_b64 exec, 1'); trace(A, '100', 78, 79); A('s_mov_b64 exec, -1')
        wait_prog(A, 76, 77, '32')
        if TRACE[0]:
            A('s_mov_b64 exec, 1'); trace(A, '101', 78, 79); A('s_mov_b64 exec, -1')
    A('s_mul_i32 s37, s14, 5')
    for kk in range(0 if OPT.get('brounds') else 20):
        A('s_add_u32 s35, s37, %d' % kk)
        A('s_cmp_ge_u32 s35, 20'); A('s_cselect_b32 s36, 20, 0'); A('s_sub_u32 s35, s35, s36')
        A('s_mul_i32 s35, s35, %d' % SEG_UF); A('s_add_u32 s35, s35, %d' % BF)
        for T, va in ((0, vU0), (1, vVW), (2, vVP)):
            r = T * 80 + kk * 4
            A('buffer_load_dwordx4 a[%d:%d], v%d, s[4:7], s35 offen %s' % (r, r + 3, va, upf))
    A('v_lshlrev_b32 v%d, 4, v%d' % (t1, vI)); A('v_lshl_add_u32 v%d, v%d, 7, v%d' % (vGI, vG, t1))
    A('s_mul_i32 s46, s14, 2560'); A('s_mul_i32 s35, s15, 10240'); A('s_add_u32 s46, s46, s35')
    A('s_mul_i32 s35, s14, 768'); A('s_add_u32 s36, s35, %d' % OUTP); A('v_add_u32 v%d, s36, v%d' % (vOW, vGI))
    A('s_mul_i32 s36, s14, 3072'); A('v_add_u32 v%d, s36, v%d' % (vQW, vL16))
    A('v_lshrrev_b32 v%d, 3, v%d' % (t4, vN))
    A('s_add_u32 s36, s35, %d' % EXPL)
    A('v_lshlrev_b32 v%d, 4, v%d' % (vZ0, vN)); A('v_and_b32 v%d, 1, v%d' % (t2, vG)); A('v_lshl_add_u32 v%d, v%d, 3, v%d' % (vZ0, t2, vZ0))
    A('v_lshrrev_b32 v%d, 1, v%d' % (t3, vG)); A('v_lshl_add_u32 v%d, v%d, 2, v%d' % (vZ0, t3, vZ0)); A('v_add_u32 v%d, s36, v%d' % (vZ0, vZ0))
    A('v_lshl_add_u32 v%d, v%d, 8, v%d' % (vZ2, t4, vZ0)); A('v_add_u32 v%d, 256, v%d' % (vZ2, vZ2))
    A('v_lshl_add_u32 v%d, v%d, 3, v%d' % (vE1W, t2, t1)); A('v_lshl_add_u32 v%d, v%d, 7, v%d' % (vE1W, t3, vE1W))
    A('s_sub_u32 s35, s14, 1'); A('s_lshl_b32 s35, s35, 8'); A('s_cmp_eq_u32 s14, 0'); A('s_cselect_b32 s35, 384, s35')
    A('s_cmp_eq_u32 s14, 3'); A('s_cselect_b32 s35, 0, s35')
    A('s_mul_i32 s36, s16, 640'); A('s_add_u32 s35, s35, s36'); A('s_mul_i32 s36, s15, %d' % E1_G); A('s_add_u32 s35, s35, s36')
    A('v_add_u32 v%d, s35, v%d' % (vE1W, vE1W))
    A('v_lshl_add_u32 v%d, v%d, 2, v%d' % (t3, t4, vG)); A('v_mul_u32_u24 v%d, 640, v%d' % (t3, t3)); A('v_add_u32 v%d, v%d, v%d' % (vE1R, t3, t1))
    A('s_mul_i32 s35, s14, 5120'); A('s_add_u32 s35, s35, s36'); A('v_add_u32 v%d, s35, v%d' % (vE1R, vE1R))
    A('v_lshlrev_b32 v%d, 3, v%d' % (t2, vI)); A('v_lshl_add_u32 v%d, v%d, 6, v%d' % (t2, vG, t2))
    A('v_add_u32 v%d, %d, v%d' % (vKM, EXPL + 3072, t2))
    A('s_lshl_b32 s35, s15, 5'); A('s_add_u32 s35, s35, s16'); A('s_mul_i32 s36, s35, 768')
    A('s_lshl_b32 s36, s35, 12'); A('v_add_u32 v%d, s36, v%d' % (vEXP, vL16))
    A('s_lshl_b32 s36, s35, 2'); A('s_add_u32 s36, s36, 0x%x' % PROG_R); A('v_mov_b32 v%d, s36' % vFLG)
    A('s_sub_u32 s35, s14, 1'); A('s_and_b32 s35, s35, 1'); A('s_mul_i32 s35, s35, 384')
    A('s_mul_i32 s36, s26, 12'); A('s_add_u32 s35, s35, s36'); A('s_mul_i32 s37, s19, 3'); A('s_add_u32 s35, s35, s37'); A('s_lshl_b32 s35, s35, 9')
    A('v_lshlrev_b32 v%d, 3, v0' % vKX); A('v_add_u32 v%d, s35, v%d' % (vKX, vKX))
    def ksoff():
        if OPT.get('lay', 'c') == 'c':
            A('s_mul_i32 s36, s35, 0x3334'); A('s_lshr_b32 s36, s36, 16'); A('s_mul_i32 s37, s36, 5'); A('s_sub_u32 s37, s35, s37')
            A('s_lshl_b32 s36, s36, 14'); A('s_lshl_b32 s37, s37, 10'); A('s_add_u32 s36, s36, s37')
        else:
            A('s_lshr_b32 s36, s35, 1'); A('s_and_b32 s37, s36, 3'); A('s_lshl_b32 s37, s37, 10'); A('s_lshl_b32 s36, s36, 14'); A('s_add_u32 s36, s36, s37')
            A('s_and_b32 s37, s35, 1'); A('s_lshl_b32 s37, s37, 12'); A('s_add_u32 s36, s36, s37')
    A('s_add_u32 s33, s28, s14'); A('s_lshr_b32 s35, s33, 2'); ksoff()
    A('s_and_b32 s35, s33, 3'); A('s_lshl_b32 s35, s35, 8'); A('s_add_u32 s35, s35, s36'); A('s_add_u32 s35, s35, s44')
    A('v_lshlrev_b32 v%d, 2, v0' % vE2); A('v_add_u32 v%d, s35, v%d' % (vE2, vE2))
    A('v_bfe_u32 v%d, v0, 2, 1' % t3); A('v_lshlrev_b32 v%d, 7, v%d' % (vMW, t3))
    A('v_lshrrev_b32 v%d, 3, v0' % t3); A('v_lshl_add_u32 v%d, v%d, 4, v%d' % (vMW, t3, vMW))
    A('v_and_b32 v%d, 3, v0' % t3); A('v_lshl_add_u32 v%d, v%d, 2, v%d' % (vMW, t3, vMW))
    A('s_lshl_b32 s35, s14, 8'); A('s_add_u32 s35, s35, %d' % OUTP); A('v_add_u32 v%d, s35, v%d' % (vMW, vMW))
    A('s_sub_u32 s24, 3, s18')
    A('v_lshlrev_b32 v%d, 1, v%d' % (vRAW, vGI)); A('v_lshl_add_u32 v%d, v%d, 4, v%d' % (vRAW, t4, vRAW))
    for k in range(5):
        A('s_mul_i32 s35, s14, 5'); A('s_add_u32 s35, s35, %d' % k)
        ksoff(); A('s_add_u32 s%d, s36, s44' % (90 + k))
    A('s_mov_b32 s49, 0x07060302'); A('s_movk_i32 s47, 0x4080')
    for jj in range(4):
        for S, mlo in ((SEL0, 2 * jj), (SEL1, 2 * jj + 8), (SEL2, 4 * (0, 2, 1, 3)[jj])):
            A('v_mov_b32 v%d, 0' % t3)
            A('v_cmp_eq_u32 vcc, %d, v%d' % (mlo, vN)); A('v_mov_b32 v%d, 0x3f80' % t0)
            A('v_cndmask_b32 v%d, v%d, v%d, vcc' % (t3, t3, t0))
            A('v_cmp_eq_u32 vcc, %d, v%d' % (mlo + 1, vN)); A('v_mov_b32 v%d, 0x3f800000' % t0)
            A('v_cndmask_b32 v%d, v%d, v%d, vcc' % (t3, t3, t0))
            A('v_accvgpr_write_b32 a%d, v%d' % (S + jj, t3))
    for r in range(4): A('v_accvgpr_write_b32 a%d, -1' % (SENT + r))
    for q in range(4):
        A('s_add_u32 s35, s14, %d' % q); A('s_and_b32 s35, s35, 3'); A('s_mul_i32 s35, s35, 5120'); A('s_add_u32 s%d, s35, %d' % (8 + q, MEMS))
    A('s_mov_b32 s50, -1'); A('s_mov_b32 s51, 0')
    A('v_lshrrev_b32 v%d, 2, v%d' % (t0, vN)); A('v_lshl_add_u32 v%d, v%d, 2, v%d' % (t0, vG, t0)); A('v_mul_u32_u24 v%d, 96, v%d' % (t0, t0))
    A('v_and_b32 v%d, 3, v%d' % (t2, vN)); A('v_mul_u32_u24 v%d, 24, v%d' % (t2, t2)); A('v_add3_u32 v%d, v%d, v%d, s27' % (t0, t0, t2))
    def wtr(mat, buf):
        for t in range(3):
            for ks in range(5):
                r = (mat * 3 + t) * 20 + ks * 4
                for a in range(2):
                    A('ds_read_b64_tr_b16 v[%d:%d], v%d offset:%d' % (WQK + r + 2 * a, WQK + r + 2 * a + 1, t0, buf * 15360 + (32 * ks + 16 * a) * 96 + 8 * t))
            A('s_waitcnt lgkmcnt(0)')
    if not OPT.get('brounds'):
        A('s_waitcnt vmcnt(60)'); wtr(0, 0); wtr(1, 1)
        A('s_waitcnt vmcnt(0)')
    else:
        A('v_mov_b32 v%d, v%d' % (vVR, t0)); t0 = vVR
        WOL = 61440
        A('s_mov_b32 s72, s68'); A('s_and_b32 s73, s69, 0xffff'); A('s_mov_b32 s74, %d' % (640 * 12288)); A('s_mov_b32 s75, 0x20000')
        A('s_mov_b32 s76, s70'); A('s_and_b32 s77, s71, 0xffff'); A('s_mov_b32 s78, %d' % (32 * 245760)); A('s_mov_b32 s79, 0x20000')
        A('s_mul_i32 s80, s26, 245760'); A('s_mul_i32 s81, s19, 320'); A('s_add_u32 s80, s80, s81')
        A('s_lshl_b32 s81, s14, 6'); A('s_lshl_b32 s82, s14, 10')
        for k in range(15):
            A('v_add_u32 v120, s81, v0'); A('v_add_u32 v120, %d, v120' % (256 * k))
            A('v_mul_u32_u24 v121, 0xccd, v120'); A('v_lshrrev_b32 v121, 16, v121')
            A('v_mul_u32_u24 v122, 20, v121'); A('v_sub_u32 v122, v120, v122')
            A('v_mul_u32_u24 v121, 1280, v121'); A('v_lshl_add_u32 v121, v122, 4, v121')
            A('s_add_u32 m0, s82, %d' % (WOL + 4096 * k))
            A('buffer_load_dwordx4 v121, s[76:79], s80 offen lds')
        A('v_mul_u32_u24 v120, 12288, v%d' % vN); A('v_mul_u32_u24 v121, 24, v%d' % vG); A('v_add_u32 v120, v120, v121')
        A('v_mul_u32_u24 v121, 12, v%d' % vG); A('v_lshrrev_b32 v122, 2, v%d' % vN); A('v_add_u32 v121, v121, v122'); A('v_mul_u32_u24 v121, 320, v121')
        A('v_and_b32 v122, 3, v%d' % vN); A('v_lshl_add_u32 v121, v122, 3, v121'); A('v_add_u32 v121, %d, v121' % WOL)
        A('s_mul_i32 s83, s14, %d' % (5 * 32 * 12288)); A('s_mul_i32 s84, s26, 384'); A('s_add_u32 s83, s83, s84')
        A('s_mul_i32 s84, s14, %d' % SEG_UF); A('s_mul_i32 s85, s26, 40'); A('s_mul_i32 s86, s19, 10'); A('s_add_u32 s85, s85, s86'); A('s_lshl_b32 s85, s85, 10')
        A('s_add_u32 s84, s84, s85'); A('s_add_u32 s84, s84, 0x%x' % BF)
        A('s_lshl_b32 s85, s15, 7'); A('s_add_u32 s85, s85, 0x%x' % BCNT); A('v_mov_b32 v122, s85')
        def aload(st_):
            for mt in range(2):
                for pp in range(4):
                    r = 24 + st_ * 48 + mt * 24 + 6 * pp
                    A('buffer_load_dwordx4 v[%d:%d], v120, s[72:75], s83 offen offset:%d' % (r, r + 3, 96 * pp))
                    A('buffer_load_dwordx2 v[%d:%d], v120, s[72:75], s83 offen offset:%d' % (r + 4, r + 5, 96 * pp + 16))
                A('s_add_u32 s83, s83, %d' % (16 * 12288))
        WB, DD, PK = 196, [220, 228], [236, 240]
        def compute(r):
            vb = 24 + (r % 2) * 48
            tr_(104 + 3 * r)
            A('s_add_u32 s86, s84, %d' % ((r % 2) * 4 * SEG_UF)); A('s_add_u32 s87, s86, 4096'); A('s_add_u32 s88, s86, 8192')
            def trd(nu, kap):
                return ['ds_read_b64_tr_b16 v[%d:%d], v121 offset:%d' % (WB + 4 * kap + 2 * a, WB + 4 * kap + 2 * a + 1, (48 * ((2 * kap + a) // 3) + 4 * ((2 * kap + a) % 3)) * 320 + 32 * nu) for a in range(2)]
            for kap in range(6):
                for x in trd(0, kap): A(x)
            pend = []
            for nu in range(10):
                d = DD[nu % 2]
                for kap in range(6):
                    A('s_waitcnt lgkmcnt(%d)' % (10 if nu < 9 else 10 - 2 * kap))
                    for mt in range(2):
                        a = vb + mt * 24 + 4 * kap; dd = d + 4 * mt
                        A('v_mfma_f32_16x16x32_bf16 v[%d:%d], v[%d:%d], v[%d:%d], %s' % (dd, dd + 3, a, a + 3, WB + 4 * kap, WB + 4 * kap + 3, '0' if kap == 0 else 'v[%d:%d]' % (dd, dd + 3)))
                    if nu < 9:
                        for x in trd(nu + 1, kap): A(x)
                    if kap >= 2 and pend: pend.pop(0)()
                while pend: pend.pop(0)()
                pk = PK[nu % 2]
                pend = [(lambda j=j, pk=pk, d=d: (A('v_cvt_pk_bf16_f32 v%d, v%d, v%d' % (pk + j, d + 2 * j, d + 2 * j + 1)), A('v_cvt_pk_bf16_f32 v%d, v%d, v%d' % (pk + j + 1, d + 2 * j + 2, d + 2 * j + 3)))) for j in (0, 2)]
                pend.append(lambda pk=pk, nu=nu: lstore(A, ['buffer_store_dwordx4 v[%d:%d], v%d, s[4:7], s%d offen offset:%d' % (pk, pk + 3, vL16, 86 + nu // 4, 1024 * (nu % 4))]))
            while pend: pend.pop(0)()
            tr_(105 + 3 * r)
        def tr_(i):
            if TRACE[0]:
                A('s_mov_b64 exec, 1'); trace(A, '%d' % i, 126, 127); A('s_mov_b64 exec, -1')
        def arrive(r):
            tr_(106 + 3 * r)
            A('s_barrier')
            L = A.uniq('Lar')
            A('s_cmp_lg_u32 s14, 0'); A('s_cbranch_scc1 %s' % L)
            A('v_mov_b32 v123, 1'); A('s_mov_b64 exec, 1')
            A('buffer_atomic_add v123, v122, s[4:7], 0 offen offset:%d' % (4 * r))
            A('s_mov_b64 exec, -1')
            A.label(L)
        def fetch(r):
            A('v_add_u32 v124, %d, v122' % (4 * r)); wait_prog(A, 124, 125, '32')
            for q in range(4):
                kk = r + 5 * q
                A('s_add_u32 s35, s14, %d' % q); A('s_and_b32 s35, s35, 3'); A('s_add_u32 s35, s35, %d' % ((r % 2) * 4))
                A('s_mul_i32 s35, s35, %d' % SEG_UF); A('s_add_u32 s35, s35, %d' % BF)
                for T, va in ((0, vU0), (1, vVW), (2, vVP)):
                    rg = T * 80 + kk * 4
                    A('buffer_load_dwordx4 a[%d:%d], v%d, s[4:7], s35 offen sc1' % (rg, rg + 3, va))
        aload(0); aload(1)
        A('s_waitcnt vmcnt(47)'); wtr(0, 0); wdma(1, 0)
        A('s_waitcnt vmcnt(31)'); A('s_barrier')
        compute(0); aload(0); A('s_waitcnt vmcnt(16)'); arrive(0)
        compute(1); aload(1); fetch(0); A('s_waitcnt vmcnt(0)'); arrive(1)
        fetch(1); compute(2); aload(0); A('s_waitcnt vmcnt(0)'); arrive(2)
        fetch(2); compute(3); A('s_waitcnt vmcnt(0)'); arrive(3)
        fetch(3); compute(4); A('s_waitcnt vmcnt(0)'); arrive(4)
        if TRACE[0]:
            A('s_mov_b64 exec, 1'); trace(A, '100', 126, 127); A('s_mov_b64 exec, -1')
        wtr(1, 0)
        fetch(4); A('s_waitcnt vmcnt(0)')
    for r in range(20): A('v_mov_b32 v%d, 0' % (MF + r))
    A('s_barrier')
    def prog_addr(v):
        A('s_lshl_b32 s34, s15, 7'); A('s_add_u32 s34, s34, 0x%x' % PROG_UK)
        A('v_lshrrev_b32 v%d, 2, v%d' % (v, vL16)); A('v_add_u32 v%d, s34, v%d' % (v, v))
    A('s_mov_b32 s17, 0'); A('s_mov_b32 s52, %d' % KF)
    if OPT.get('fused'):
        if TRACE[0]:
            A('s_mov_b64 exec, 1'); trace(A, '102', 80, 81); A('s_mov_b64 exec, -1')
        prog_addr(80); wait_prog(A, 80, 81, '2', '0xffff')
        if TRACE[0]:
            A('s_mov_b64 exec, 1'); trace(A, '103', 80, 81); A('s_mov_b64 exec, -1')
    kxl = ['buffer_load_dwordx2 v[%d:%d], v%d, s[4:7], s52 offen offset:%d %s' % (KX + 2 * t, KX + 2 * t + 1, vKX, 512 * t, upf) for t in range(3)]
    for x in kxl: A(x)
    for k in range(5): A('s_add_u32 s%d, s%d, %d' % (MS[k], 90 + k, E2))
    LOOP = A.uniq('Lstep')
    mloads = ['buffer_load_dwordx4 v[%d:%d], v%d, s[4:7], s%d offen sc1' % (RW + 4 * k, RW + 4 * k + 3, vRAW, MS[k]) for k in range(5)]
    e1loads = ['buffer_load_dwordx4 v[%d:%d], v%d, s[4:7], s56 offen offset:%d sc1' % (E1R + 4 * k, E1R + 4 * k + 3, vE1R, 128 * k) for k in range(5)]
    ul = ['buffer_load_dwordx4 v[%d:%d], v%d, s[4:7], s%d offen %s' % (UFr + (tau * 2 + hb) * 4, UFr + (tau * 2 + hb) * 4 + 3, (vU0, vU1)[tau], 62 + hb, upf) for tau in range(2) for hb in range(2)]
    A.label(LOOP)
    for ld in mloads: A(ld)
    A('s_and_b32 s53, s17, 3'); A('s_add_u32 s54, s17, 2'); A('s_and_b32 s54, s54, 3')
    A('s_mul_i32 s56, s53, %d' % E1_SLOT); A('s_add_u32 s56, s56, %d' % E1)
    A('s_mul_i32 s57, s54, %d' % E1_SLOT); A('s_add_u32 s57, s57, %d' % E1)
    A('s_add_u32 s60, s17, 1'); A('s_and_b32 s60, s60, 3'); A('s_lshl_b32 s60, s60, 18'); A('s_add_u32 s60, s60, %d' % E2)
    A('s_add_u32 s61, s17, 3'); A('s_and_b32 s61, s61, 3'); A('s_lshl_b32 s61, s61, 18'); A('s_add_u32 s61, s61, %d' % E2)
    A('s_mul_i32 s62, s17, %d' % SEG_UF); A('s_add_u32 s62, s62, %d' % UF); A('s_add_u32 s63, s62, 40960')
    A('s_sub_u32 s42, s17, 1'); A('s_min_u32 s42, s42, 64'); A('s_lshl_b32 s42, s42, 19'); A('s_add_u32 s42, s42, %d' % EXP)
    A('s_add_u32 s52, s52, %d' % SEG_KF)
    Lma = A.uniq('Lma')
    A.label(Lma)
    Lpd = A.uniq('Lpd')
    A('s_waitcnt vmcnt(0)')
    A('v_bitop3_b32 v%d, v%d, v%d, v%d bitop3:0x80' % (vT, RW, RW + 1, RW + 2))
    A('v_bitop3_b32 v%d, v%d, v%d, v%d bitop3:0x80' % (vT2, RW + 3, RW + 4, RW + 5))
    for k in range(6, 18, 4):
        A('v_bitop3_b32 v%d, v%d, v%d, v%d bitop3:0x80' % (vT, vT, RW + k, RW + k + 1))
        A('v_bitop3_b32 v%d, v%d, v%d, v%d bitop3:0x80' % (vT2, vT2, RW + k + 2, RW + k + 3))
    A('v_bitop3_b32 v%d, v%d, v%d, v%d bitop3:0x80' % (vT, vT, RW + 18, RW + 19))
    A('v_bitop3_b32 v%d, v%d, v%d, s47 bitop3:0x80' % (vT, vT, vT2))
    A('v_cmp_ne_u32 vcc, s47, v%d' % vT)
    A.lines.append('    s_cbranch_vccz %s' % Lpd)
    A('s_mov_b64 exec, vcc')
    if OPT.get('slr'): A('s_sleep %s' % OPT['slr'])
    for ld in mloads: A(ld)
    A('s_add_u32 s30, s30, 1'); A('s_cmp_lt_u32 s30, s31')
    A('s_cbranch_scc1 %s' % Lma)
    A('s_waitcnt vmcnt(0)')
    A.lines.append(Lpd + ':'); A.hist = []
    A('s_mov_b64 exec, -1')
    def conv(src, dst):
        return ['v_perm_b32 v%d, v%d, v%d, s49' % (dst, src + 1, src), 'v_perm_b32 v%d, v%d, v%d, s49' % (dst + 1, src + 3, src + 2),
                'v_mov_b32_dpp v%d, v%d row_ror:8 row_mask:0xf bank_mask:0xf' % (dst + 2, dst), 'v_mov_b32_dpp v%d, v%d row_ror:8 row_mask:0xf bank_mask:0xf' % (dst + 3, dst + 1)]
    st(0)
    if stamp: A('s_memrealtime s[%d:%d]' % (SB + 16, SB + 17))
    main = []
    for t in range(3):
        for ks in range(5):
            for mat in (1, 0):
                tile = mat * 3 + t; d = DQK + 4 * tile; wq = tile * 20 + ks * 4
                main.append('v_mfma_f32_16x16x32_bf16 v[%d:%d], v[%d:%d], v[%d:%d], %s' % (d, d + 3, WQK + wq, WQK + wq + 3, MF + 4 * ks, MF + 4 * ks + 3, '0' if ks == 0 else 'v[%d:%d]' % (d, d + 3)))
    def bm(kk, b):
        return ['v_mfma_f32_16x16x32_bf16 v[%d:%d], v[%d:%d], a[%d:%d], %s' % (DV + 4 * T, DV + 4 * T + 3, b, b + 3, T * 80 + kk * 4, T * 80 + kk * 4 + 3, '0' if kk == 0 else 'v[%d:%d]' % (DV + 4 * T, DV + 4 * T + 3)) for T in range(3)]
    vmf = []
    for kk in range(5): vmf += bm(kk, MF + 4 * kk)
    def merge(dst, src): return ['v_mov_b32_dpp v%d, v%d row_shr:8 row_mask:0xf bank_mask:0xc' % (dst + r, src + r) for r in range(4)]
    def mq(t): return merge(DQK + 4 * t, DQK + 12 + 4 * t)
    def wr(t): return 'ds_write_b128 v%d, v[%d:%d] offset:%d' % (vQW, DQK + 4 * t, DQK + 4 * t + 3, 1024 * t)
    def red(regs, o, pk=False):
        a, b, c_, d_ = regs; out = []
        if pk:
            for h2 in range(2):
                out.append('v_pk_add_f32 v[%d:%d], v[%d:%d], v[%d:%d]' % (a + 2 * h2, a + 2 * h2 + 1, a + 2 * h2, a + 2 * h2 + 1, b + 2 * h2, b + 2 * h2 + 1))
                out.append('v_pk_add_f32 v[%d:%d], v[%d:%d], v[%d:%d]' % (c_ + 2 * h2, c_ + 2 * h2 + 1, c_ + 2 * h2, c_ + 2 * h2 + 1, d_ + 2 * h2, d_ + 2 * h2 + 1))
            for h2 in range(2):
                out.append('v_pk_add_f32 v[%d:%d], v[%d:%d], v[%d:%d]' % (a + 2 * h2, a + 2 * h2 + 1, a + 2 * h2, a + 2 * h2 + 1, c_ + 2 * h2, c_ + 2 * h2 + 1))
        else:
            for r in range(4):
                out.append('v_add_f32 v%d, v%d, v%d' % (a + r, a + r, b + r)); out.append('v_add_f32 v%d, v%d, v%d' % (c_ + r, c_ + r, d_ + r))
            for r in range(4): out.append('v_add_f32 v%d, v%d, v%d' % (a + r, a + r, c_ + r))
        out.append('v_cvt_pk_bf16_f32 v%d, v%d, v%d' % (o, a, a + 1)); out.append('v_cvt_pk_bf16_f32 v%d, v%d, v%d' % (o + 1, a + 2, a + 3))
        return out
    def rd(t, regs): return ['ds_read_b128 v[%d:%d], v%d offset:%d' % (r, r + 3, vL16, QKP + (ws * 3 + t) * 1024) for ws, r in enumerate(regs)]
    cv = [conv(RW + 4 * k, MF + 4 * k) for k in range(5)]
    def dm(k):
        A('s_add_u32 m0, s8, %d' % (1024 * k)); A('buffer_load_dwordx4 v%d, s[4:7], s%d offen sc1 lds' % (vL16, MS[k]))
    A('s_mov_b32 m0, s8')
    for x in cv[0][:2]: A(x)
    A('buffer_load_dwordx4 v%d, s[4:7], s%d offen sc1 lds' % (vL16, MS[0]))
    A('s_add_u32 m0, s8, 1024')
    for x in cv[0][2:]: A(x)
    A('buffer_load_dwordx4 v%d, s[4:7], s%d offen sc1 lds' % (vL16, MS[1]))
    A(cv[1][0]); A(cv[1][1])
    rest = cv[1][2:] + cv[2][:2] + cv[3][:2] + cv[2][2:] + cv[4][:2] + cv[3][2:] + cv[4][2:]
    for idx in range(13):
        A(main[idx])
        if idx < 3: dm(2 + idx)
        for _ in range(2 if idx != 3 else 4):
            if rest: A(rest.pop(0))
        if idx >= 9: A(ul[idx - 9])
    Lr0, Lr3, Lb = A.uniq('Lr0'), A.uniq('Lr3'), A.uniq('Lb')
    def exports(r0):
        return (['ds_read_b128 v[%d:%d], v%d offset:%d' % (r0 + 4 * k, r0 + 3 + 4 * k, vL16, EXPL + 1024 * k) for k in range(4)] +
                ['buffer_store_dwordx4 v[%d:%d], v%d, s[4:7], s42 offen offset:%d sc1' % (r0 + 4 * k, r0 + 3 + 4 * k, vEXP, 1024 * k) for k in range(4)])
    def phaseAB(role):
        fill = {}
        m = mq(0)
        for x in m[:2]: A(x)
        fill[13] = m[2:]; fill[14] = [wr(0)]
        fill[18] = ['s_waitcnt lgkmcnt(0)', 's_barrier']
        r0 = rd(0, R0) if role != 3 else ['s_nop 0'] * 4
        fill[19] = r0[:2]; fill[20] = r0[2:]
        m = mq(1)
        fill[21] = ['s_nop 0']; fill[22] = m[:2]; fill[23] = m[2:] + [wr(1)]
        rr0 = red(R0, XP) if role != 3 else []
        fill[24] = ['s_waitcnt lgkmcnt(1)'] + rr0[:3]; fill[25] = rr0[3:6]; fill[26] = rr0[6:9]; fill[27] = rr0[9:12] + ['s_waitcnt lgkmcnt(0)', 's_barrier']
        if role == 3:
            ex = exports(80)
            fill[19] = ex[0:2]; fill[20] = ex[2:4]
            fill[24] = ['s_waitcnt lgkmcnt(1)', ex[4]]; fill[25] = [ex[5]]; fill[26] = [ex[6]]; fill[27] = [ex[7]] + fill[27]
        for idx in range(13, 28):
            A(main[idx])
            for f in fill.get(idx, []): A(f)
        st(1)
        V = list(vmf)
        def smf(t):
            a = XP if role == 0 else KX
            return 'v_mfma_f32_16x16x16_bf16 v[%d:%d], v[%d:%d], v[%d:%d], %s' % (SS, SS + 3, a + 2 * t, a + 2 * t + 1, XP + 2 * t, XP + 2 * t + 1, '0' if t == 0 else 'v[%d:%d]' % (SS, SS + 3))
        fs('b0')
        if role != 3:
            r1 = rd(1, R1)
            A(r1[0]); A(r1[1]); A(main[28]); A(rr0[12]); A(rr0[13]); A(r1[2]); A(r1[3]); A(main[29])
            A(V.pop(0)); A('s_nop 1'); A(V.pop(0)); A('s_nop 1'); A(V.pop(0))
            m = mq(2)
            A(m[0]); A(m[1]); A(m[2]); A(m[3]); A(wr(2))
            fs('b1')
            A('s_waitcnt lgkmcnt(1)')
            rr = red(R1, XP + 2)
            for i, x in enumerate(rr[:8]):
                A(x)
                if i % 3 == 2: A(V.pop(0))
            A('s_waitcnt vmcnt(4) lgkmcnt(0)')
            fs('b3')
            A('s_barrier')
            fs('b4')
            for x in rd(2, R0): A(x)
            for i, x in enumerate(rr[8:]):
                A(x)
                if i % 3 == 2: A(V.pop(0))
            A(smf(0)); A(V.pop(0)); A(smf(1))
            A('s_waitcnt lgkmcnt(0)')
            fs('b5')
            for i, x in enumerate(red(R0, XP + 4)):
                A(x)
                if i % 2 == 1 and V: A(V.pop(0))
            assert not V
            A(smf(2))
            A('v_add_u32 v%d, s9, v%d' % (vT2, vRAW))
            for k in range(3): A(mrd(5 + k))
            A('s_mov_b64 exec, %s' % ('s[38:39]' if role == 0 else 's[20:21]'))
            A('v_cvt_pk_bf16_f32 v52, v%d, v%d' % (SS, SS + 1)); A('v_cvt_pk_bf16_f32 v53, v%d, v%d' % (SS + 2, SS + 3))
            fs('b6')
            lstore(A, ['buffer_store_dwordx2 v[52:53], v%d, s[4:7], s56 offen' % vE1W,
                       'buffer_store_dwordx2 a[%d:%d], v%d, s[4:7], s57 offen' % (SENT, SENT + 1, vE1W)])
            A('s_mov_b64 exec, -1')
            st(2)
        else:
            A(main[28]); A(main[29])
            A(V.pop(0)); A('s_nop 1'); A(V.pop(0)); A('s_nop 1'); A(V.pop(0))
            for x in mq(2): A(x)
            A(wr(2))
            for _ in range(4): A(V.pop(0))
            A('s_waitcnt vmcnt(8) lgkmcnt(0)')
            A('s_barrier')
            if OPT.get('fused'):
                prog_addr(100); A('buffer_load_dword v22, v100, s[4:7], 0 offen sc1')
            A('v_add_u32 v%d, s9, v%d' % (vT2, vRAW))
            for k in range(3): A(mrd(5 + k))
            while V: A(V.pop(0))
            st(2)
    def mrd(kk): return 'ds_read_b128 v[%d:%d], v%d offset:%d' % (MBB[kk % 4], MBB[kk % 4] + 3, vT2, 1024 * (kk % 5))
    A.lines.append('    s_cmp_eq_u32 s14, 0'); A.lines.append('    s_cbranch_scc1 %s' % Lr0)
    A.lines.append('    s_cmp_eq_u32 s14, 3'); A.lines.append('    s_cbranch_scc1 %s' % Lr3)
    h0 = list(A.hist)
    phaseAB(1); A('s_branch %s' % Lb)
    A.lines.append(Lr0 + ':'); A.hist = list(h0)
    phaseAB(0); A('s_branch %s' % Lb)
    A.lines.append(Lr3 + ':'); A.hist = list(h0)
    phaseAB(3)
    A.label(Lb)
    E1AT = int(OPT.get('e1at', 12))
    A('s_waitcnt lgkmcnt(2)')
    for x in conv(MBB[5 % 4], MF + 4 * (5 % 3)): A(x)
    for kk in range(5, 20):
        nk = kk + 3
        if nk < 20:
            if nk % 5 == 0: A('v_add_u32 v%d, s%d, v%d' % (vT2, 8 + nk // 5, vRAW))
            A(mrd(nk))
        cn = []
        if kk + 1 < 20:
            A('s_waitcnt lgkmcnt(%d)' % min(2, 19 - (kk + 1)))
            cn = conv(MBB[(kk + 1) % 4], MF + 4 * ((kk + 1) % 3))
        for T, x in enumerate(bm(kk, MF + 4 * (kk % 3))):
            A(x)
            if cn and T < 2: A(cn.pop(0)); A(cn.pop(0))
            j = (kk - E1AT) * 3 + T
            if 0 <= j < 5: A(e1loads[j])
    st(3)
    Lk = A.uniq('Lkm')
    A('s_cmp_lg_u32 s14, 0'); A.lines.append('    s_cbranch_scc1 %s' % Lk)
    A('s_mov_b64 exec, s[22:23]')
    for t in range(3): A('ds_write_b64 v%d, v[%d:%d] offset:%d' % (vKM, XP + 2 * t, XP + 2 * t + 1, 256 * t))
    A('s_mov_b64 exec, -1')
    A.lines.append(Lk + ':')
    Lea = A.uniq('Lea')
    A.label(Lea)
    tight_poll(A, e1loads, [E1R + 4 * k + 3 for k in range(5)], '-1', vT, 'e1')
    fs('d0')
    sm = ['v_mfma_f32_16x16x32_bf16 v[%d:%d], a[%d:%d], v[%d:%d], 0' % (SD, SD + 3, SEL0, SEL0 + 3, E1R, E1R + 3),
          'v_mfma_f32_16x16x32_bf16 v[%d:%d], a[%d:%d], v[%d:%d], 0' % (SD + 4, SD + 7, SEL0, SEL0 + 3, E1R + 8, E1R + 11),
          'v_mfma_f32_16x16x32_bf16 v[%d:%d], a[%d:%d], v[%d:%d], 0' % (SD + 8, SD + 11, SEL2, SEL2 + 3, E1R + 16, E1R + 19),
          'v_mfma_f32_16x16x32_bf16 v[%d:%d], a[%d:%d], v[%d:%d], v[%d:%d]' % (SD, SD + 3, SEL1, SEL1 + 3, E1R + 4, E1R + 7, SD, SD + 3),
          'v_mfma_f32_16x16x32_bf16 v[%d:%d], a[%d:%d], v[%d:%d], v[%d:%d]' % (SD + 4, SD + 7, SEL1, SEL1 + 3, E1R + 12, E1R + 15, SD + 4, SD + 7)]
    zp = []
    for T in range(3):
        zp.append('v_cvt_pk_bf16_f32 v%d, v%d, v%d' % (ZT + T, DV + 4 * T, DV + 4 * T + 1))
        zp.append('v_cvt_pk_bf16_f32 v%d, v%d, v%d' % (100 + T, DV + 4 * T + 2, DV + 4 * T + 3))
    zp += ['v_permlane32_swap_b32 v%d, v%d' % (ZT + T, 100 + T) for T in range(3)]
    zp += ['ds_write_b32 v%d, v%d' % (vZ0, ZT), 'ds_write_b32 v%d, v%d offset:384' % (vZ0, ZT + 1), 'ds_write_b32 v%d, v%d' % (vZ2, ZT + 2),
           'v_mov_b32_dpp v%d, v%d row_ror:8 row_mask:0xf bank_mask:0xf' % (ZT + 3, ZT + 2)]
    for x in sm:
        A(x); A(zp.pop(0)); A(zp.pop(0))
    while zp: A(zp.pop(0))
    A('v_add_f32 v%d, v%d, v%d' % (vT2, SD + 8, SD))
    A('v_max3_f32 v%d, v%d, v%d, v%d' % (vT, SD + 8, SD + 9, SD))
    A('v_max3_f32 v%d, v%d, v%d, v%d' % (vT, vT, SD + 1, SD + 2))
    A('v_cmp_u_f32 vcc, v%d, v%d' % (vT2, SD + 4))
    A('v_max3_f32 v%d, v%d, v%d, v%d' % (vT, vT, SD + 3, SD + 4))
    A('v_max3_f32 v%d, v%d, v%d, v%d' % (vT, vT, SD + 5, SD + 6))
    nan_guard(A, Lea, e1loads, range(E1R, E1R + 20), '-1', vT2)
    st(4)
    for x in kxl: A(x)
    if OPT.get('fused'):
        Lnf = A.uniq('Lnf')
        A('s_cmp_lg_u32 s14, 3'); A.lines.append('    s_cbranch_scc1 %s' % Lnf)
        A('v_mov_b32 v%d, s17' % vT2); A('s_mov_b64 exec, 1')
        A('buffer_store_dword v%d, v%d, s[4:7], 0 offen sc1' % (vT2, vFLG)); A('s_mov_b64 exec, -1')
        A.lines.append(Lnf + ':')
    A('v_max_f32 v%d, v%d, v%d' % (vT, vT, SD + 7))
    def cross(op):
        out = []
        for sw in ('v_permlane16_swap_b32', 'v_permlane32_swap_b32'):
            out += ['v_mov_b32 v%d, v%d' % (vT2, vT), '%s v%d, v%d' % (sw, vT, vT2), '%s v%d, v%d, v%d' % (op, vT, vT, vT2)]
        return out
    for x in cross('v_max_f32'): A(x)
    fs('d1')
    A('v_mul_f32 v%d, s48, v%d' % (vT, vT))
    for k in range(10):
        A('v_fma_f32 v%d, v%d, s48, -v%d' % (SD + k, SD + k, vT))
        if k >= 1: A('v_exp_f32 v%d, v%d' % (SD + k - 1, SD + k - 1))
    A('v_exp_f32 v%d, v%d' % (SD + 9, SD + 9))
    fs('d2')
    A('v_pk_add_f32 v[100:101], v[%d:%d], v[%d:%d]' % (SD, SD + 1, SD + 2, SD + 3))
    A('v_pk_add_f32 v[102:103], v[%d:%d], v[%d:%d]' % (SD + 4, SD + 5, SD + 6, SD + 7))
    A('v_pk_add_f32 v[100:101], v[100:101], v[102:103]')
    A('v_pk_add_f32 v[100:101], v[100:101], v[%d:%d]' % (SD + 8, SD + 9))
    A('v_add_f32 v%d, v100, v101' % vT)
    for x in cross('v_add_f32'): A(x)
    A('v_rcp_f32 v100, v%d' % vT)
    for k in range(5):
        A('v_pk_mul_f32 v[%d:%d], v[%d:%d], v[100:101] op_sel_hi:[1,0]' % (SD + 2 * k, SD + 2 * k + 1, SD + 2 * k, SD + 2 * k + 1))
    for k in range(4): A('v_cvt_pk_bf16_f32 v%d, v%d, v%d' % (PX + k, SD + 2 * k, SD + 2 * k + 1))
    A('v_cvt_pk_bf16_f32 v%d, v%d, v%d' % (PM, SD + 8, SD + 9))
    fs('d3')
    ror = lambda d, s_: 'v_mov_b32_dpp v%d, v%d row_ror:8 row_mask:0xf bank_mask:0xf' % (d, s_)
    for tau in range(2):
        d = DO + 4 * tau; u = UFr + (tau * 2) * 4
        A('v_mfma_f32_16x16x32_bf16 v[%d:%d], v[%d:%d], v[%d:%d], 0' % (d, d + 3, u, u + 3, PX, PX + 3))
        if tau == 0: A(ror(PM + 1, PM)); A(ror(PXR, PX))
        else: A(ror(PXR + 1, PX + 1)); A(ror(PXR + 2, PX + 2))
    for tau in range(2):
        d = DO + 4 * tau; z = ZT + 2 * tau
        A('v_mfma_f32_16x16x16_bf16 v[%d:%d], v[%d:%d], v[%d:%d], v[%d:%d]' % (d, d + 3, z, z + 1, PM, PM + 1, d, d + 3))
        if tau == 0: A(ror(PXR + 3, PX + 3))
    for tau in range(2):
        d = DO + 4 * tau; u = UFr + (tau * 2 + 1) * 4
        A('v_mfma_f32_16x16x32_bf16 v[%d:%d], v[%d:%d], v[%d:%d], v[%d:%d]' % (d, d + 3, u, u + 3, PXR, PXR + 3, d, d + 3))
    A('s_mov_b64 exec, s[20:21]')
    A('ds_write_b128 v%d, v[%d:%d]' % (vOW, DO, DO + 3))
    A('s_mov_b64 exec, s[40:41]')
    A('ds_write_b128 v%d, v[%d:%d] offset:512' % (vOW, DO + 4, DO + 7))
    A('s_mov_b64 exec, -1')
    for k in range(5): A('s_add_u32 s%d, s%d, s60' % (MS[k], 90 + k))
    fs('d4')
    if OPT.get('fused'):
        Lg = A.uniq('Lpg')
        A('s_cmp_lg_u32 s14, 3'); A('s_cbranch_scc1 %s' % Lg)
        A('s_add_u32 s35, s17, 3'); A('s_min_u32 s35, s35, 64')
        A('v_cmp_gt_u32 vcc, s35, v22'); A('s_and_b64 vcc, vcc, 0xffff'); A('s_cbranch_scc0 %s' % Lg)
        prog_addr(100); wait_prog(A, 100, 101, 's35', '0xffff')
        A.label(Lg)
    A('s_waitcnt lgkmcnt(0)')
    A('s_barrier')
    fs('d5')
    Lns = A.uniq('Lns')
    Lskip, Loth, Lw3b, Lw1 = A.uniq('Lskip'), A.uniq('Loth'), A.uniq('Lw3b'), A.uniq('Lw1')
    A('s_cmp_eq_u32 s14, 3'); A('s_cbranch_scc1 %s' % Lw3b)
    A('s_cmp_ge_u32 s14, s24'); A('s_cbranch_scc1 %s' % Loth)
    A('s_cmp_eq_u32 s17, %d' % (NSTEP - 1)); A('s_cbranch_scc1 %s' % Loth)
    for k in range(4): A('ds_read_b32 v%d, v%d offset:%d' % (80 + k, vMW, 768 * k))
    A('v_mov_b32 v84, 0')
    A('s_waitcnt lgkmcnt(2)'); A('v_add_f32 v80, v80, v81')
    A('s_waitcnt lgkmcnt(0)'); A('v_add_f32 v82, v82, v83'); A('v_add_f32 v80, v80, v82')
    A('v_cvt_pk_bf16_f32 v80, 1.0, v80')
    fs('d6')
    A('buffer_atomic_pk_add_bf16 v80, v%d, s[4:7], s60 offen' % vE2)
    st(5)
    A('s_cmp_lg_u32 s15, 0'); A('s_cbranch_scc1 %s' % Loth)
    A('buffer_store_dword v84, v%d, s[4:7], s61 offen sc1' % vE2)
    A.label(Loth)
    A('s_branch %s' % Lskip)
    A.label(Lw3b)
    if TRACE[0]:
        A('s_mov_b64 exec, 1'); A('s_add_u32 s35, s17, 1'); trace(A, 's35', 100, 101); A('s_mov_b64 exec, -1')
    A.label(Lskip)
    st(7)
    A('s_cmp_eq_u32 s17, %d' % (NSTEP - 1)); A('s_cbranch_scc1 %s' % Lns)
    A('s_sleep %s' % OPT.get('slg', 13))
    A.label(Lns)
    if stamp:
        A('s_waitcnt lgkmcnt(0)')
        for stp in (40, 41):
            Ls = A.uniq('Lst')
            A('s_cmp_lg_u32 s17, %d' % stp); A('s_cbranch_scc1 %s' % Ls)
            for i in range(9): A('v_writelane_b32 v22, s%d, %d' % (SB + 2 * i, 16 * (stp - 40) + i))
            A.label(Ls)
    A('s_add_u32 s17, s17, 1')
    A('s_cmp_lt_u32 s17, %d' % NSTEP)
    A('s_cbranch_scc1 %s' % LOOP)
    Lf = A.uniq('Lfin')
    A('s_cmp_lg_u32 s14, 3'); A('s_cbranch_scc1 %s' % Lf)
    A('s_mov_b32 s42, %d' % (EXP + ((NSTEP - 1) << 19)))
    ex = exports(80)
    for x in ex[:4]: A(x)
    A('s_waitcnt lgkmcnt(0)')
    for x in ex[4:]: A(x)
    if OPT.get('fused'):
        A('v_mov_b32 v%d, s17' % vT2)
        A('s_waitcnt vmcnt(0)')
        A('s_mov_b64 exec, 1')
        A('buffer_store_dword v%d, v%d, s[4:7], 0 offen sc1' % (vT2, vFLG))
        A('s_mov_b64 exec, -1')
    A.label(Lf)
    if stamp:
        A('v_writelane_b32 v22, s30, 9')
        A('s_lshl_b32 s35, s15, 5'); A('s_add_u32 s35, s35, s16'); A('s_lshl_b32 s35, s35, 2'); A('s_add_u32 s35, s35, s14')
        A('s_lshl_b32 s35, s35, 7'); A('s_add_u32 s35, s35, 0xF000000')
        A('v_lshrrev_b32 v60, 2, v%d' % vL16)
        A('s_mov_b32 s32, -1'); A('s_mov_b32 s33, 0'); A('s_mov_b64 exec, s[32:33]')
        A('buffer_store_dword v22, v60, s[4:7], s35 offen')
        A('s_mov_b64 exec, -1')

def gen_rec_kernel(stamp=False):
    A = Asm()
    A.raw(kernel_header('rec_kernel'))
    A('s_cmp_ge_u32 s2, 256'); A('s_cbranch_scc1 Lrec_end')
    A('s_load_dwordx8 s[64:71], s[0:1], 16')
    A('s_load_dwordx4 s[32:35], s[0:1], 104')
    A('s_getreg_b32 s15, hwreg(HW_REG_XCC_ID)'); A('s_and_b32 s15, s15, 15')
    A('s_cmp_ge_u32 s15, 4'); A('s_cbranch_scc1 Lrec_end')
    A('v_lshrrev_b32 v1, 6, v0'); A('v_readfirstlane_b32 s14, v1'); A('v_and_b32 v0, 63, v0')
    A('v_mov_b32 v22, 0')
    A('s_waitcnt lgkmcnt(0)')
    A('s_mov_b32 s4, s34'); A('s_and_b32 s5, s35, 0xffff'); A('s_mov_b32 s6, 0x%x' % WS_BYTES); A('s_mov_b32 s7, 0x20000')
    A('s_cmp_lg_u32 s14, 0'); A('s_cbranch_scc1 Lrec_w')
    A('s_lshl_b32 s16, s15, 2'); A('v_mov_b32 v1, s16'); A('v_mov_b32 v2, 1')
    A('s_mov_b64 exec, 1')
    A('global_atomic_add v3, v1, v2, s[32:33] sc0')
    A('s_waitcnt vmcnt(0)')
    A('v_mov_b32 v1, 0'); A('ds_write_b32 v1, v3')
    A('s_mov_b64 exec, -1')
    A('s_waitcnt lgkmcnt(0)')
    A.label('Lrec_w')
    A('s_barrier')
    A('v_mov_b32 v1, 0'); A('ds_read_b32 v3, v1'); A('s_waitcnt lgkmcnt(0)')
    A('v_readfirstlane_b32 s16, v3')
    A('s_barrier')
    A('s_cmp_ge_u32 s16, 32'); A('s_cbranch_scc1 Lrec_end')
    A('s_mov_b32 s44, %d' % (8192 * int(OPT.get('par', 0))))
    gen_rec(A, stamp)
    A.label('Lrec_end')
    A('s_endpgm')
    emit_ool(A)
    return A

if __name__ == '__main__':
    import sys
    name = 'rec.s'
    for a in sys.argv[1:]:
        if a.endswith('.s'): name = a
        else:
            k, _, v = a.partition('='); OPT[k] = v if _ else True
    A = gen_rec_kernel(stamp=not OPT.get('nostamp'))
    out = '; @launch kernel=rec_kernel grid=(256,1,1) block=(256,1,1) lds=131072\n'
    out += '.amdgcn_target "amdgcn-amd-amdhsa--gfx950"\n.text\n' + A.text()
    out += '.section .rodata,"a"\n' + kernel_desc('rec_kernel', 512, 102, 256)
    open(name, 'w').write(out)
```

```python
from dsl import *
from layout import *
from gen_prep import srd, f32bits, build, gen_prep

def load_w_proj(A, sW, tmpv=40):
    t0, t1, t2 = tmpv, tmpv + 1, tmpv + 2
    ad = tmpv + 3
    A('s_mul_i32 s27, s14, 30720')
    for k in range(3):
        A('v_add_u32 v%d, %d, v0' % (t0, 64 * k))
        A('v_mul_u32_u24 v%d, 0x2aab, v%d' % (t1, t0)); A('v_lshrrev_b32 v%d, 16, v%d' % (t1, t1))
        A('v_mul_u32_u24 v%d, 6, v%d' % (t2, t1)); A('v_sub_u32 v%d, v%d, v%d' % (t2, t0, t2))
        A('v_mul_u32_u24 v%d, 12288, v%d' % (t1, t1))
        A('v_lshl_add_u32 v%d, v%d, 4, v%d' % (ad + k, t2, t1))
    A('s_mul_i32 s28, s26, 384'); A('s_mul_i32 s29, s14, 96'); A('s_add_u32 s28, s28, s29')
    A('s_add_u32 s32, s%d, s28' % sW); A('s_addc_u32 s33, s%d, 0' % (sW + 1))
    A('v_lshrrev_b32 v%d, 4, v0' % t0); A('v_bfe_u32 v%d, v0, 2, 2' % t1)
    A('v_lshl_add_u32 v%d, v%d, 2, v%d' % (t0, t0, t1)); A('v_mul_u32_u24 v%d, 96, v%d' % (t0, t0))
    A('v_and_b32 v%d, 3, v0' % t1); A('v_mul_u32_u24 v%d, 24, v%d' % (t1, t1))
    A('v_add3_u32 v%d, v%d, v%d, s27' % (t0, t0, t1))
    def dma(buf):
        for grp in range(5):
            for k in range(3):
                A('s_add_u32 m0, s27, %d' % (buf * 15360 + (grp * 3 + k) * 1024))
                A('global_load_lds_dwordx4 v%d, s[32:33]' % (ad + k))
            A('s_add_u32 s32, s32, %d' % (32 * 12288)); A('s_addc_u32 s33, s33, 0')
    def trr(q, buf):
        for t in range(3):
            for ks in range(5):
                r = (t * 20 + q * 5 + ks) * 4
                for a in range(2):
                    A('ds_read_b64_tr_b16 a[%d:%d], v%d offset:%d' % (r + 2 * a, r + 2 * a + 1, t0, buf * 15360 + (32 * ks + 16 * a) * 96 + 8 * t))
            A('s_waitcnt lgkmcnt(0)')
    dma(0); dma(1)
    A('s_waitcnt vmcnt(15)'); trr(0, 0); dma(0)
    A('s_waitcnt vmcnt(15)'); trr(1, 1); dma(1)
    A('s_waitcnt vmcnt(15)'); trr(2, 0)
    A('s_waitcnt vmcnt(0)'); trr(3, 1)

TRACE = [False]
def trace(A, sidx, va, vb):
    A('s_memrealtime s[96:97]'); A('s_memtime s[100:101]')
    A('s_lshl_b32 s99, s98, 7'); A('s_add_u32 s99, s99, %s' % sidx); A('s_lshl_b32 s99, s99, 2'); A('s_add_u32 s99, s99, 0xF000000')
    A('s_waitcnt lgkmcnt(0)')
    A('v_mov_b32 v%d, s96' % va); A('v_mov_b32 v%d, s99' % vb)
    A('buffer_store_dword v%d, v%d, s[4:7], 0 offen' % (va, vb))
    A('s_nop 1'); A('v_mov_b32 v%d, s100' % va); A('v_add_u32 v%d, 0x100000, v%d' % (vb, vb))
    A('buffer_store_dword v%d, v%d, s[4:7], 0 offen' % (va, vb))

def signal(A, sval, add, wave0=True):
    L = A.uniq('Lsig')
    if wave0:
        A('s_cmp_lg_u32 s14, 0'); A('s_cbranch_scc1 %s' % L)
    A('s_add_u32 s46, %s, %d' % (sval, add) if add >= 0 else 's_sub_u32 s46, %s, %d' % (sval, -add))
    A('v_mov_b32 v4, s46'); A('v_mov_b32 v5, s47')
    A('s_mov_b64 exec, 1')
    A('buffer_store_dword v4, v5, s[4:7], 0 offen sc1')
    if TRACE[0]: trace(A, 's46', 4, 5)
    A('s_mov_b64 exec, -1')
    A.label(L)

def wait_prog(A, vaddr, vval, sneed, mask='-1', sleep=2, far=None):
    L, D = A.uniq('Lwp'), A.uniq('Lwpd')
    if mask != '-1': A('s_mov_b64 exec, %s' % mask)
    A.label(L)
    A('buffer_load_dword v%d, v%d, s[4:7], 0 offen sc1' % (vval, vaddr))
    A('s_waitcnt vmcnt(0)')
    A('v_cmp_gt_u32 vcc, %s, v%d' % (sneed, vval))
    A('s_cbranch_vccz %s' % D)
    A('s_sleep %d' % sleep)
    if far:
        F = A.uniq('Lwf')
        A('v_cmp_gt_u32 vcc, %s, v%d' % (far, vval))
        A('s_cbranch_vccz %s' % F)
        A('s_sleep 24')
        A.label(F)
    A('s_add_u32 s30, s30, 1')
    A('s_cmp_lt_u32 s30, s31')
    A('s_cbranch_scc1 %s' % L)
    A.label(D)
    if mask != '-1': A('s_mov_b64 exec, -1')

def dma_seg(A, sseg, slot_sgpr, vL16, defer):
    A('s_mul_i32 s23, %s, 40960' % sseg); A('s_add_u32 s23, s23, s22')
    A('s_add_u32 s24, %s, s22' % slot_sgpr)
    groups = []
    for k in range(10):
        g = []
        if k % 4 == 0:
            if k: g += ['s_add_u32 s23, s23, 4096', 's_add_u32 s24, s24, 4096']
            g += ['s_mov_b32 m0, s24', 's_nop 0']
        g.append('buffer_load_dwordx4 v%d, s[4:7], s23 offen offset:%d lds' % (vL16, 1024 * (k % 4)))
        groups.append(g)
    if defer: return groups
    for g in groups:
        for x in g: A(x)

def gen_prole(A, stf='', flag=False):
    load_w_proj(A, 8)
    A('s_barrier')
    vL16, vO = 1, 2
    XB = [8, 12, 16, 20]
    ACC = [24, 48]
    PK = 72
    A('v_lshlrev_b32 v%d, 4, v0' % vL16)
    A('v_lshlrev_b32 v%d, 3, v0' % vO)
    A('s_mul_i32 s20, s26, 12'); A('s_mul_i32 s21, s14, 3'); A('s_add_u32 s20, s20, s21'); A('s_lshl_b32 s20, s20, 9')
    A('s_add_u32 s19, s19, s20')
    A('s_mul_i32 s22, s14, 10240')
    def dma(sseg, slot_sgpr, defer=False):
        return dma_seg(A, sseg, slot_sgpr, vL16, defer)
    A('s_mov_b32 s34, 0'); A('s_mov_b32 s35, 40960'); A('s_mov_b32 s36, 81920')
    dma('s17', 's34')
    A('s_add_u32 s25, s17, 1'); dma('s25', 's35')
    LOOP, END = A.uniq('Lp_loop'), A.uniq('Lp_end')
    def epilogue(acc):
        out = []
        for mt in range(2):
            for t in range(3):
                d = acc + (mt * 3 + t) * 4; pk = PK + (mt * 3 + t) * 2
                out.append('v_cvt_pk_bf16_f32 v%d, v%d, v%d' % (pk, d, d + 1))
                out.append('v_cvt_pk_bf16_f32 v%d, v%d, v%d' % (pk + 1, d + 2, d + 3))
                out.append('buffer_store_dwordx2 v[%d:%d], v%d, s[4:7], s%d offen offset:%d %s' % (pk, pk + 1, vO, 37 + mt, 512 * t, stf))
        return out
    def body(par, first, wait=16):
        acc = ACC[par]; prev = ACC[1 - par]
        A('s_waitcnt vmcnt(%d)' % (10 if first else 0))
        A('s_barrier')
        if flag and not first: signal(A, 's17', -1)
        A('s_add_u32 s25, s17, 2'); dg = dma('s25', 's36', True)
        A('s_sub_u32 s25, s17, 1'); A('s_mul_i32 s37, s25, %d' % SEG_KF); A('s_add_u32 s37, s37, s19'); A('s_add_u32 s38, s37, %d' % (SEG_KF // 2))
        A('v_add_u32 v3, s34, v%d' % vL16)
        ep = [] if first else epilogue(prev)
        seq = [(ks, mt) for ks in range(20) for mt in range(2)]
        for i in range(3):
            ks, mt = seq[i]
            A('ds_read_b128 v[%d:%d], v3 offset:%d' % (XB[i % 4], XB[i % 4] + 3, (mt * 20 + ks) * 1024))
        for i, (ks, mt) in enumerate(seq):
            if i + 3 < 40:
                k2, m2 = seq[i + 3]; b = XB[(i + 3) % 4]
                A('ds_read_b128 v[%d:%d], v3 offset:%d' % (b, b + 3, (m2 * 20 + k2) * 1024))
                A('s_waitcnt lgkmcnt(3)')
            else:
                A('s_waitcnt lgkmcnt(%d)' % (39 - i))
            b = XB[i % 4]
            for t in range(3):
                d = acc + (mt * 3 + t) * 4; w = (t * 20 + ks) * 4
                A('v_mfma_f32_16x16x32_bf16 v[%d:%d], a[%d:%d], v[%d:%d], %s' % (d, d + 3, w, w + 3, b, b + 3, '0' if ks == 0 else 'v[%d:%d]' % (d, d + 3)))
            if i >= 4 and ep: A(ep.pop(0))
            if i < 10:
                for x in dg.pop(0): A(x)
        assert not ep
        A('s_mov_b32 s25, s34'); A('s_mov_b32 s34, s35'); A('s_mov_b32 s35, s36'); A('s_mov_b32 s36, s25')
        A('s_add_u32 s17, s17, 1')
    E0, E1_ = A.uniq('Lp_e0'), A.uniq('Lp_e1')
    body(0, True, 10)
    A('s_cmp_ge_u32 s17, s18'); A('s_cbranch_scc1 %s' % E0)
    body(1, False, 10)
    A('s_cmp_ge_u32 s17, s18'); A('s_cbranch_scc1 %s' % E1_)
    A.label(LOOP)
    body(0, False)
    A('s_cmp_ge_u32 s17, s18'); A('s_cbranch_scc1 %s' % E0)
    body(1, False)
    A('s_cmp_lt_u32 s17, s18'); A('s_cbranch_scc1 %s' % LOOP)
    A('s_branch %s' % E1_)
    for lab, par in ((E0, 0), (E1_, 1)):
        A.label(lab)
        A('s_sub_u32 s25, s17, 1'); A('s_mul_i32 s37, s25, %d' % SEG_KF); A('s_add_u32 s37, s37, s19'); A('s_add_u32 s38, s37, %d' % (SEG_KF // 2))
        for x in epilogue(ACC[par]): A(x)
        A('s_branch %s' % END)
    A.label(END)
    A('s_waitcnt vmcnt(0)')
    if flag:
        A('s_barrier')
        signal(A, 's17', 0)

def load_w_u(A, sW, tmpv=40, scol='s14'):
    t0, t1, t2 = tmpv, tmpv + 1, tmpv + 2
    ad = tmpv + 3
    A('s_mul_i32 s27, s14, 30720')
    for k in range(5):
        A('v_add_u32 v%d, %d, v0' % (t0, 64 * k))
        A('v_mul_u32_u24 v%d, 0xccd, v%d' % (t1, t0)); A('v_lshrrev_b32 v%d, 16, v%d' % (t1, t1))
        A('v_mul_u32_u24 v%d, 20, v%d' % (t2, t1)); A('v_sub_u32 v%d, v%d, v%d' % (t2, t0, t2))
        A('v_mul_u32_u24 v%d, 1280, v%d' % (t1, t1))
        A('v_lshl_add_u32 v%d, v%d, 4, v%d' % (ad + k, t2, t1))
    A('s_mul_i32 s28, s26, 245760'); A('s_mul_i32 s29, %s, 320' % scol); A('s_add_u32 s28, s28, s29')
    A('s_add_u32 s32, s%d, s28' % sW); A('s_addc_u32 s33, s%d, 0' % (sW + 1))
    A('v_lshrrev_b32 v%d, 4, v0' % t0); A('v_mul_u32_u24 v%d, 12, v%d' % (t0, t0)); A('v_bfe_u32 v%d, v0, 2, 2' % t1)
    A('v_add_u32 v%d, v%d, v%d' % (t0, t0, t1)); A('v_mul_u32_u24 v%d, 320, v%d' % (t0, t0))
    A('v_and_b32 v%d, 3, v0' % t1); A('v_lshlrev_b32 v%d, 3, v%d' % (t1, t1))
    A('v_add3_u32 v%d, v%d, v%d, s27' % (t0, t0, t1))
    for ch in range(2):
        for grp in range(6):
            for k in range(5):
                A('s_add_u32 m0, s27, %d' % ((grp * 5 + k) * 1024))
                A('global_load_lds_dwordx4 v%d, s[32:33]' % (ad + k))
            A('s_add_u32 s32, s32, %d' % (16 * 1280)); A('s_addc_u32 s33, s33, 0')
        A('s_waitcnt vmcnt(0)')
        for nu in range(10):
            for kl in range(3):
                kap = ch * 3 + kl
                r = (nu * 6 + kap) * 4
                for a in range(2):
                    pl = 2 * kap + a; pp, t = pl // 3, pl % 3
                    A('ds_read_b64_tr_b16 a[%d:%d], v%d offset:%d' % (r + 2 * a, r + 2 * a + 1, t0, (48 * pp + 4 * t - 96 * ch) * 320 + 32 * nu))
            A('s_waitcnt lgkmcnt(0)')

def gen_urole_loop(A, mode, ldf='', stf='', scol='s14', flag=False):
    vL16, vA = 1, 2
    VB = [8, 56]
    DD = [104, 112, 120]
    PK = [128, 132, 136]
    A('v_lshlrev_b32 v%d, 4, v0' % vL16)
    if mode == 'U':
        A('v_lshlrev_b32 v%d, 3, v0' % vA)
        A('s_mul_i32 s20, s26, %d' % (12 * 512)); A('s_add_u32 s20, s20, 0x%x' % VF)
    else:
        A('v_and_b32 v3, 15, v0'); A('v_mul_u32_u24 v%d, 12288, v3' % vA)
        A('v_lshrrev_b32 v3, 4, v0'); A('v_mul_u32_u24 v3, 24, v3'); A('v_add_u32 v%d, v%d, v3' % (vA, vA))
        A('s_mul_i32 s20, s26, 384'); A('s_sub_u32 s20, s20, %d' % (64 * 32 * 12288))
    A('s_mul_i32 s21, s26, 40'); A('s_mul_i32 s22, %s, 10' % scol); A('s_add_u32 s21, s21, s22'); A('s_lshl_b32 s21, s21, 10'); A('s_add_u32 s21, s21, 0x%x' % UF)
    def loads(sseg, vb):
        out = []
        if mode == 'U':
            out.append('s_mul_i32 s23, %s, %d' % (sseg, SEG_KF)); out.append('s_add_u32 s23, s23, s20')
            out.append('s_add_u32 s24, s23, 4096'); out.append('s_add_u32 s25, s23, %d' % (SEG_KF // 2)); out.append('s_add_u32 s28, s25, 4096')
            for mt in range(2):
                for pl in range(12):
                    so = (23, 24, 25, 28)[mt * 2 + pl // 8]
                    out.append('buffer_load_dwordx2 v[%d:%d], v%d, s[4:7], s%d offen offset:%d %s' % (vb + mt * 24 + 2 * pl, vb + mt * 24 + 2 * pl + 1, vA, so, 512 * (pl % 8), ldf))
        else:
            out.append('s_mul_i32 s23, %s, %d' % (sseg, 32 * 12288)); out.append('s_add_u32 s23, s23, s20')
            out.append('s_add_u32 s25, s23, %d' % (16 * 12288))
            for mt in range(2):
                for pl in range(12):
                    out.append('buffer_load_dwordx2 v[%d:%d], v%d, s[8:11], s%d offen offset:%d' % (vb + mt * 24 + 2 * pl, vb + mt * 24 + 2 * pl + 1, vA, (23, 25)[mt], 96 * (pl // 3) + 8 * (pl % 3)))
        return out
    if flag:
        A('s_lshl_b32 s40, s26, 7'); A('s_add_u32 s40, s40, 0x%x' % PROG_V); A('v_mov_b32 v6, s40')
        A('s_add_u32 s41, s17, 1')
        wait_prog(A, 6, 7, 's41')
    for x in loads('s17', VB[0]): A(x)
    LOOP, END = A.uniq('Lu_loop'), A.uniq('Lu_end')
    NAFTER = [None]
    def body(par, first):
        vb = VB[par]
        A('s_waitcnt vmcnt(%d)' % (0 if first else NAFTER[0]))
        if flag:
            A('s_barrier')
            if not first: signal(A, 's17', -1)
            A('s_add_u32 s41, s17, 2'); A('s_min_u32 s41, s41, 64')
            L = A.uniq('Lu_have')
            A('v_cmp_gt_u32 vcc, s41, v7'); A('s_cbranch_vccz %s' % L)
            wait_prog(A, 6, 7, 's41')
            A.label(L)
        A('s_add_u32 s29, s17, 1')
        nl = loads('s29', VB[1 - par])
        if flag: nl.append('buffer_load_dword v7, v6, s[4:7], 0 offen sc1')
        A('s_mul_i32 s37, s17, %d' % SEG_UF); A('s_add_u32 s37, s37, s21'); A('s_add_u32 s38, s37, 4096'); A('s_add_u32 s39, s37, 8192')
        pend = []
        cnt = [0]
        def emit(x):
            A(x)
            if x.startswith('buffer_store'): cnt[0] += 1
            if x.startswith('buffer_load'): cnt[0] = 0
        for nu in range(10):
            d = DD[nu % 3]
            k = 0
            for kap in range(6):
                for mt in range(2):
                    w = (nu * 6 + kap) * 4; a = vb + mt * 24 + 4 * kap; dd = d + 4 * mt
                    A('v_mfma_f32_16x16x32_bf16 v[%d:%d], v[%d:%d], a[%d:%d], %s' % (dd, dd + 3, a, a + 3, w, w + 3, '0' if kap == 0 else 'v[%d:%d]' % (dd, dd + 3)))
                    k += 1
                    if k >= 6 and pend: emit(pend.pop(0))
                    elif nl: emit(nl.pop(0))
            while pend: emit(pend.pop(0))
            pk = PK[nu % 3]
            pend = ['v_cvt_pk_bf16_f32 v%d, v%d, v%d' % (pk + j, d + 2 * j, d + 2 * j + 1) for j in range(4)]
            pend.append('buffer_store_dwordx4 v[%d:%d], v%d, s[4:7], s%d offen offset:%d %s' % (pk, pk + 3, vL16, 37 + nu // 4, 1024 * (nu % 4), stf))
        assert not nl
        while pend: emit(pend.pop(0))
        NAFTER[0] = cnt[0]
        A('s_add_u32 s17, s17, 1')
    body(0, True)
    A('s_cmp_ge_u32 s17, s18'); A('s_cbranch_scc1 %s' % END)
    A.label(LOOP)
    body(1, False)
    A('s_cmp_ge_u32 s17, s18'); A('s_cbranch_scc1 %s' % END)
    body(0, False)
    A('s_cmp_lt_u32 s17, s18'); A('s_cbranch_scc1 %s' % LOOP)
    A.label(END)
    A('s_waitcnt vmcnt(0)')
    if flag:
        A('s_barrier')
        signal(A, 's17', 0)

def common_entry(A, name, grid):
    A.raw(kernel_header(name))
    A('s_cmp_ge_u32 s2, %d' % grid); A('s_cbranch_scc1 L%s_end' % name)
    A('s_load_dwordx2 s[12:13], s[0:1], 112')
    A('v_lshrrev_b32 v1, 6, v0'); A('v_readfirstlane_b32 s14, v1'); A('v_and_b32 v0, 63, v0')

def gen_kv_kernel():
    A = Asm()
    common_entry(A, 'kv_kernel', 256)
    A('s_load_dwordx4 s[8:11], s[0:1], 24')
    A('s_waitcnt lgkmcnt(0)')
    srd(A, 4, 12, 13, WS_BYTES)
    A('s_lshr_b32 s26, s2, 2'); A('s_and_b32 s26, s26, 31')
    A('s_and_b32 s17, s2, 3'); A('s_lshl_b32 s17, s17, 4'); A('s_add_u32 s18, s17, 16')
    A('s_mov_b32 s19, 0x%x' % KF)
    A('s_cmp_lt_u32 s2, 128'); A('s_cbranch_scc1 Lkv_go')
    A('s_mov_b32 s8, s10'); A('s_mov_b32 s9, s11'); A('s_mov_b32 s19, 0x%x' % VF)
    A.label('Lkv_go')
    gen_prole(A)
    A.label('Lkv_kernel_end')
    A('s_endpgm')
    return A, ('kv_kernel', (256, 1, 1), 256, 122880, 512, 64, 256)

def gen_u_kernel():
    A = Asm()
    common_entry(A, 'u_kernel', 256)
    A('s_load_dwordx4 s[40:43], s[0:1], 32')
    A('s_waitcnt lgkmcnt(0)')
    srd(A, 4, 12, 13, WS_BYTES)
    srd(A, 8, 40, 41, 640 * 12288)
    A('s_lshr_b32 s26, s2, 3')
    A('s_and_b32 s30, s2, 7')
    load_w_u(A, 42)
    A('s_mul_i32 s17, s30, 11'); A('s_add_u32 s18, s17, 11')
    A('s_cmp_lt_u32 s30, 4'); A('s_cbranch_scc1 Lu_U')
    A('s_mul_i32 s17, s30, 10'); A('s_add_u32 s17, s17, 4'); A('s_add_u32 s18, s17, 10')
    A('s_cmp_lt_u32 s30, 6'); A('s_cbranch_scc1 Lu_U')
    gen_urole_loop(A, 'B')
    A('s_branch Lu_kernel_end')
    A.label('Lu_U')
    gen_urole_loop(A, 'U')
    A.label('Lu_kernel_end')
    A('s_endpgm')
    return A, ('u_kernel', (256, 1, 1), 256, 122880, 512, 64, 256)

if __name__ == '__main__':
    build([gen_prep(), gen_kv_kernel(), gen_u_kernel()], 'stage1.s')
```

```python
from dsl import *
from layout import *
from gen_prep import srd, f32bits, rnd_bf16
from gen_roles import *
from gen_attn import xlane, stats_out
from gen_mlp import gelu_pair
import math

def cnt_addr(kind): return CNT + kind * 72 * 64 + 64

def cnt_signal(A, kind, sseg, allw=False):
    L = A.uniq('Lcs')
    if not allw:
        A('s_cmp_lg_u32 s14, 0'); A('s_cbranch_scc1 %s' % L)
    A('s_lshl_b32 s46, %s, 6' % sseg); A('s_add_u32 s46, s46, 0x%x' % cnt_addr(kind))
    A('v_mov_b32 v4, s46'); A('v_mov_b32 v5, 1'); A('s_mov_b64 exec, 1')
    A('buffer_atomic_add v5, v4, s[4:7], 0 offen')
    if TRACE[0]:
        A('s_mov_b32 s98, %d' % (256 + kind)); A('s_nop 0'); trace(A, sseg, 4, 5)
    A('s_mov_b64 exec, -1')
    A.label(L)

def gen_srole(A, kind):
    KS = 48 if kind == 4 else 20
    Asrc = {1: HF, 2: TF, 3: X1F, 4: U2F}[kind]
    Wsrc = {1: W1F, 2: W2F, 3: W3F, 4: W4F}[kind]
    ln = kind in (1, 3)
    two = kind != 4
    dkind, dneed, dn, doff = {1: (0, 5, 1, 0), 2: (1, 20, 3, -1), 3: (2, 20, 1, 0), 4: (3, 48, 1, 0)}[kind]
    vL16, vN, vG, vFA, vFV = 1, 2, 3, 8, 9
    ACC = 12
    CS = 28
    XB = [36, 40, 44, 48, 52, 56]
    MU, RHO = 60, 62
    IN = [64, 96] if two else [64]
    vST = 124; XT = 125; vX0 = 92 if two else 64
    SH = 10
    PK = 36; t = [44, 45, 46, 47, 48, 49]
    def wreg(a, ks):
        r = (a * KS + ks) * 4
        return ('a[%d:%d]' % (r, r + 3)) if r < 256 else ('v[%d:%d]' % (r - 128, r - 125))
    A('v_lshlrev_b32 v%d, 4, v0' % vL16); A('v_and_b32 v%d, 15, v0' % vN); A('v_lshrrev_b32 v%d, 4, v0' % vG)
    A('s_lshl_b32 s29, s18, 2'); A('s_add_u32 s29, s29, s14')
    A('s_mul_i32 s23, s29, %d' % (2 * KS * 1024)); A('s_add_u32 s23, s23, 0x%x' % Wsrc)
    for i in range(2 * KS):
        A('buffer_load_dwordx4 %s, v%d, s[4:7], s23 offen offset:%d' % (wreg(i // KS, i % KS), vL16, 1024 * (i % 4)))
        if i % 4 == 3: A('s_add_u32 s23, s23, 4096')
    c1 = -2 * math.log2(math.e) * 0.7978845608028654
    A('v_mov_b32 v7, 0x%08x' % f32bits(c1)); A('s_mov_b32 s51, 0x%08x' % f32bits(c1 * 0.044715))
    if kind == 2: A('v_lshlrev_b32 v6, 3, v%d' % vN)
    if kind == 4:
        A('v_mul_u32_u24 v6, 1280, v%d' % vN); A('v_lshl_add_u32 v6, v%d, 3, v6' % vG)
    A('s_waitcnt vmcnt(0)')
    if ln:
        for r in range(4): A('v_mov_b32 v%d, 0x3f803f80' % (XB[0] + r))
        for ks in range(KS):
            for a in range(2):
                d = CS + 4 * a
                A('v_mfma_f32_16x16x32_bf16 v[%d:%d], %s, v[%d:%d], %s' % (d, d + 3, wreg(a, ks), XB[0], XB[0] + 3, '0' if ks == 0 else 'v[%d:%d]' % (d, d + 3)))
    nfr = 2 * KS; per = nfr // 4
    class Rec:
        def __init__(self): self.l = []
        def __call__(self, x): self.l.append(x)
    def flag_setup(sseg, A=A):
        A('v_add_u32 v%d, %s, v0' % (vFA, sseg))
        if doff: A('v_add_u32 v%d, %d, v%d' % (vFA, doff, vFA))
        A('v_cmp_gt_u32 vcc, 64, v%d' % vFA)
        A('s_and_b64 s[48:49], vcc, %d' % ((1 << dn) - 1))
        A('v_lshlrev_b32 v%d, 6, v%d' % (vFA, vFA)); A('v_add_u32 v%d, 0x%x, v%d' % (vFA, cnt_addr(dkind), vFA))
    def loads(sseg, par, A=A):
        lds0 = par * 40960
        if kind != 2:
            A('s_mul_i32 s20, %s, %d' % (sseg, nfr * 1024)); A('s_add_u32 s20, s20, 0x%x' % Asrc)
            A('s_mul_i32 s21, s14, %d' % (per * 1024)); A('s_add_u32 s20, s20, s21'); A('s_add_u32 s21, s21, %d' % lds0)
            for k in range(per):
                if k % 4 == 0:
                    if k: A('s_add_u32 s20, s20, 4096'); A('s_add_u32 s21, s21, 4096')
                    A('s_mov_b32 m0, s21')
                A('buffer_load_dwordx4 v%d, s[4:7], s20 offen offset:%d sc1 lds' % (vL16, 1024 * (k % 4)))
        else:
            A('s_lshl_b32 s20, %s, 5' % sseg); A('s_add_u32 s20, s20, s52')
            A('s_mul_i32 s22, s14, 5120')
            for r in range(2):
                A('v_add_u32 v%d, s20, v%d' % (SH, vN))
                if r: A('v_add_u32 v%d, 16, v%d' % (SH, SH))
                A('v_ashrrev_i32 v%d, 4, v%d' % (SH + 1, SH)); A('v_mul_i32_i24 v%d, 20480, v%d' % (SH + 1, SH + 1))
                A('v_and_b32 v%d, 15, v%d' % (SH, SH)); A('v_lshl_add_u32 v%d, v%d, 4, v%d' % (SH, vG, SH)); A('v_lshl_add_u32 v%d, v%d, 4, v%d' % (SH + 1, SH, SH + 1))
                A('s_add_u32 m0, s22, %d' % (lds0 + r * 20480))
                for k in range(4):
                    A('buffer_load_dwordx4 v%d, s[8:11], s22 offen offset:%d sc1 lds' % (SH + 1, 1024 * k))
                A('s_add_u32 m0, s22, %d' % (lds0 + r * 20480 + 4096)); A('s_add_u32 s21, s22, 4096')
                A('buffer_load_dwordx4 v%d, s[8:11], s21 offen sc1 lds' % (SH + 1))
        base = IN[par]
        if kind in (1, 2, 3):
            STs = ST2 if kind == 3 else ST1
            A('v_mul_u32_u24 v%d, 640, v%d' % (vST, vG)); A('v_lshl_add_u32 v%d, v%d, 3, v%d' % (vST, vN, vST))
            A('s_mul_i32 s25, %s, 5120' % sseg); A('s_add_u32 s25, s25, 0x%x' % STs)
            for r in range(2):
                for k in range(5):
                    A('buffer_load_dwordx2 v[%d:%d], v%d, s[4:7], s25 offen offset:%d sc1' % (base + r * 10 + 2 * k, base + r * 10 + 2 * k + 1, vST, 2560 * r + 128 * k))
        if kind in (2, 4):
            for si, src in enumerate((HF,) if kind == 2 else (HF, X1F)):
                A('s_mul_i32 s25, %s, 40' % sseg); A('s_add_u32 s25, s25, s29'); A('s_lshl_b32 s25, s25, 10'); A('s_add_u32 s25, s25, 0x%x' % src)
                for r in range(2):
                    e = base + 20 + (si * 2 + r) * 4
                    A('buffer_load_dwordx4 v[%d:%d], v%d, s[4:7], s25 offen sc1' % (e, e + 3, vL16))
                    if r == 0: A('s_add_u32 s25, s25, 20480')
    def unpack(src, lo, hi):
        A('v_lshlrev_b32 v%d, 16, v%d' % (lo, src)); A('v_and_b32 v%d, 0xffff0000, v%d' % (hi, src))
    if kind == 2:
        A('s_lshr_b32 s52, s14, 1'); A('s_add_u32 s52, s52, 1')
        A('s_and_b32 s53, s14, 1'); A('s_sub_u32 s54, 0, s52'); A('s_cmp_eq_u32 s53, 0'); A('s_cselect_b32 s52, s54, s52')
    END = A.uniq('Ls_end'); LOOP = A.uniq('Ls_loop')
    A('s_mov_b32 s55, 64')
    flag_setup('s17'); wait_prog(A, vFA, vFV, '%d' % dneed, 's[48:49]', sleep=5)
    loads('s17', 0)
    def next_flag(sseg, A=A):
        A('s_add_u32 s33, %s, s19' % sseg)
        flag_setup('s33', A)
        A('buffer_load_dword v%d, v%d, s[4:7], 0 offen sc1' % (vFV, vFA))
    if two: next_flag('s17')
    A('s_waitcnt vmcnt(0)')
    NST = {1: 2, 2: 4, 3: 2, 4: 4}[kind]
    def stats_stream(base):
        class Rec:
            def __init__(self): self.l = []
            def __call__(self, x): self.l.append(x)
        A = Rec()
        if kind in (1, 2, 3):
            for r in range(2):
                b = base + r * 10
                for k in range(1, 5):
                    A('v_add_f32 v%d, v%d, v%d' % (b, b, b + 2 * k)); A('v_add_f32 v%d, v%d, v%d' % (b + 1, b + 1, b + 2 * k + 1))
                xlane(A, 'v_add_f32', b, XT); xlane(A, 'v_add_f32', b + 1, XT)
                mean, var, m1, s1 = b, b + 1, b + 2, b + 3
                A('v_mul_f32 v%d, 0x%08x, v%d' % (mean, f32bits(1 / 640), mean))
                A('v_mul_f32 v%d, 0x%08x, v%d' % (var, f32bits(1 / 640), var))
                A('v_fma_f32 v%d, -v%d, v%d, v%d' % (var, mean, mean, var))
                A('v_max_f32 v%d, 0, v%d' % (var, var))
                A('v_mov_b32 v%d, v%d' % (m1, mean)); rnd_bf16(A, m1)
                A('v_mov_b32 v%d, v%d' % (s1, var)); rnd_bf16(A, s1)
                A('v_add_f32 v%d, 0x%08x, v%d' % (s1, f32bits(1e-5), s1)); rnd_bf16(A, s1)
                A('v_sqrt_f32 v%d, v%d' % (s1, s1)); rnd_bf16(A, s1)
                A('v_rcp_f32 v%d, v%d' % (RHO + r, s1))
                if kind == 1:
                    m2, s2 = b + 4, b + 5
                    A('v_sub_f32 v%d, v%d, v%d' % (m2, mean, m1)); A('v_mul_f32 v%d, v%d, v%d' % (m2, m2, RHO + r)); rnd_bf16(A, m2)
                    A('v_mul_f32 v%d, v%d, v%d' % (s2, var, RHO + r)); A('v_mul_f32 v%d, v%d, v%d' % (s2, s2, RHO + r)); rnd_bf16(A, s2)
                    A('v_add_f32 v%d, 0x%08x, v%d' % (s2, f32bits(1e-5), s2)); rnd_bf16(A, s2)
                    A('v_sqrt_f32 v%d, v%d' % (s2, s2)); rnd_bf16(A, s2)
                    A('v_rcp_f32 v%d, v%d' % (s2, s2))
                    A('v_fma_f32 v%d, v%d, v%d, v%d' % (MU + r, m2, s1, m1))
                    A('v_mul_f32 v%d, v%d, v%d' % (RHO + r, RHO + r, s2))
                else:
                    A('v_mov_b32 v%d, v%d' % (MU + r, m1))
        return A.l
    def tp(pt):
        if TRACE[0] and kind == 2:
            L = A.uniq('Ltp')
            A('s_or_b32 s99, s18, s14'); A('s_and_b32 s98, s17, 1'); A('s_or_b32 s99, s99, s98'); A('s_cmp_lg_u32 s99, 0'); A('s_cbranch_scc1 %s' % L)
            A('s_lshl_b32 s95, s17, 1'); A('s_add_u32 s95, s95, %d' % pt); A('s_mov_b32 s98, 262')
            A('s_mov_b64 exec, 1'); trace(A, 's95', 126, 127); A('s_mov_b64 exec, -1')
            A.label(L)
    def body(par):
        base = IN[par]
        tp(0)
        A('s_waitcnt vmcnt(%d)' % NST)
        A('s_barrier')
        tp(1)
        A('s_add_u32 s27, s17, s19')
        A('s_mov_b32 s28, 1')
        seq = [(ks, r) for ks in range(KS) for r in range(2)]
        LA = 4
        A('v_add_u32 v%d, %d, v%d' % (vX0, par * 40960, vL16)); A('v_add_u32 v%d, 65536, v%d' % (vX0 + 1, vL16))
        def xrd(i):
            ks, r = seq[i]; b = XB[i % 6]; off = (r * KS + ks) * 1024
            if off < 65536: return 'ds_read_b128 v[%d:%d], v%d offset:%d' % (b, b + 3, vX0, off)
            return 'ds_read_b128 v[%d:%d], v%d offset:%d' % (b, b + 3, vX0 + 1, off - 65536)
        def mloop(pref):
            for i in range(LA): A(xrd(i))
            sst = stats_stream(base)
            pl = []
            if pref:
                R_ = Rec(); loads('s27', 1 - par, R_); next_flag('s27', R_); pl = R_.l
            nvm = 0
            for i, (ks, r) in enumerate(seq):
                if i + LA < len(seq):
                    A(xrd(i + LA)); A('s_waitcnt lgkmcnt(%d)' % LA)
                else:
                    A('s_waitcnt lgkmcnt(%d)' % (len(seq) - 1 - i))
                b = XB[i % 6]
                for a in range(2):
                    d = ACC + (r * 2 + a) * 4
                    A('v_mfma_f32_16x16x32_bf16 v[%d:%d], %s, v[%d:%d], %s' % (d, d + 3, wreg(a, ks), b, b + 3, '0' if ks == 0 else 'v[%d:%d]' % (d, d + 3)))
                    if a == 0:
                        while pl:
                            x = pl.pop(0); A(x)
                            if x.startswith('buffer_'):
                                nvm += 1; break
                    else:
                        for _ in range(3):
                            if sst: A(sst.pop(0))
                if two and i == 12:
                    Ld = A.uniq('Lsd')
                    A('s_cmp_ge_u32 s55, 64'); A('s_cbranch_scc1 %s' % Ld)
                    A('s_waitcnt vmcnt(%d)' % nvm)
                    cnt_signal(A, kind, 's55', True)
                    A('s_mov_b32 s55, 64')
                    A.label(Ld)
            assert not pl
            while sst: A(sst.pop(0))
        if two:
            Lp, Lj = A.uniq('Lsp'), A.uniq('Lsj')
            A('s_cmp_ge_u32 s27, 64'); A('s_cbranch_scc1 %s' % Lp)
            A('v_cmp_gt_u32 vcc, %d, v%d' % (dneed, vFV)); A('s_and_b64 vcc, vcc, s[48:49]'); A('s_cbranch_scc1 %s' % Lp)
            A('s_mov_b32 s28, 0')
            mloop(True)
            A('s_branch %s' % Lj)
            A.label(Lp)
            mloop(False)
            A.label(Lj)
        else:
            mloop(False)
        tp(3)
        EX = base + 20
        for r in range(2):
            for j in range(4):
                d = ACC + r * 8 + 2 * j; pk = PK + 4 * r + j
                if ln:
                    for e in range(2):
                        A('v_fma_f32 v%d, -v%d, v%d, v%d' % (d + e, MU + r, CS + 2 * j + e, d + e))
                        A('v_mul_f32 v%d, v%d, v%d' % (d + e, d + e, RHO + r))
                    A('v_cvt_pk_bf16_f32 v%d, v%d, v%d' % (t[0], d, d + 1)); unpack(t[0], d, d + 1)
                    gelu_pair(A, d, d + 1, t[0], t[1])
                    A('v_cvt_pk_bf16_f32 v%d, v%d, v%d' % (pk, d, d + 1))
                elif kind == 2:
                    A('v_cvt_pk_bf16_f32 v%d, v%d, v%d' % (t[0], d, d + 1)); unpack(t[0], d, d + 1)
                    unpack(EX + 4 * r + j, t[0], t[1])
                    A('v_sub_f32 v%d, v%d, v%d' % (t[0], t[0], MU + r)); A('v_sub_f32 v%d, v%d, v%d' % (t[1], t[1], MU + r))
                    A('v_cvt_pk_bf16_f32 v%d, v%d, v%d' % (t[2], t[0], t[1])); unpack(t[2], t[0], t[1])
                    A('v_mul_f32 v%d, v%d, v%d' % (t[0], t[0], RHO + r)); A('v_mul_f32 v%d, v%d, v%d' % (t[1], t[1], RHO + r))
                    A('v_cvt_pk_bf16_f32 v%d, v%d, v%d' % (t[2], t[0], t[1])); unpack(t[2], t[0], t[1])
                    A('v_add_f32 v%d, v%d, v%d' % (t[0], t[0], d)); A('v_add_f32 v%d, v%d, v%d' % (t[1], t[1], d + 1))
                    A('v_cvt_pk_bf16_f32 v%d, v%d, v%d' % (pk, t[0], t[1])); unpack(pk, d, d + 1)
                else:
                    A('v_cvt_pk_bf16_f32 v%d, v%d, v%d' % (t[0], d, d + 1)); unpack(t[0], d, d + 1)
                    unpack(EX + 4 * (2 + r) + j, t[0], t[1])
                    A('v_add_f32 v%d, v%d, v%d' % (t[0], t[0], d)); A('v_add_f32 v%d, v%d, v%d' % (t[1], t[1], d + 1))
                    A('v_cvt_pk_bf16_f32 v%d, v%d, v%d' % (t[2], t[0], t[1])); unpack(t[2], d, d + 1)
                    unpack(EX + 4 * r + j, t[0], t[1])
                    A('v_add_f32 v%d, v%d, v%d' % (t[0], t[0], d)); A('v_add_f32 v%d, v%d, v%d' % (t[1], t[1], d + 1))
                    A('v_cvt_pk_bf16_f32 v%d, v%d, v%d' % (pk, t[0], t[1]))
            A('s_lshl_b32 s34, s17, 1'); A('s_add_u32 s34, s34, %d' % r)
            if kind == 4:
                A('s_mul_i32 s35, s34, %d' % (16 * 1280)); A('s_lshl_b32 s36, s29, 6'); A('s_add_u32 s35, s35, s36')
                A('buffer_store_dwordx2 v[%d:%d], v6, s[8:11], s35 offen' % (PK + 4 * r, PK + 4 * r + 1))
                A('buffer_store_dwordx2 v[%d:%d], v6, s[8:11], s35 offen offset:32' % (PK + 4 * r + 2, PK + 4 * r + 3))
            else:
                dst, okS = {1: (TF, 20), 2: (X1F, 20), 3: (U2F, 48)}[kind]
                A('s_mul_i32 s35, s34, %d' % okS); A('s_add_u32 s35, s35, s29'); A('s_lshl_b32 s35, s35, 10'); A('s_add_u32 s35, s35, 0x%x' % dst)
                A('buffer_store_dwordx4 v[%d:%d], v%d, s[4:7], s35 offen sc1' % (PK + 4 * r, PK + 4 * r + 3, vL16))
                if kind == 2:
                    A('s_mul_i32 s35, s34, 2560'); A('s_lshl_b32 s36, s29, 7'); A('s_add_u32 s35, s35, s36'); A('s_add_u32 s35, s35, 0x%x' % ST2)
                    stats_out(A, list(range(ACC + r * 8, ACC + r * 8 + 8)), 6, 's35', 50 + 2 * r, 51 + 2 * r, 44, 'sc1')
        Lq = A.uniq('Lsq')
        A('s_mov_b32 s55, s17')
        A('s_mov_b32 s17, s27')
        if two:
            A('s_cmp_eq_u32 s28, 0'); A('s_cbranch_scc1 %s' % Lq)
            A('s_waitcnt vmcnt(0)')
            cnt_signal(A, kind, 's55', True)
            A('s_mov_b32 s55, 64')
        else:
            if TRACE[0]:
                A('s_waitcnt vmcnt(0)'); cnt_signal(A, kind, 's55')
            A('s_barrier')
        A('s_cmp_ge_u32 s17, 64'); A('s_cbranch_scc1 %s' % END)
        flag_setup('s17'); wait_prog(A, vFA, vFV, '%d' % dneed, 's[48:49]', sleep=5)
        loads('s17', (1 - par) if two else 0)
        if two: next_flag('s17')
        A('s_waitcnt vmcnt(0)')
        A.label(Lq)
    A.label(LOOP)
    body(0)
    if two: body(1)
    A('s_branch %s' % LOOP)
    A.label(END)

def gen_c2role(A):
    vL16 = 1; ZA = 2; ACC = 12; PB = 76
    ZB, PMB = 140, 204
    t0, t1, t2, t3 = 220, 221, 222, 223
    XR = 224
    A('v_lshlrev_b32 v%d, 4, v0' % vL16); A('v_and_b32 v10, 15, v0'); A('v_lshrrev_b32 v11, 4, v0')
    for ct in range(8):
        A('s_lshl_b32 s29, s18, 4'); A('s_add_u32 s29, s29, %d' % ((ct >> 1) * 4))
        A('v_lshrrev_b32 v%d, 2, v10' % t0); A('v_add_u32 v%d, s29, v%d' % (t0, t0))
        A('v_mul_u32_u24 v%d, 0x3334, v%d' % (t1, t0)); A('v_lshrrev_b32 v%d, 16, v%d' % (t1, t1))
        A('v_mul_u32_u24 v%d, 5, v%d' % (t2, t1)); A('v_sub_u32 v%d, v%d, v%d' % (t2, t0, t2))
        A('v_cmp_lt_u32 vcc, 2, v%d' % t2); A('v_cndmask_b32 v%d, 0, 1, vcc' % t3)
        A('v_lshl_add_u32 v%d, v%d, 1, v%d' % (t1, t1, t3))
        A('v_mul_u32_u24 v%d, 3, v%d' % (t3, t3)); A('v_sub_u32 v%d, v%d, v%d' % (t2, t2, t3))
        A('v_lshlrev_b32 v%d, 12, v%d' % (ZA + ct, t1)); A('v_lshl_add_u32 v%d, v%d, 7, v%d' % (ZA + ct, t2, ZA + ct))
        A('v_and_b32 v%d, 3, v10' % t3); A('v_lshl_add_u32 v%d, v%d, 4, v%d' % (ZA + ct, t3, ZA + ct))
        A('v_mul_u32_u24 v%d, 384, v11' % t3); A('v_add_u32 v%d, v%d, v%d' % (ZA + ct, ZA + ct, t3))
        if ct & 1: A('v_add_u32 v%d, 64, v%d' % (ZA + ct, ZA + ct))
    A('s_lshl_b32 s29, s18, 2'); A('s_add_u32 s29, s29, s14')
    A('v_mul_u32_u24 v232, 1280, v10'); A('v_lshl_add_u32 v232, v11, 3, v232')
    A('v_lshlrev_b32 v233, 3, v10')
    A('s_lshl_b32 s20, s14, 5'); A('s_add_u32 s20, s20, 0x%x' % PROG_Q)
    A('v_and_b32 v234, 7, v0'); A('v_lshlrev_b32 v234, 2, v234'); A('v_add_u32 v234, s20, v234')
    A('s_lshl_b32 s20, s14, 7'); A('s_add_u32 s20, s20, 0x%x' % PROG_UK); A('v_and_b32 v236, 7, v0'); A('v_lshlrev_b32 v236, 2, v236'); A('v_add_u32 v236, s20, v236')
    A('s_mov_b32 s48, -1'); A('s_mov_b32 s49, 0xff')
    LOOP, END = A.uniq('Lc_loop'), A.uniq('Lc_end')
    A.label(LOOP)
    A('s_add_u32 s41, s17, 1')
    wait_prog(A, 236, 235, 's41', '0xff', sleep=8)
    A('s_lshl_b32 s20, s17, 5'); A('s_lshl_b32 s21, s14, 3'); A('s_add_u32 s20, s20, s21')
    A('s_mul_i32 s22, s20, 40'); A('s_lshl_b32 s23, s18, 3'); A('s_add_u32 s22, s22, s23'); A('s_lshl_b32 s22, s22, 10'); A('s_add_u32 s22, s22, 0x%x' % UF)
    A('s_lshl_b32 s24, s20, 11'); A('s_add_u32 s24, s24, 0x%x' % PFR)
    A('s_lshl_b32 s25, s20, 9'); A('s_add_u32 s25, s25, 0x%x' % PMF)
    A('s_lshl_b32 s27, s17, 19'); A('s_lshl_b32 s28, s14, 17'); A('s_add_u32 s27, s27, s28'); A('s_add_u32 s27, s27, 0x%x' % EXP)
    for k in range(8):
        A('s_add_u32 s23, s22, 4096')
        for ct in range(8):
            r = (k * 8 + ct) * 4
            A('buffer_load_dwordx4 a[%d:%d], v%d, s[4:7], s%d offen offset:%d sc1' % (r, r + 3, vL16, 22 if ct < 4 else 23, 1024 * (ct % 4)))
        A('s_add_u32 s22, s22, 40960')
    A('s_mul_i32 s34, s17, %d' % (32 * 1280)); A('s_lshl_b32 s35, s29, 6'); A('s_add_u32 s34, s34, s35'); A('s_add_u32 s35, s34, %d' % (16 * 1280))
    for mt in range(2):
        for a in range(2):
            A('buffer_load_dwordx2 v[%d:%d], v232, s[8:11], s%d offen offset:%d' % (XR + 4 * mt + 2 * a, XR + 4 * mt + 2 * a + 1, 34 + mt, 32 * a))
    wait_prog(A, 234, 235, 's41', '0xff', sleep=4, far='s17')
    for j in range(16):
        A('buffer_load_dwordx4 v[%d:%d], v%d, s[4:7], s24 offen offset:%d sc1' % (PB + 4 * j, PB + 4 * j + 3, vL16, 1024 * (j % 4)))
        if j % 4 == 3: A('s_add_u32 s24, s24, 4096')
    for k in range(2):
        for mt in range(2):
            r = PMB + (k * 2 + mt) * 4
            A('buffer_load_dwordx4 v[%d:%d], v%d, s[4:7], s25 offen offset:%d sc1' % (r, r + 3, vL16, 2048 * k + 1024 * mt))
        for ct in range(8):
            r = ZB + (k * 8 + ct) * 4
            A('buffer_load_dwordx4 v[%d:%d], v%d, s[4:7], s27 offen offset:%d sc1' % (r, r + 3, ZA + ct, 1536 * k))
    for k in range(8):
        A('s_waitcnt vmcnt(%d)' % (20 + 14 - 2 * k))
        for ct in range(8):
            for mt in range(2):
                d = ACC + (ct * 2 + mt) * 4; r = (k * 8 + ct) * 4; p = PB + (k * 2 + mt) * 4
                A('v_mfma_f32_16x16x32_bf16 v[%d:%d], a[%d:%d], v[%d:%d], %s' % (d, d + 3, r, r + 3, p, p + 3, '0' if k == 0 else 'v[%d:%d]' % (d, d + 3)))
    for k in range(2):
        A('s_waitcnt vmcnt(%d)' % (10 - 10 * k))
        for ct in range(8):
            for mt in range(2):
                d = ACC + (ct * 2 + mt) * 4; r = ZB + (k * 8 + ct) * 4; p = PMB + (k * 2 + mt) * 4
                A('v_mfma_f32_16x16x32_bf16 v[%d:%d], v[%d:%d], v[%d:%d], v[%d:%d]' % (d, d + 3, r, r + 3, p, p + 3, d, d + 3))
    A('s_lshl_b32 s36, s14, 14'); A('v_add_u32 v%d, s36, v%d' % (t1, vL16))
    for j in range(16):
        A('ds_write_b128 v%d, v[%d:%d] offset:%d' % (t1, ACC + 4 * j, ACC + 4 * j + 3, 1024 * j))
    A('s_waitcnt lgkmcnt(0)')
    A('s_barrier')
    A('s_lshl_b32 s36, s14, 12'); A('v_add_u32 v%d, s36, v%d' % (t1, vL16))
    RD = 76
    for j in range(4):
        for ws in range(4):
            r = RD + (j * 4 + ws) * 4
            A('ds_read_b128 v[%d:%d], v%d offset:%d' % (r, r + 3, t1, ws * 16384 + j * 1024))
    for j in range(4):
        A('s_waitcnt lgkmcnt(%d)' % (12 - 4 * j))
        a = RD + j * 16
        for h2 in range(2):
            A('v_pk_add_f32 v[%d:%d], v[%d:%d], v[%d:%d]' % (a + 2 * h2, a + 2 * h2 + 1, a + 2 * h2, a + 2 * h2 + 1, a + 4 + 2 * h2, a + 5 + 2 * h2))
            A('v_pk_add_f32 v[%d:%d], v[%d:%d], v[%d:%d]' % (a + 8 + 2 * h2, a + 9 + 2 * h2, a + 8 + 2 * h2, a + 9 + 2 * h2, a + 12 + 2 * h2, a + 13 + 2 * h2))
        for h2 in range(2):
            A('v_pk_add_f32 v[%d:%d], v[%d:%d], v[%d:%d]' % (a + 2 * h2, a + 2 * h2 + 1, a + 2 * h2, a + 2 * h2 + 1, a + 8 + 2 * h2, a + 9 + 2 * h2))
    HP = 12
    for mt in range(2):
        for a in range(2):
            for h2 in range(2):
                src = RD + (a * 2 + mt) * 16 + 2 * h2; xr = XR + 4 * mt + 2 * a + h2; f = 20 + 4 * a + 2 * h2
                A('v_cvt_pk_bf16_f32 v28, v%d, v%d' % (src, src + 1))
                A('v_lshlrev_b32 v29, 16, v28'); A('v_and_b32 v28, 0xffff0000, v28')
                A('v_lshlrev_b32 v30, 16, v%d' % xr); A('v_and_b32 v31, 0xffff0000, v%d' % xr)
                A('v_add_f32 v29, v29, v30'); A('v_add_f32 v28, v28, v31')
                pk = HP + 4 * mt + 2 * a + h2
                A('v_cvt_pk_bf16_f32 v%d, v29, v28' % pk)
                A('v_lshlrev_b32 v%d, 16, v%d' % (f, pk)); A('v_and_b32 v%d, 0xffff0000, v%d' % (f + 1, pk))
        A('s_lshl_b32 s34, s17, 1'); A('s_add_u32 s34, s34, %d' % mt)
        A('s_mul_i32 s35, s34, 20'); A('s_add_u32 s35, s35, s29'); A('s_lshl_b32 s35, s35, 10'); A('s_add_u32 s35, s35, 0x%x' % HF)
        A('buffer_store_dwordx4 v[%d:%d], v%d, s[4:7], s35 offen sc1' % (HP + 4 * mt, HP + 4 * mt + 3, vL16))
        A('s_mul_i32 s34, s34, 2560'); A('s_lshl_b32 s35, s29, 7'); A('s_add_u32 s34, s34, s35'); A('s_add_u32 s34, s34, 0x%x' % ST1)
        stats_out(A, list(range(20, 28)), 233, 's34', 32 + 2 * mt, 33 + 2 * mt, 28, 'sc1')
    A('s_waitcnt vmcnt(0)')
    A('s_barrier')
    A('v_mov_b32 v40, v4'); A('v_mov_b32 v41, v5')
    cnt_signal(A, 0, 's17')
    A('v_mov_b32 v4, v40'); A('v_mov_b32 v5, v41')
    A('s_add_u32 s17, s17, s19')
    A('s_cmp_lt_u32 s17, 64'); A('s_cbranch_scc1 %s' % LOOP)
```

```python
import sys
from gen_mlp import *
import gen_rec11 as REC
from gen_stage import gen_srole, gen_c2role

NTAU = 38
SKEW = {0: 0, 1: 1, 2: 3, 3: 4, 4: 5}
def cnt_addr(kind): return CNT + kind * 64 * 64 + 64

def gen_tasks(A):
    A.label('Lmain_tasks')
    A('v_mbcnt_lo_u32_b32 v0, -1, 0'); A('v_mbcnt_hi_u32_b32 v0, -1, v0')
    A('s_load_dwordx2 s[52:53], s[0:1], 0')
    A('s_load_dwordx2 s[54:55], s[0:1], 96')
    A('s_load_dwordx2 s[56:57], s[0:1], 112')
    A('s_waitcnt vmcnt(0) lgkmcnt(0)')
    A('s_mov_b32 s70, s30')
    A.label('Ltask_next')
    A('s_barrier')
    A('s_cmp_lg_u32 s14, 0'); A('s_cbranch_scc1 Ltask_w')
    A('v_mov_b32 v1, 0x%x' % TQ); A('v_mov_b32 v3, 1')
    A('s_mov_b64 exec, 1')
    A('buffer_atomic_add v3, v1, s[4:7], 0 offen sc0')
    A('s_waitcnt vmcnt(0)')
    A('v_mov_b32 v1, 0'); A('ds_write_b32 v1, v3')
    A('s_mov_b64 exec, -1')
    A('s_waitcnt lgkmcnt(0)')
    A.label('Ltask_w')
    A('s_barrier')
    A('v_mov_b32 v1, 0'); A('ds_read_b32 v3, v1'); A('s_waitcnt lgkmcnt(0)')
    A('v_readfirstlane_b32 s58, v3')
    A('s_barrier')
    A('s_cmp_ge_u32 s58, %d' % (NTAU * 42)); A('s_cbranch_scc1 Lmain_end')
    A('s_mul_i32 s59, s58, 0x619'); A('s_lshr_b32 s59, s59, 16')
    A('s_mul_i32 s60, s59, 42'); A('s_sub_u32 s60, s58, s60')
    bounds = [(0, 10, 0), (10, 15, 1), (15, 20, 2), (20, 32, 3), (32, 42, 4)]
    for lo, hi, kind in bounds[:-1]:
        A('s_cmp_lt_u32 s60, %d' % hi); A('s_cbranch_scc1 Ltask_k%d' % kind)
    def head(lo, kind):
        A('s_sub_u32 s60, s60, %d' % lo)
        A('s_sub_u32 s61, s59, %d' % SKEW[kind])
        A('s_cmp_ge_u32 s61, 32'); A('s_cbranch_scc1 Ltask_next')
    def done(kind):
        A('s_waitcnt vmcnt(0)')
        A('s_barrier')
        L = A.uniq('Ltd')
        A('s_cmp_lg_u32 s14, 0'); A('s_cbranch_scc1 %s' % L)
        A('s_lshl_b32 s62, s61, 6'); A('s_add_u32 s62, s62, 0x%x' % cnt_addr(kind))
        A('v_mov_b32 v1, s62'); A('v_mov_b32 v3, 1'); A('s_mov_b64 exec, 1')
        A('buffer_atomic_add v3, v1, s[4:7], 0 offen')
        if TRACE[0]:
            A('s_mov_b32 s98, %d' % (256 + kind)); trace(A, 's61', 1, 3)
        A('s_mov_b64 exec, -1')
        A.label(L)
        A('s_branch Ltask_next')
    def dep_cnt(kind, need, nb=1, off=0):
        def f():
            A('v_add_u32 v230, s61, v0'); A('v_add_u32 v230, %d, v230' % off)
            A('v_cmp_gt_u32 vcc, 32, v230')
            A('s_and_b64 s[62:63], vcc, %d' % ((1 << nb) - 1))
            A('v_lshlrev_b32 v230, 6, v230'); A('v_add_u32 v230, 0x%x, v230' % cnt_addr(kind))
            A('s_mov_b32 s30, s70'); A('s_mov_b32 s31, 0x100000')
            wait_prog(A, 230, 231, '%d' % need, 's[62:63]')
            A('s_mov_b32 s70, s30')
        return f
    def two():
        A('s_cmp_ge_u32 s60, 5'); A('s_cselect_b32 s62, 1, 0'); A('s_cselect_b32 s63, 5, 0')
        A('s_sub_u32 s18, s60, s63'); A('s_lshl_b32 s17, s61, 1'); A('s_add_u32 s17, s17, s62')
    head(32, 4); two()
    srd(A, 8, 54, 55, 2048 * 1280)
    gen_dtask(A, 4, 'sc1', 'sc1', dep_cnt(3, 12))
    A('s_branch Ltask_next' if not TRACE[0] else 's_nop 0')
    if TRACE[0]: done(4)
    A.label('Ltask_k0')
    head(0, 0); two()
    srd(A, 8, 52, 53, 2048 * 1280)
    def dep_c2():
        A('s_add_u32 s62, s17, 1')
        A('s_mov_b32 s30, s70'); A('s_mov_b32 s31, 0x100000')
        A('v_lshlrev_b32 v230, 2, v0'); A('v_add_u32 v230, 0x%x, v230' % PROG_R)
        wait_prog(A, 230, 231, 's62')
        A('v_add_u32 v230, 256, v230'); wait_prog(A, 230, 231, 's62')
        A('v_and_b32 v230, 31, v0'); A('v_lshlrev_b32 v230, 2, v230'); A('v_add_u32 v230, 0x%x, v230' % PROG_Q)
        wait_prog(A, 230, 231, 's62')
        A('s_mov_b32 s70, s30')
    gen_c2_task(A, 'sc1', 'sc1', dep_c2)
    done(0)
    for lo, kind, dep in ((10, 1, dep_cnt(0, 10)), (15, 2, dep_cnt(1, 5, 3, -1)), (20, 3, dep_cnt(2, 5))):
        A.label('Ltask_k%d' % kind)
        head(lo, kind)
        A('s_mov_b32 s17, s61'); A('s_mov_b32 s18, s60')
        if kind == 2:
            A('s_add_u32 s64, s56, 0x%x' % TF); A('s_addc_u32 s65, s57, 0')
            srd(A, 8, 64, 65, 2048 * 1280)
        gen_dtask(A, kind, 'sc1', 'sc1', dep)
        done(kind)

def gen_phase2(A):
    A.label('Lmain_tasks')
    A('s_load_dwordx2 s[58:59], s[0:1], 0')
    A('s_load_dwordx2 s[60:61], s[0:1], 96')
    A('s_load_dwordx2 s[56:57], s[0:1], 112')
    A('s_waitcnt vmcnt(0) lgkmcnt(0)')
    A('s_barrier')
    def split5(lo):
        A('s_sub_u32 s20, s26, %d' % lo); A('s_mul_i32 s17, s20, 0x3334'); A('s_lshr_b32 s17, s17, 16')
        A('s_mul_i32 s18, s17, 5'); A('s_sub_u32 s18, s20, s18')
    A('s_cmp_eq_u32 s16, 1'); A('s_cbranch_scc1 Lph_v')
    A('s_cmp_eq_u32 s16, 2'); A('s_cbranch_scc1 Lph_u')
    A('s_cmp_ge_u32 s26, 30'); A('s_cbranch_scc1 Lmain_end')
    split5(0); A('s_mov_b32 s19, 6')
    srd(A, 8, 58, 59, 2048 * 1280)
    gen_c2role(A)
    A('s_branch Lmain_end')
    A.label('Lph_v')
    A('s_mov_b32 s19, 2')
    A('s_cmp_ge_u32 s26, 20'); A('s_cbranch_scc1 Lph_v3')
    A('s_cmp_ge_u32 s26, 10'); A('s_cbranch_scc1 Lph_v2')
    split5(0); gen_srole(A, 1); A('s_branch Lmain_end')
    A.label('Lph_v2')
    split5(10)
    A('s_add_u32 s64, s56, 0x%x' % TF); A('s_addc_u32 s65, s57, 0')
    srd(A, 8, 64, 65, 2048 * 1280)
    gen_srole(A, 2); A('s_branch Lmain_end')
    A.label('Lph_v3')
    A('s_sub_u32 s18, s26, 20'); A('s_mov_b32 s17, 0')
    A.label('Lph_d3')
    gen_srole(A, 3); A('s_branch Lmain_end')
    A.label('Lph_u')
    A('s_mov_b32 s19, 2'); A('s_sub_u32 s18, s26, 20'); A('s_mov_b32 s17, 1')
    A('s_cmp_ge_u32 s26, 20'); A('s_cbranch_scc1 Lph_d3')
    split5(0); A('s_mov_b32 s19, 4')
    srd(A, 8, 60, 61, 2048 * 1280)
    gen_srole(A, 4)

def gen_main_kernel(stamp=False, opt=None):
    REC.OPT.clear(); REC.OPT.update({'fused': True, 'upf': 'sc1'}); REC.OPT.update(opt or {})
    A = Asm(); A.nuniq = 50000
    A.raw(kernel_header('main_kernel'))
    A('s_cmp_ge_u32 s2, 256'); A('s_cbranch_scc1 Lmain_end')
    A('s_load_dwordx4 s[32:35], s[0:1], 104')
    A('s_getreg_b32 s15, hwreg(HW_REG_XCC_ID)'); A('s_and_b32 s15, s15, 7')
    A('v_lshrrev_b32 v1, 6, v0'); A('v_readfirstlane_b32 s14, v1'); A('v_and_b32 v0, 63, v0')
    A('s_waitcnt lgkmcnt(0)')
    srd(A, 4, 34, 35, WS_BYTES)
    srd(A, 8, 32, 33, 256)
    A('s_mov_b32 s30, 0'); A('s_mov_b32 s31, 0x100000')
    A('s_cmp_lg_u32 s14, 0'); A('s_cbranch_scc1 Lmain_w')
    A('s_lshl_b32 s16, s15, 2')
    A('v_mov_b32 v1, s16'); A('v_mov_b32 v3, 1')
    A('s_mov_b64 exec, 1')
    A('buffer_atomic_add v3, v1, s[8:11], 0 offen sc0')
    A('s_mov_b64 exec, -1')
    A('v_and_b32 v1, 7, v0'); A('v_lshlrev_b32 v1, 2, v1')
    A.label('Lmain_cen')
    A('buffer_load_dword v2, v1, s[8:11], 0 offen sc1')
    A('s_waitcnt vmcnt(0)')
    A('s_mov_b32 s20, 0'); A('s_mov_b32 s21, 0'); A('s_mov_b32 s22, 0')
    for x in range(8):
        A('v_readlane_b32 s23, v2, %d' % x)
        A('s_add_u32 s20, s20, s23')
        A('s_cmp_gt_u32 s15, %d' % x); A('s_cselect_b32 s24, s23, 0'); A('s_add_u32 s21, s21, s24')
        A('s_cmp_lg_u32 s23, 32'); A('s_cselect_b32 s24, 1, 0'); A('s_or_b32 s22, s22, s24')
    A('s_cmp_ge_u32 s20, 256'); A('s_cbranch_scc1 Lmain_cd')
    A('s_add_u32 s30, s30, 1'); A('s_cmp_lt_u32 s30, s31'); A('s_cbranch_scc1 Lmain_cen')
    A.label('Lmain_cd')
    A('v_readfirstlane_b32 s16, v3')
    A('s_add_u32 s16, s16, s21')
    A('s_lshl_b32 s22, s22, 8'); A('s_or_b32 s16, s16, s22')
    A('v_mov_b32 v1, 0'); A('v_mov_b32 v2, s16')
    A('ds_write_b32 v1, v2')
    A('s_waitcnt lgkmcnt(0)')
    A.label('Lmain_w')
    A('s_barrier')
    A('v_mov_b32 v1, 0')
    A('ds_read_b32 v3, v1')
    A('s_waitcnt lgkmcnt(0)')
    A('v_readfirstlane_b32 s16, v3')
    A('s_barrier')
    A('s_lshr_b32 s3, s16, 8')
    if TRACE[0]:
        A('s_and_b32 s98, s16, 255')
        A('s_mov_b64 exec, 1'); trace(A, '99', 4, 5); A('s_mov_b64 exec, -1')
    if REC.OPT.get('forceslow'): A('s_mov_b32 s3, 1')
    A('s_bfe_u32 s15, s16, 0x30005')
    A('s_and_b32 s16, s16, 31')
    A('s_cmp_ge_u32 s15, 4'); A('s_cbranch_scc1 Lmain_worker')
    REC.OPT['brounds'] = True
    A('s_load_dwordx8 s[64:71], s[0:1], 16')
    A('v_mov_b32 v1, 0x%x' % CTL)
    A('buffer_load_dword v1, v1, s[4:7], 0 offen')
    A('s_waitcnt vmcnt(0) lgkmcnt(0)')
    A('v_readfirstlane_b32 s44, v1'); A('s_and_b32 s44, s44, 8192')
    if 'par' in REC.OPT: A('s_mov_b32 s44, %d' % (8192 * int(REC.OPT['par'])))
    REC.gen_rec(A, stamp)
    A('s_branch Lmain_end')
    A.label('Lmain_worker')
    A('s_load_dwordx8 s[48:55], s[0:1], 16')
    A('s_sub_u32 s15, s15, 4')
    A('s_lshl_b32 s26, s15, 3'); A('s_lshr_b32 s17, s16, 2'); A('s_add_u32 s26, s26, s17')
    A('s_lshl_b32 s47, s15, 7'); A('s_lshl_b32 s17, s17, 2'); A('s_add_u32 s47, s47, s17'); A('s_add_u32 s47, s47, 0x%x' % PROG_UK)
    A('s_and_b32 s16, s16, 3')
    A('s_mov_b32 s17, 0'); A('s_mov_b32 s18, 64')
    A('s_waitcnt lgkmcnt(0)')
    A('s_cmp_eq_u32 s16, 2'); A('s_cbranch_scc1 Lmain_u')
    A('s_cmp_eq_u32 s16, 3'); A('s_cbranch_scc1 Lmain_q')
    A('s_mov_b32 s8, s50'); A('s_mov_b32 s9, s51'); A('s_mov_b32 s19, 0x%x' % KF); A('s_add_u32 s47, s47, 32')
    A('s_cmp_eq_u32 s16, 0'); A('s_cbranch_scc1 Lmain_p')
    A('s_mov_b32 s8, s52'); A('s_mov_b32 s9, s53'); A('s_mov_b32 s19, 0x%x' % VF)
    A('s_lshl_b32 s47, s26, 7'); A('s_add_u32 s47, s47, 0x%x' % PROG_V)
    A.label('Lmain_p')
    gen_prole(A, stf='sc1', flag=True)
    A('s_branch Lmain_tasks')
    A.label('Lmain_u')
    load_w_u(A, 54)
    gen_urole_loop(A, 'U', ldf='sc1', stf='sc1', flag=True)
    A('s_branch Lmain_tasks')
    A.label('Lmain_q')
    A('s_mov_b32 s8, s48'); A('s_mov_b32 s9, s49')
    A('s_lshl_b32 s47, s26, 2'); A('s_add_u32 s47, s47, 0x%x' % PROG_Q)
    gen_qrole(A, ldf='sc1', stf='sc1', flag=True)
    A('s_branch Lmain_end')
    gen_phase2(A)
    A.label('Lmain_end')
    A('s_endpgm')
    REC.emit_ool(A)
    return A, ('main_kernel', (256, 1, 1), 256, 147456, 512, 102, 256)

if __name__ == '__main__':
    opt = {}
    name = 'all2.s'
    for a in sys.argv[1:]:
        if a.endswith('.s'): name = a
        else:
            k, _, v = a.partition('='); opt[k] = v if _ else True
    TRACE[0] = bool(opt.get('trace'))
    parts = [gen_prep(), gen_main_kernel(stamp=bool(opt.get('stamp')), opt=opt)]
    build(parts, name)
```
